```python
import torch

def _softmax(x, axis=-1):
    return torch.softmax(x, dim=axis)
def _gelu(x):
    return torch.nn.functional.gelu(x, approximate="tanh")
def _silu(x):
    return torch.nn.functional.silu(x)
def _sigmoid(x):
    return torch.sigmoid(x)
def _layernorm(x, axis=-1, eps=1e-5):
    m = x.mean(dim=axis, keepdim=True)
    v = x.var(dim=axis, keepdim=True, unbiased=False)
    return (x - m) / torch.sqrt(v + eps)
def _scatter_add(tgt, idx, src, axis=0):
    return tgt.clone().index_add_(axis, idx, src)
def _segment_sum(src, seg, n):
    out = torch.zeros((n,) + src.shape[1:], dtype=src.dtype)
    return out.index_add_(0, seg, src)
def _pad(x, pw):
    flat = tuple(v for pair in reversed(pw) for v in pair)
    return torch.nn.functional.pad(x, flat)

kernel_name = 'recurrent_scan__spectral_gfnet__glu_gated_geglu__prompt'

def setup_inputs():

    _w = (lambda a: (lambda t: t.to(torch.bfloat16) if t.is_floating_point() else t)(torch.as_tensor(a)))
    def _A_setup():
        B, S, D = 1, 2048, 640
        Df = D // 2 + 1
        return {
            "x": _w((lambda *s: torch.randn(*s, dtype=torch.bfloat16) * 0.1)(B, S, D)),
            "w_r": _w((lambda *s: torch.randn(*s, dtype=torch.bfloat16) * 3.2)(S, Df) * 0.02),
            "w_i": _w((lambda *s: torch.randn(*s, dtype=torch.bfloat16) * 3.2)(S, Df) * 0.02),
        }
    _A_in = _A_setup()

    def _B_setup():
        B, S, Dm, Df = 1, 2048, 640, 1536
        return {
            "x": _w((lambda *s: torch.randn(*s, dtype=torch.bfloat16) * 0.1)(B, S, Dm)),
            "w_gate": _w((lambda *s: torch.randn(*s, dtype=torch.bfloat16) * 0.8)(Dm, Df) * (Dm ** -0.5)),
            "w_up": _w((lambda *s: torch.randn(*s, dtype=torch.bfloat16) * 0.8)(Dm, Df) * (Dm ** -0.5)),
            "w_down": _w((lambda *s: torch.randn(*s, dtype=torch.bfloat16) * 0.8)(Df, Dm) * (Df ** -0.5)),
        }
    _B_in = _B_setup()

    return {
        "A_x": _A_in["x"],
        "A_w_r": _A_in["w_r"],
        "A_w_i": _A_in["w_i"],
        "B_x": _B_in["x"],
        "B_w_gate": _B_in["w_gate"],
        "B_w_up": _B_in["w_up"],
        "B_w_down": _B_in["w_down"],
    }

def reference(A_x, A_w_r, A_w_i, B_x, B_w_gate, B_w_up, B_w_down):
    def _A_ref(x, w_r, w_i):
        B, S, D = x.shape
        X = (lambda x, axes=(-2,-1): torch.fft.rfft2(x.float(), dim=axes))(x, axes=(-2, -1))
        W = w_r + 1j * w_i
        X = X * W
        y = (lambda x, s, axes=(-2,-1): torch.fft.irfft2(x, s=s, dim=axes).to(torch.bfloat16))(X, (S, D), axes=(-2, -1))
        return y

    def _B_ref(x, w_gate, w_up, w_down):
        g = torch.einsum("bsd,df->bsf", x, w_gate)
        u = torch.einsum("bsd,df->bsf", x, w_up)
        h = _gelu(g) * u
        return torch.einsum("bsf,fd->bsd", h, w_down)

    x = A_x
    xn = _layernorm(x, axis=-1)
    s = _A_ref(xn, A_w_r, A_w_i)
    g = _silu(_B_ref(xn, B_w_gate, B_w_up, B_w_down))
    return x + s * g
```

```python
import re

def v(a, n=1):
    return f"v{a}" if n == 1 else f"v[{a}:{a+n-1}]"
def s(a, n=1):
    return f"s{a}" if n == 1 else f"s[{a}:{a+n-1}]"

TRANS = ("v_exp_f32", "v_log_f32", "v_rcp_f32", "v_rsq_f32", "v_sqrt_f32", "v_sin_f32", "v_cos_f32")
_reg = re.compile(r"^-?\|?(?:abs\()?([vsa])(?:(\d+)|\[(\d+):(\d+)\])\)?\|?$")

def regs(op):
    op = op.strip()
    if op in ("vcc",): return {("s", "vcc")}
    if op in ("exec", "exec_lo", "exec_hi"): return {("s", "exec")}
    if op in ("vcc_lo", "vcc_hi"): return {("s", "vcc")}
    if op == "m0": return {("s", "m0")}
    m = _reg.match(op)
    if not m: return set()
    k = m.group(1)
    if m.group(2) is not None: return {(k, int(m.group(2)))}
    return {(k, i) for i in range(int(m.group(3)), int(m.group(4)) + 1)}

class Ins:
    __slots__ = ("op", "args", "mods", "kind", "w", "r", "A", "B", "C", "D", "passes", "text", "label", "target", "states", "dpp", "storedata")
    def __init__(self, op, args=(), mods="", label=None, raw=None):
        self.op, self.args, self.mods, self.label = op, list(args), mods, label
        self.target = None; self.states = 1; self.dpp = False; self.storedata = set()
        self.w = set(); self.r = set(); self.A = self.B = self.C = self.D = set(); self.passes = 0
        if label is not None:
            self.kind = "label"; self.text = f"{label}:"; self.states = 0; return
        if raw is not None:
            self.kind = "raw"; self.text = raw; self.states = 0; return
        self.text = "  " + op + (" " + ", ".join(self.args) if self.args else "") + (" " + mods if mods else "")
        a = [regs(x) for x in self.args]
        U = lambda l: set().union(*l) if l else set()
        if op.startswith("v_mfma"):
            self.kind = "mfma"; self.D, self.A, self.B, self.C = a[0], a[1], a[2], a[3]
            self.w = a[0]; self.r = a[1] | a[2] | a[3]
            self.passes = 8 if "32x32" in op else 4
        elif op.startswith("v_"):
            self.kind = "valu"
            self.dpp = "_dpp" in op or "row_" in mods or "quad_perm" in mods
            if op.startswith(("v_add_co", "v_sub_co", "v_addc_co", "v_subb_co")):
                self.w = a[0] | a[1]; self.r = U(a[2:])
            elif op.startswith(("v_permlane", "v_swap")):
                self.w = a[0] | a[1]; self.r = a[0] | a[1]
            else:
                self.w = a[0]; self.r = U(a[1:])
                if op.startswith(("v_fmac", "v_dot2c", "v_pk_fmac", "v_writelane")) or self.dpp: self.r |= a[0]
            if op.startswith("v_cmpx"): self.w |= {("s", "exec")}
        elif op.startswith(("buffer_load", "global_load")):
            self.kind = "vmem"
            if "lds" in mods.split() or "_lds_" in op:
                self.r = U(a) | {("s", "m0")}; self.kind = "dma"
            else:
                self.w = a[0]; self.r = U(a[1:])
        elif op.startswith(("buffer_store", "global_store", "buffer_atomic", "global_atomic")):
            self.kind = "vmem"; self.r = U(a)
            if op.endswith(("x3", "x4")):
                self.storedata = a[0] if op.startswith("buffer") else a[1]
        elif op.startswith("buffer_inv") or op.startswith("buffer_wbl2"):
            self.kind = "vmem"
        elif op.startswith("ds_"):
            self.kind = "ds"
            if op.startswith(("ds_read", "ds_bpermute", "ds_permute", "ds_swizzle")) or "_rtn" in op:
                self.w = a[0]; self.r = U(a[1:])
            else:
                self.r = U(a)
        elif op == "s_nop":
            self.kind = "nop"; self.states = int(self.args[0]) + 1
        elif op.startswith(("s_branch", "s_cbranch")):
            self.kind = "branch"; self.target = self.args[0]
        elif op == "s_endpgm":
            self.kind = "end"
        elif op.startswith("s_"):
            self.kind = "salu"
            if op.startswith(("s_cmp", "s_bitcmp", "s_waitcnt", "s_barrier", "s_sleep", "s_setprio")):
                self.r = U(a)
            else:
                self.w = a[0] if a else set(); self.r = U(a[1:])
                if "saveexec" in op: self.w = self.w | {("s", "exec")}
        else:
            raise ValueError("unknown op " + op)

def isv(S): return {x for x in S if x[0] == "v"}
def iss(S): return {x for x in S if x[0] == "s"}

def need(p, c):
    n = 0
    if p.kind == "valu":
        pv, ps = isv(p.w), iss(p.w)
        if c.kind == "mfma" and pv & c.r: n = max(n, 2)
        if c.kind == "mfma" and ("s", "exec") in ps: n = max(n, 4)
        if c.kind == "valu":
            if c.dpp and pv & c.r: n = max(n, 2)
            if c.dpp and ("s", "exec") in ps: n = max(n, 5)
            if ps & c.r: n = max(n, 4 if c.op.startswith(("v_readlane", "v_writelane")) else 2)
            if c.op.startswith(("v_readlane", "v_readfirstlane")) and pv & c.r: n = max(n, 1)
            if c.op.startswith(("v_readlane", "v_readfirstlane", "v_writelane", "v_permlane")) and ("s", "exec") in ps: n = max(n, 4)
            if c.op.startswith("v_permlane") and pv & c.r: n = max(n, 2)
            if p.op.startswith(TRANS) and pv & c.r: n = max(n, 1)
        if c.kind in ("vmem", "dma") and ps & c.r: n = max(n, 5)
        if c.kind == "salu" and ps & c.r: n = max(n, 1)
    if p.kind == "salu" and ("s", "m0") in p.w and c.kind == "dma": n = max(n, 1)
    if p.storedata and (p.storedata & c.w): n = max(n, 2)
    if p.kind == "mfma":
        big = 12 if p.passes == 8 else 8
        if c.kind == "mfma":
            if p.D & (c.A | c.B): n = max(n, big)
            if p.D & c.C and not (p.D == c.C and p.passes == c.passes): n = max(n, big - 2)
            if p.D & c.D and not (p.D == c.C and p.passes == c.passes): n = max(n, big - 2)
        elif c.kind in ("valu", "vmem", "dma", "ds"):
            if p.D & (c.r | c.w): n = max(n, big)
            if c.kind == "valu" and p.C & c.w: n = max(n, 7 if p.passes == 8 else 3)
            if c.kind in ("vmem", "ds") and p.C & c.w: n = max(n, 7 if p.passes == 8 else 3)
    return n

class Asm:
    def __init__(self):
        self.ins = []
        self.vm = []; self.lg = []
    def I(self, op, *args, mods="", tag=None):
        i = Ins(op, [str(x) for x in args], mods)
        self.ins.append(i)
        if i.kind in ("vmem", "dma"): self.vm.append(tag)
        if i.kind == "ds": self.lg.append(tag)
        return i
    def label(self, name): self.ins.append(Ins(None, label=name))
    def raw(self, text): self.ins.append(Ins(None, raw=text))
    def c(self, text): self.raw("  ; " + text)
    def _cnt(self, q, tags):
        if not isinstance(tags, (list, tuple, set)): tags = [tags]
        idx = [i for i, t in enumerate(q) if t in tags]
        if not idx: return None
        n = len(q) - 1 - max(idx)
        del q[:max(idx) + 1]
        return n
    def wait_vm(self, tags):
        n = self._cnt(self.vm, tags)
        if n is not None:
            assert n <= 63, n
            self.I("s_waitcnt", f"vmcnt({n})")
    def wait_lg(self, tags):
        n = self._cnt(self.lg, tags)
        if n is not None:
            self.I("s_waitcnt", f"lgkmcnt({min(n,15)})")
    def wait_vm0(self): self.vm = []; self.I("s_waitcnt", "vmcnt(0)")
    def wait_lg0(self): self.lg = []; self.I("s_waitcnt", "lgkmcnt(0)")
    def reset(self): self.vm = []; self.lg = []

    def pad_hazards(self):
        ins = self.ins
        labels = {x.label: i for i, x in enumerate(ins) if x.kind == "label"}
        pe = {}
        for i, x in enumerate(ins):
            if x.kind == "branch": pe.setdefault(labels[x.target], []).append(i)
        extra = [0] * len(ins)
        def preds(j):
            ps = []
            if j > 0 and not (ins[j-1].kind == "end" or (ins[j-1].kind == "branch" and ins[j-1].op == "s_branch")): ps.append(j-1)
            if ins[j].kind == "label": ps += pe.get(j, [])
            return ps
        for i, c in enumerate(ins):
            if c.kind not in ("valu", "mfma", "vmem", "dma", "ds", "salu"): continue
            worst = 0
            stack = [(k, 0) for k in preds(i)]; seen = {}
            while stack:
                k, d = stack.pop()
                if seen.get(k, 99) <= d: continue
                seen[k] = d
                p = ins[k]
                if p.kind in ("valu", "mfma", "salu", "vmem"):
                    worst = max(worst, need(p, c) - d)
                nd = d + p.states + extra[k]
                if nd < 12:
                    for q in preds(k): stack.append((q, nd))
            extra[i] = max(0, worst)
        out = []
        for i, c in enumerate(ins):
            if extra[i]: out.append(Ins("s_nop", [str(extra[i] - 1)]))
            out.append(c)
        self.ins = out
        return sum(extra)
    def text(self): return "\n".join(x.text for x in self.ins) + "\n"
```

```python
import numpy as np
S, D, F = 2048, 640, 1536
def bf16_round(x):
    x = np.ascontiguousarray(x, dtype=np.float32)
    u = x.view(np.uint32).astype(np.uint64)
    u = (u + 0x7FFF + ((u >> 16) & 1)) >> 16
    return u.astype(np.uint16)
def bf16_to_f32(u):
    return (np.asarray(u).astype(np.uint32) << 16).view(np.float32)
def rb(x): return bf16_to_f32(bf16_round(x))

YP = 11264
WS_E   = 0
WS_FA  = 4096
WS_FZ  = 16384
WS_FH  = 24576
WS_ST  = 65536
WS_Y   = 1 << 17
WS_WP  = WS_Y + 256 * YP
WS_Z   = WS_WP + 256 * YP
WS_H   = WS_Z + 161 * 16384
WS_WD  = WS_H + 128 * 48 * 1024
WS_PROF = WS_WD + 1536 * 640 * 2
WS_END = WS_PROF + 256 * 8 * 256
SC = 2.0 / (S * D)

def stats(x):
    x64 = x.astype(np.float64)
    m = rb(x64.mean(1)); var = rb(x64.var(1))
    sd = rb(np.sqrt(rb(var + np.float32(1e-5))))
    return m, sd

def expected(x, wr, wi, wg, wu, wd):
    m, sd = stats(x)
    r = 1.0 / sd.astype(np.float64)
    xn = (x.astype(np.float64) - m[:, None]) * r[:, None]
    Y = np.fft.rfft(xn, axis=1) * SC
    Y[:, 0] *= 0.5; Y[:, 320] *= 0.5
    W = wr.astype(np.float64) + 1j * wi
    Z = np.fft.ifft(np.fft.fft(Y, axis=0) * W, axis=0) * S
    g = xn @ wg; u = xn @ wu
    h = 0.5 * g * (1 + np.tanh(0.7978845608028654 * (g + 0.044715 * g ** 3))) * u
    k = np.arange(320)[:, None]; d = np.arange(640)[None, :]
    th = 2 * np.pi * k * d / 640
    sp = Z[:, :320].real @ np.cos(th) - Z[:, :320].imag @ np.sin(th) + Z[:, 320].real[:, None] * ((-1.0) ** np.arange(640))[None, :]
    o = rb(h).astype(np.float64) @ wd
    gg = o / (1 + np.exp(-o))
    out = x + sp * gg
    return dict(m=m, sd=sd, Y=Y, Z=Z, h=h, s=sp, o=o, out=out)

def y_rows(y):
    b = y & 31; g = (y >> 5) & 3; j = y >> 7
    e = np.arange(8)
    return 32 * (32 * j + 16 * (e >> 2) + 4 * g + (e & 3)) + b

def decode_Y(ws):
    Y = np.zeros((S, 321), np.complex128)
    for y in range(256):
        a = bf16_to_f32(ws[WS_Y + y * YP: WS_Y + y * YP + 321 * 32].view(np.uint16)).reshape(321, 2, 8)
        Y[y_rows(y), :] = (a[:, 0, :] + 1j * a[:, 1, :]).T
    return Y
def decode_Wp(ws):
    wr = np.zeros((S, 321), np.float32); wi = np.zeros((S, 321), np.float32)
    for w in range(256):
        c = w & 63; Q = w >> 6
        a = bf16_to_f32(ws[WS_WP + w * YP: WS_WP + w * YP + 321 * 32].view(np.uint16)).reshape(321, 2, 2, 4).transpose(0, 1, 3, 2).reshape(321, 8, 2)
        rows = c + 64 * (8 * Q + np.arange(8))
        wr[rows, :] = a[:, :, 0].T; wi[rows, :] = a[:, :, 1].T
    return wr, wi
def decode_h(ws):
    a = bf16_to_f32(ws[WS_H: WS_H + 128 * 48 * 1024].view(np.uint16)).reshape(128, 48, 4, 16, 8)
    h = np.zeros((S, F), np.float32)
    e = np.arange(8)
    for st in range(48):
        for g in range(4):
            f = 96 * (st & 15) + 48 * (g >> 1) + 16 * (st >> 4) + 8 * (e >> 2) + 4 * (g & 1) + (e & 3)
            h[:, f] = a[:, st, g].reshape(S, 8)
    return h
def decode_Z(ws):
    a = bf16_to_f32(ws[WS_Z: WS_Z + 161 * 16384].view(np.uint16)).reshape(161, S, 2, 2)
    Z = (a[..., 0] + 1j * a[..., 1]).transpose(1, 0, 2).reshape(S, 322)
    return Z[:, :321]
def decode_stats(ws):
    a = ws[WS_ST: WS_ST + 2048 * 8].view(np.uint32).reshape(2048, 2)
    return bf16_to_f32(a[:, 0] & 0xffff), bf16_to_f32(a[:, 0] >> 16), a[:, 1]
```

```python
import struct, sys
from asmlib import *
from model import *

NAME = "recurrent_scan__spectral_gfnet__glu_gated_geglu__prompt_kernel"
def fl(x): return "0x%08x" % struct.unpack("<I", struct.pack("<f", x))[0]

SLOT1 = 41024; W1OFF = 16384; UPOFF = 12288 + 32
L_XR = 123072
L_YS = 135360
L_YI = 123072
L_EX = 139456
L_CS = 155840
L_CNT = 158912
LDS_BYTES = 159232
SLOT2 = 20480; NSLOT2 = 6
BIG = 0x7fff0000

sWG, sWV = 2, 3
X, WS, W1, WR, WI, WD, OUT = 24, 28, 32, 36, 40, 44, 48
sXCD, sI, sMT, sFS, sCH, sTQ, sNG, sP, sNONCE, sWL = 52, 53, 54, 55, 56, 57, 58, 59, 60, 61
sT0, sT1, sT2, sT3, sT4, sT5, sT6, sT7 = 62, 63, 64, 65, 66, 67, 68, 69
sPOK, sSG, sTAU, sLIM = 70, 71, 72, 73
sA0, sA1, sA2, sA3 = 74, 75, 76, 77
sROLE = 78
sPROF = 80
srd = lambda r: s(r, 4)

F64C, F64S, F32C, F32S, TW1, TW2 = 208, 216, 224, 232, 240, 248
vWP = 36
vE = 1

class G:
    def __init__(self, prof=False, stop=99, wpos=-1):
        self.a = Asm(); self.prof = prof; self.stop = stop; self.wpos = wpos; self.nlab = 0
    def lab(self, p): self.nlab += 1; return f"L_{p}{self.nlab}"
    def stamp(self, k):
        if not self.prof: return
        a = self.a
        a.I("s_memrealtime", s(98, 2)); a.wait_lg0(); a.I("s_mov_b32", s(sPROF + k), s(98))

    def trig(self, delta, base, koffs, tmp):
        a = self.a; n = len(koffs); T = []
        for e, k in enumerate(koffs):
            if k == 0: T.append(base)
            else:
                a.I("v_fmamk_f32", v(tmp + e), v(delta), fl(float(k)), v(base)); T.append(tmp + e)
        for e in range(n): a.I("v_cos_f32", v(tmp + n + e), v(T[e]))
        for e in range(n): a.I("v_sin_f32", v(tmp + 2 * n + e), v(T[e]))
        return tmp + n, tmp + 2 * n
    def pack_bf(self, dst, src, n, neg=False):
        sg = "-" if neg else ""
        for p in range(n // 2): self.a.I("v_cvt_pk_bf16_f32", v(dst + p), sg + v(src + 2 * p), sg + v(src + 2 * p + 1))
    def cmul_tw(self, dr, di, r, i, tw, inverse):
        a = self.a
        a.I("v_fma_mix_f32", v(dr), v(r), v(tw), "0", mods="op_sel_hi:[0,1,0]")
        a.I("v_fma_mix_f32", v(di), v(i), v(tw), "0", mods="op_sel_hi:[0,1,0]")
        a.I("v_fma_mix_f32", v(dr), ("-" if inverse else "") + v(i), v(tw), v(dr), mods="op_sel:[0,1,0] op_sel_hi:[0,1,0]")
        a.I("v_fma_mix_f32", v(di), ("" if inverse else "-") + v(r), v(tw), v(di), mods="op_sel:[0,1,0] op_sel_hi:[0,1,0]")
    def mod(self, dst, src, m, tmp):
        a = self.a
        a.I("s_mul_i32", s(tmp), s(src), (65536 + m - 1) // m); a.I("s_lshr_b32", s(tmp), s(tmp), 16)
        a.I("s_mul_i32", s(tmp), s(tmp), m); a.I("s_sub_u32", s(dst), s(src), s(tmp))
    def inc_mod(self, r, m):
        a = self.a
        a.I("s_add_u32", s(r), s(r), 1); a.I("s_cmp_eq_u32", s(r), m); a.I("s_cselect_b32", s(r), 0, s(r))
    def spin(self, loads, regs_, first_issued=False):
        a = self.a; L = self.lab("poll"); Dn = self.lab("pdone"); C = self.lab("pchk")
        a.I("s_mov_b32", s(sLIM), 20000)
        if first_issued: a.I("s_branch", C)
        a.label(L)
        for ld in loads: ld()
        a.label(C)
        a.wait_vm0()
        a.I("v_cmp_eq_u32", "vcc", s(sNONCE), v(regs_[0]))
        for r in regs_[1:]:
            a.I("v_cmp_eq_u32", s(sA0, 2), s(sNONCE), v(r)); a.I("s_and_b64", "vcc", "vcc", s(sA0, 2))
        a.I("s_cmp_eq_u64", "vcc", "exec"); a.I("s_cbranch_scc1", Dn)
        a.I("s_sub_u32", s(sLIM), s(sLIM), 1); a.I("s_cmp_eq_u32", s(sLIM), 0); a.I("s_cbranch_scc1", Dn)
        a.I("s_sleep", 1); a.I("s_branch", L)
        a.label(Dn)
    def flag_store(self, soff, tmpv):
        a = self.a
        a.I("v_mov_b32", v(tmpv), s(sNONCE)); a.I("v_mov_b32", v(tmpv + 1), 0)
        a.I("s_mov_b64", "exec", 1)
        a.I("buffer_store_dword", v(tmpv), v(tmpv + 1), srd(WS), soff, mods="offen sc1", tag="flag")
        a.I("s_mov_b64", "exec", -1)

    def prologue(self):
        a = self.a; I = a.I
        I("s_cmp_ge_u32", s(sWG), 256); I("s_cbranch_scc1", "L_end")
        I("s_load_dwordx16", s(4, 16), s(0, 2), 0); I("s_load_dwordx4", s(20, 4), s(0, 2), 64)
        if self.prof: I("s_memrealtime", s(98, 2))
        I("v_lshrrev_b32", v(1), 6, v(0)); I("v_and_b32", v(0), 63, v(0)); I("v_readfirstlane_b32", s(sWV), v(1))
        I("s_and_b32", s(sXCD), s(sWG), 7); I("s_lshr_b32", s(sI), s(sWG), 3)
        I("s_and_b32", s(sT0), s(sXCD), 1); I("s_lshl_b32", s(sT0), s(sT0), 3); I("s_and_b32", s(sT1), s(sI), 7); I("s_add_u32", s(sMT), s(sT0), s(sT1))
        I("s_lshr_b32", s(sT0), s(sXCD), 1); I("s_lshl_b32", s(sT0), s(sT0), 2); I("s_lshr_b32", s(sT1), s(sI), 3); I("s_add_u32", s(sFS), s(sT0), s(sT1))
        I("s_add_u32", s(sT0), s(sMT), s(sFS)); self.mod(sCH, sT0, 10, sT1)
        I("s_and_b32", s(sT0), s(sI), 3); I("s_lshl2_add_u32", s(sTQ), s(sXCD), s(sT0)); I("s_lshr_b32", s(sNG), s(sI), 2)
        I("s_mul_i32", s(sT0), s(sT0), 3); I("s_add_u32", s(sT0), s(sT0), s(sNG)); self.mod(sSG, sT0, 12, sT1)
        self.mod(sTAU, sNG, 5, sT1)
        self.mod(sT0, sI, 20, sT1); I("s_mul_i32", s(sP), s(sXCD), 20); I("s_add_u32", s(sP), s(sP), s(sT0))
        I("s_cmp_lt_u32", s(sI), 20); I("s_cselect_b32", s(sPOK), 0, BIG)
        I("s_cmp_eq_u32", s(sWG), 160); I("s_cselect_b32", s(sP), 160, s(sP)); I("s_cselect_b32", s(sPOK), 0, s(sPOK))
        I("s_and_b32", s(sWL), s(sWV), 3)
        a.wait_lg0()
        if self.prof:
            I("s_mov_b32", s(sPROF), s(98)); I("s_memtime", s(98, 2)); a.wait_lg0(); I("s_mov_b32", s(sPROF + 14), s(98))
        for r, p, n in ((X, 4, S * D * 2), (WS, 22, WS_END), (WR, 6, S * 642), (WI, 8, S * 642), (WD, 16, F * D * 2), (OUT, 18, S * D * 2)):
            I("s_mov_b32", s(r), s(p)); I("s_mov_b32", s(r + 1), s(p + 1)); I("s_mov_b32", s(r + 2), n); I("s_mov_b32", s(r + 3), "0x20000")
        I("s_bitcmp1_b32", s(sWV), 0)
        I("s_cselect_b32", s(W1), s(14), s(12)); I("s_cselect_b32", s(W1 + 1), s(15), s(13)); I("s_mov_b32", s(W1 + 2), D * F * 2); I("s_mov_b32", s(W1 + 3), "0x20000")
        I("v_mov_b32", v(2), 0)
        I("buffer_load_dword", v(vE), v(2), srd(WS), 0, mods="offen sc1", tag="E")
        I("s_cmp_ge_u32", s(sWV), 4); I("s_cselect_b32", s(sROLE), 1, 0)
        I("s_cmp_eq_u32", s(sROLE), 1); I("s_cbranch_scc1", "L_ld0")
        I("s_lshr_b32", s(sT0), s(sWG), 7); I("s_lshl_b32", s(sT0), s(sT0), 5)
        I("s_lshr_b32", s(sT1), s(sWV), 1); I("s_lshl4_add_u32", s(sT0), s(sT1), s(sT0))
        I("s_bfe_u32", s(sT1), s(sWG), 5 | (2 << 16)); I("s_lshl2_add_u32", s(sT0), s(sT1), s(sT0))
        I("s_and_b32", s(sT1), s(sWV), 1); I("s_lshl1_add_u32", s(sT0), s(sT1), s(sT0))
        I("s_lshl_b32", s(sT0), s(sT0), 5); I("s_and_b32", s(sT1), s(sWG), 31); I("s_add_u32", s(sT6), s(sT0), s(sT1))
        I("s_mul_i32", s(sT0), s(sT6), 1280)
        I("s_mul_i32", s(sT7), s(sWV), 3072); I("s_add_u32", s(sT7), s(sT7), L_XR)
        I("s_mov_b32", "m0", s(sT7))
        I("v_lshlrev_b32", v(2), 4, v(0))
        I("v_add_u32", v(3), 39680, v(2)); I("v_cmp_gt_u32", "vcc", 16, v(0)); I("v_cndmask_b32", v(4), v(3), v(2), "vcc")
        I("v_mov_b32", v(5), BIG); I("v_cmp_gt_u32", "vcc", 32, v(0)); I("v_cndmask_b32", v(5), v(5), v(3), "vcc")
        I("buffer_load_dwordx4", v(2), srd(X), s(sT0), mods="offen lds", tag="xr")
        I("buffer_load_dwordx4", v(4), srd(X), s(sT0), mods="offen offset:1024 lds", tag="xr")
        I("buffer_load_dwordx4", v(5), srd(X), s(sT0), mods="offen offset:2048 lds", tag="xr")
        I("s_branch", "L_consts")
        a.label("L_ld0"); self.cvm = a.vm; a.vm = ["E"]
        self.ld_start()
        self.lvm = a.vm
        a.label("L_consts")
        self.consts()
        I("s_cmp_eq_u32", s(sROLE), 1); I("s_cbranch_scc1", "L_ld1")

    def consts(self):
        a = self.a; I = a.I
        I("v_and_b32", v(60), 15, v(0)); I("v_lshrrev_b32", v(61), 4, v(0))
        I("v_cvt_f32_u32", v(62), v(60)); I("v_lshlrev_b32", v(61), 2, v(61)); I("v_cvt_f32_u32", v(63), v(61))
        I("s_lshl_b32", s(sT0), s(sWL), 4); I("v_cvt_f32_u32", v(64), s(sT0))
        I("v_add_f32", v(65), v(62), v(64))
        I("v_mul_f32", v(66), fl(1 / 64), v(65)); I("v_mul_f32", v(67), v(63), v(66))
        for j in range(2):
            c, sn = self.trig(66, 67, [32 * j + 16 * (e >> 2) + (e & 3) for e in range(8)], 70)
            self.pack_bf(F64C + 4 * j, c, 8); self.pack_bf(F64S + 4 * j, sn, 8)
        I("v_mul_f32", v(66), fl(1 / 2048), v(65)); I("v_mul_f32", v(67), v(63), v(66))
        c, sn = self.trig(66, 67, [16 * (e >> 2) + (e & 3) for e in range(8)], 70)
        for e in range(8): I("v_cvt_pk_f16_f32", v(TW1 + e), v(c + e), v(sn + e))
        I("v_add_f32", v(64), v(64), v(63))
        for md in range(2):
            if md: I("v_add_f32", v(62), fl(16.0), v(62))
            I("v_mul_f32", v(66), fl(1 / 32), v(62)); I("v_mul_f32", v(67), v(63), v(66))
            c, sn = self.trig(66, 67, [16 * (e >> 2) + (e & 3) for e in range(8)], 70)
            self.pack_bf(F32C + 4 * md, c, 8); self.pack_bf(F32S + 4 * md, sn, 8)
            I("v_mul_f32", v(66), fl(1 / 2048), v(62)); I("v_mul_f32", v(67), v(64), v(66))
            c, sn = self.trig(66, 67, [0, 1, 2, 3], 70)
            for e in range(4): I("v_cvt_pk_f16_f32", v(TW2 + 4 * md + e), v(c + e), v(sn + e))

    def nonce(self):
        a = self.a; I = a.I
        a.wait_vm("E")
        I("v_readfirstlane_b32", s(sNONCE), v(vE))
        I("s_mul_i32", s(sNONCE), s(sNONCE), "0x9e3779b1"); I("s_add_u32", s(sNONCE), s(sNONCE), "0x7f4a7c15")

    def row_fft(self):
        a = self.a; I = a.I; a.vm = self.cvm
        FC, FS, TW, G0, G1, G2 = 8, 16, 24, 36, 40, 44
        I("v_and_b32", v(60), 31, v(0)); I("v_lshrrev_b32", v(61), 5, v(0))
        I("v_cvt_f32_u32", v(62), v(60)); I("v_cvt_f32_u32", v(63), v(61))
        I("v_mul_f32", v(66), fl(1 / 32), v(62)); I("v_mul_f32", v(67), fl(8.0), v(63)); I("v_mul_f32", v(67), v(67), v(66))
        for jj in range(2):
            c, sn = self.trig(66, 67, [16 * jj + e for e in range(8)], 70)
            self.pack_bf(FC + 4 * jj, c, 8); self.pack_bf(FS + 4 * jj, sn, 8, neg=True)
        I("v_mul_f32", v(63), 4.0, v(63))
        I("v_mul_f32", v(66), fl(1 / 640), v(62)); I("v_mul_f32", v(67), v(63), v(66))
        c, sn = self.trig(66, 67, [8 * (e >> 2) + (e & 3) for e in range(12)], 70)
        for e in range(12): I("v_cvt_pk_f16_f32", v(TW + e), v(c + e), v(sn + e))
        I("v_cmp_gt_u32", "vcc", 32, v(0))
        for e in range(8, 12): I("v_cndmask_b32", v(TW + e), 0, v(TW + e), "vcc")
        I("v_lshrrev_b32", v(64), 1, v(60)); I("v_cvt_f32_u32", v(64), v(64)); I("v_and_b32", v(65), 1, v(60)); I("v_cvt_f32_u32", v(65), v(65))
        I("v_mul_f32", v(66), fl(1 / 20), v(64)); I("v_mul_f32", v(67), v(63), v(66)); I("v_fmac_f32", v(67), fl(0.25), v(65))
        c, sn = self.trig(66, 67, [8 * (e >> 2) + (e & 3) for e in range(12)], 70)
        self.pack_bf(G0, c, 8); self.pack_bf(G1, sn, 8); self.pack_bf(G2, c + 8, 4); self.pack_bf(G2 + 2, sn + 8, 4)
        aT, aS, aY, fA, fB, e0 = 48, 49, 50, 51, 52, 53
        I("v_and_b32", v(64), 15, v(0)); I("v_lshrrev_b32", v(65), 2, v(64)); I("v_lshl_add_u32", v(65), v(61), 3, v(65))
        I("v_mul_u32_u24", v(65), 40, v(65)); I("v_and_b32", v(64), 3, v(64)); I("v_lshl_add_u32", v(65), v(64), 3, v(65))
        I("v_and_b32", v(64), 16, v(0)); I("v_lshl_add_u32", v(65), v(64), 1, v(65)); I("v_add_u32", v(aT), s(sT7), v(65))
        I("v_mul_u32_u24", v(64), 1280, v(61)); I("v_mad_u32_u24", v(64), v(60), 40, v(64)); I("v_add_u32", v(aS), s(sT7), v(64))
        I("s_lshl_b32", s(sT0), s(sWV), 2); I("s_add_u32", s(sT0), s(sT0), L_YS)
        I("v_lshlrev_b32", v(64), 5, v(60)); I("v_lshl_add_u32", v(64), v(61), 11, v(64)); I("v_add_u32", v(aY), s(sT0), v(64))
        I("v_cmp_eq_u32", "vcc", 0, v(0)); I("v_cndmask_b32", v(fA), 1.0, 0.5, "vcc"); I("v_cndmask_b32", v(e0), 0, 1.0, "vcc")
        I("v_cmp_eq_u32", "vcc", 32, v(0)); I("v_cndmask_b32", v(fB), 1.0, 0.5, "vcc")
        I("v_lshl_add_u32", v(54), v(61), 5, s(sT6)); I("v_lshlrev_b32", v(54), 3, v(54))
        self.nonce()
        a.wait_vm("xr")
        self.stamp(1)
        SD, AF = 60, 72
        for u in range(5): I("ds_read_b64", v(SD + 2 * u, 2), v(aS), mods=f"offset:{8*u}", tag="sd")
        for r in range(2):
            for jj in range(2):
                for rd in range(2):
                    I("ds_read_b64_tr_b16", v(AF + 8 * r + 4 * jj + 2 * rd, 2), v(aT), mods=f"offset:{1280*r+640*jj+160*rd}", tag=f"af{r}")
        A1 = 112
        def st1(r):
            for ri, Fm in ((0, FC), (1, FS)):
                d = v(A1 + 32 * r + 16 * ri, 16)
                I("v_mfma_f32_32x32x16_bf16", d, v(AF + 8 * r, 4), v(Fm, 4), 0)
                I("v_mfma_f32_32x32x16_bf16", d, v(AF + 8 * r + 4, 4), v(Fm + 4, 4), d)
        a.wait_lg("af0"); st1(0); a.wait_lg("af1"); st1(1)
        s0, s1, q0, q1, t0, t1 = 88, 89, 90, 91, 92, 93
        for u in range(10):
            I("v_lshlrev_b32", v(t0), 16, v(SD + u)); I("v_and_b32", v(t1), "0xffff0000", v(SD + u))
            if u == 0:
                I("v_mov_b32", v(s0), v(t0)); I("v_mov_b32", v(s1), v(t1)); I("v_mul_f32", v(q0), v(t0), v(t0)); I("v_mul_f32", v(q1), v(t1), v(t1))
            else:
                I("v_add_f32", v(s0), v(s0), v(t0)); I("v_add_f32", v(s1), v(s1), v(t1)); I("v_fmac_f32", v(q0), v(t0), v(t0)); I("v_fmac_f32", v(q1), v(t1), v(t1))
        I("v_add_f32", v(s0), v(s0), v(s1)); I("v_add_f32", v(q0), v(q0), v(q1))
        for sh in (1, 2, 4, 8):
            for r_ in (s0, q0): I("v_add_f32_dpp", v(r_), v(r_), v(r_), mods=f"row_shr:{sh} row_mask:0xf bank_mask:0xf bound_ctrl:1")
        for r_ in (s0, q0): I("v_add_f32_dpp", v(r_), v(r_), v(r_), mods="row_bcast:15 row_mask:0xa bank_mask:0xf")
        I("v_mul_f32", v(s0), fl(1 / 640), v(s0)); I("v_mul_f32", v(q0), fl(1 / 640), v(q0))
        I("v_fma_f32", v(q0), "-" + v(s0), v(s0), v(q0)); I("v_max_f32", v(q0), 0, v(q0))
        I("v_cvt_pk_bf16_f32", v(t0), v(s0), v(q0))
        I("v_and_b32", v(t1), "0xffff0000", v(t0)); I("v_add_f32", v(t1), fl(1e-5), v(t1))
        I("v_cvt_pk_bf16_f32", v(t1), v(t1), v(t1)); I("v_and_b32", v(t1), "0xffff0000", v(t1))
        I("v_sqrt_f32", v(t1), v(t1)); I("v_cvt_pk_bf16_f32", v(t1), v(t1), v(t1)); I("v_and_b32", v(t1), "0xffff0000", v(t1))
        I("v_rcp_f32", v(q1), v(t1)); I("v_and_b32", v(94), "0xffff", v(t0)); I("v_or_b32", v(94), v(94), v(t1)); I("v_mov_b32", v(95), s(sNONCE))
        I("v_mul_f32", v(q1), fl(SC), v(q1)); I("v_lshlrev_b32", v(s1), 16, v(t0)); I("v_mul_f32", v(s1), fl(-640.0), v(s1))
        I("s_mov_b32", "exec_lo", "0x80000000"); I("s_mov_b32", "exec_hi", "0x80000000")
        I("buffer_store_dwordx2", v(94, 2), v(54), srd(WS), s(sA3), mods="offen sc1", tag="gr")
        I("s_mov_b64", "exec", -1)
        I("v_readlane_b32", s(sT0), v(q1), 31); I("v_readlane_b32", s(sT1), v(q1), 63)
        I("v_readlane_b32", s(sT2), v(s1), 31); I("v_readlane_b32", s(sT3), v(s1), 63)
        B2 = 60; A2 = 176; TR, TI = 88, 100
        for r in range(2):
            re, im = A1 + 32 * r, A1 + 32 * r + 16
            for e in range(12): self.cmul_tw(TR + e, TI + e, re + e, im + e, TW + e, False)
            b = B2 + 12 * r
            self.pack_bf(b, TR, 8); self.pack_bf(b + 4, TI, 8); self.pack_bf(b + 8, TR + 8, 4); self.pack_bf(b + 10, TI + 8, 4)
            d = v(A2 + 16 * r, 16)
            I("v_mfma_f32_32x32x16_bf16", d, v(G0, 4), v(b, 4), 0)
            I("v_mfma_f32_32x32x16_bf16", d, v(G1, 4), v(b + 4, 4), d)
            I("v_mfma_f32_32x32x16_bf16", d, v(G2, 4), v(b + 8, 4), d)
        for r in range(2):
            o = A2 + 16 * r
            I("v_fma_f32", v(o), v(e0), s(sT2 + r), v(o))
            I("v_mul_f32", v(o), v(o), v(fA)); I("v_mul_f32", v(o + 8), v(o + 8), v(fB))
            for e in range(12): I("v_mul_f32", v(o + e), s(sT0 + r), v(o + e))
        for e in range(12):
            I("v_cvt_pk_bf16_f32", v(88 + e), v(A2 + e), v(A2 + 16 + e))
        for e in range(12):
            I("ds_write_b32", v(aY), v(88 + e), mods=f"offset:{(e >> 2) * 4096 + ((e & 3) >> 1) * 1024 + (e & 1) * 16}", tag="ys")

    def gemm1(self):
        a = self.a; I = a.I
        XA, WE, WO, CSW, CSR, GA = 48, 52, 53, 54, 55, 42
        XB, WB = 20, 24
        SEL, CS, BUF, ACC, GR = 56, 60, (72, 92), 112, 44
        I("s_and_b32", s(sT4), s(sWV), 1); I("s_lshr_b32", s(sT5), s(sWV), 1)
        I("v_and_b32", v(2), 31, v(0)); I("v_lshrrev_b32", v(3), 5, v(0)); I("v_bfe_u32", v(4), v(0), 1, 3)
        I("s_lshl_b32", s(sT0), s(sT4), 13); I("s_lshl_b32", s(sT1), s(sT5), 12); I("s_add_u32", s(sT0), s(sT0), s(sT1))
        I("v_lshl_add_u32", v(5), v(2), 7, s(sT0))
        for sp in range(4):
            I("s_xor_b32", s(sT1), s(sT4), sp); I("s_lshl_b32", s(sT1), s(sT1), 1)
            I("v_add_u32", v(6), s(sT1), v(3)); I("v_xor_b32", v(6), v(6), v(4)); I("v_lshl_add_u32", v(XB + sp), v(6), 4, v(5))
        I("v_and_b32", v(6), 15, v(0)); I("v_lshrrev_b32", v(7), 2, v(6)); I("v_lshl_add_u32", v(7), v(3), 3, v(7)); I("v_mul_u32_u24", v(7), 192, v(7))
        I("v_and_b32", v(6), 3, v(6)); I("v_lshl_add_u32", v(7), v(6), 3, v(7))
        I("v_bfe_u32", v(6), v(0), 4, 1); I("v_mul_u32_u24", v(6), UPOFF, v(6)); I("v_add_u32", v(7), v(7), v(6))
        I("s_mul_i32", s(sT0), s(sT5), 96); I("s_add_u32", s(sT0), s(sT0), W1OFF); I("s_mul_i32", s(sT1), s(sT4), 3072)
        I("s_add_u32", s(sT2), s(sT0), s(sT1)); I("s_sub_u32", s(sT3), s(sT0), s(sT1))
        I("v_add_u32", v(WB), s(sT2), v(7)); I("v_add_u32", v(WB + 1), s(sT3), v(7))
        I("s_mul_i32", s(sT0), s(sWV), 768); I("s_add_u32", s(sT0), s(sT0), L_CS); I("v_lshl_add_u32", v(CSW), v(0), 2, s(sT0))
        I("s_xor_b32", s(sT0), s(sWV), 1); I("s_mul_i32", s(sT0), s(sT0), 768); I("s_add_u32", s(sT0), s(sT0), L_CS); I("v_lshl_add_u32", v(CSR), v(0), 2, s(sT0))
        I("s_lshl_b32", s(sT0), s(sMT), 7); I("s_lshl_b32", s(sT1), s(sT4), 6); I("s_add_u32", s(sT0), s(sT0), s(sT1))
        I("s_lshl_b32", s(sT1), s(sT5), 5); I("s_add_u32", s(sT2), s(sT0), s(sT1)); I("s_xor_b32", s(sT1), s(sT1), 32); I("s_add_u32", s(sT3), s(sT0), s(sT1))
        I("v_add_u32", v(GA), s(sT2), v(2)); I("v_lshlrev_b32", v(GA), 3, v(GA)); I("v_add_u32", v(GA + 1), s(sT3), v(2)); I("v_lshlrev_b32", v(GA + 1), 3, v(GA + 1))
        I("s_lshl_b32", s(sT0), s(sT5), 13); I("s_sub_u32", s(sA2), 4096, s(sT0))
        I("v_and_b32", v(6), 31, v(0)); I("v_cmp_eq_u32", "vcc", 0, v(6)); I("v_cmp_eq_u32", s(sT0, 2), 20, v(6)); I("s_or_b64", "vcc", "vcc", s(sT0, 2))
        I("v_mov_b32", v(6), "0x3f803f80")
        for k in range(4): I("v_cndmask_b32", v(SEL + k), 0, v(6), "vcc")
        a.wait_lg0()
        for k in range(CS, 208, 2): I("v_mov_b64", v(k, 2), 0)
        I("s_mov_b32", s(sT0), 0); I("s_mov_b32", s(sT1), 0)
        self.stamp(2)
        I("s_barrier")
        self.stamp(3)
        a.label("L_g1")
        XA2 = 26
        for k in range(4): I("v_add_u32", v(XA + k), s(sT1), v(XB + k))
        I("v_add_u32", v(WE), s(sT1), v(WB)); I("v_add_u32", v(WO), s(sT1), v(WB + 1))
        for k in range(4): I("v_add_u32", v(XA2 + k), s(sA2), v(XA + k))
        def reads(sp, b):
            R = [("ds_read_b128", v(b, 4), v(XA + sp), ""), ("ds_read_b128", v(b + 4, 4), v(XA2 + sp), "")]
            for ft in range(3):
                for rd in range(2):
                    R.append(("ds_read_b64_tr_b16", v(b + 8 + 4 * ft + 2 * rd, 2), v(WO if sp & 1 else WE), f"offset:{sp*3072 + rd*768 + ft*32}"))
            return R
        def group(b, R, cs=False, tail=()):
            k = 0
            for ft in range(3):
                for tt in range(2):
                    d = v(ACC + 32 * ft + 16 * tt, 16)
                    I("v_mfma_f32_32x32x16_bf16", d, v(b + 8 + 4 * ft, 4), v(b + 4 * tt, 4), d)
                    for _ in range(2):
                        if R: o = R.pop(0); I(o[0], o[1], o[2], mods=o[3])
                    if cs and tt == 0:
                        I("v_mfma_f32_16x16x32_bf16", v(CS + 4 * ft, 4), v(SEL, 4), v(b + 8 + 4 * ft, 4), v(CS + 4 * ft, 4))
        group(BUF[1], reads(0, BUF[0])); a.wait_lg0()
        group(BUF[0], reads(1, BUF[1]), cs=True); a.wait_lg0()
        group(BUF[1], reads(2, BUF[0])); a.wait_lg0()
        group(BUF[0], reads(3, BUF[1]), cs=True)
        I("s_add_u32", s(sT1), s(sT1), SLOT1); I("s_cmp_eq_u32", s(sT1), 3 * SLOT1); I("s_cselect_b32", s(sT1), 0, s(sT1))
        I("s_cmp_lg_u32", s(sT0), 6); I("s_cbranch_scc1", "L_g1n")
        for tt in range(2): I("buffer_load_dwordx2", v(GR + 2 * tt, 2), v(GA + tt), srd(WS), s(sA3), mods="offen sc1", tag="gl")
        a.label("L_g1n")
        for ft in range(3): I("ds_write_b32", v(CSW), v(CS + 4 * ft), mods=f"offset:{256*ft}")
        I("s_add_u32", s(sT0), s(sT0), 1); I("s_cmp_lt_u32", s(sT0), 10)
        a.wait_lg0()
        I("s_barrier")
        I("s_cbranch_scc1", "L_g1")
        self.stamp(4)
        for ft in range(3): I("ds_read_b32", v(20 + ft), v(CSR), mods=f"offset:{256*ft}", tag="cs")
        group(BUF[1], [])
        self.spin([lambda: I("buffer_load_dwordx2", v(GR, 2), v(GA), srd(WS), s(sA3), mods="offen sc1"),
                   lambda: I("buffer_load_dwordx2", v(GR + 2, 2), v(GA + 1), srd(WS), s(sA3), mods="offen sc1")], [GR + 1, GR + 3], first_issued=True)
        self.wp_loads()
        a.wait_lg0()
        AC, BC = 72, 84
        for ft in range(3):
            c = 20 + ft; d = AC + 4 * ft
            I("v_add_f32", v(c), v(c), v(CS + 4 * ft))
            I("v_cvt_pk_bf16_f32", v(24), v(c), v(c)); I("v_and_b32", v(25), "0xffff0000", v(24)); I("v_sub_f32", v(c), v(c), v(25))
            I("v_cvt_pk_bf16_f32", v(d), v(25), v(c)); I("v_and_b32", v(25), "0xffff0000", v(d)); I("v_sub_f32", v(c), v(c), v(25))
            I("v_cvt_pk_bf16_f32", v(d + 1), v(c), 0); I("v_mov_b64", v(d + 2, 2), 0)
        I("s_mov_b32", s(sT0), "0x01000100")
        for tt in range(2):
            d = BC + 4 * tt
            I("v_perm_b32", v(d), v(GR + 2 * tt), v(GR + 2 * tt), s(sT0)); I("v_xor_b32", v(d), "0x80008000", v(d))
            for k in range(1, 4): I("v_mov_b32", v(d + k), v(d))
        for ft in range(3):
            for tt in range(2):
                d = v(ACC + 32 * ft + 16 * tt, 16)
                I("v_mfma_f32_32x32x16_bf16", d, v(AC + 4 * ft, 4), v(BC + 4 * tt, 4), d)
        K0 = -2 * 0.7978845608028654 * 1.4426950408889634; K1 = K0 * 0.044715
        KC = 60
        for tt in range(2):
            k = KC + 6 * tt
            I("v_and_b32", v(24), "0xffff0000", v(GR + 2 * tt)); I("v_rcp_f32", v(25), v(24)); I("v_mul_f32", v(k + 4), v(24), v(24))
            I("v_mul_f32", v(k), fl(K0), v(25)); I("v_mul_f32", v(26), v(25), v(25)); I("v_mul_f32", v(26), v(26), v(25)); I("v_mul_f32", v(k + 2), fl(K1), v(26))
        HA = 28
        I("v_bfe_u32", v(2), v(0), 4, 1); I("v_mul_u32_u24", v(2), 49152, v(2)); I("v_lshrrev_b32", v(3), 5, v(0)); I("v_lshl_add_u32", v(2), v(3), 8, v(2))
        I("v_and_b32", v(3), 15, v(0)); I("v_lshl_add_u32", v(2), v(3), 4, v(2))
        I("s_mul_i32", s(sT0), s(sT5), 98304); I("v_add_u32", v(HA), s(sT0), v(2)); I("s_sub_u32", s(sT0), 98304, s(sT0)); I("v_add_u32", v(HA + 1), s(sT0), v(2))
        I("s_lshl_b32", s(sT0), s(sMT), 1); I("s_add_u32", s(sT0), s(sT0), s(sT4)); I("s_mul_i32", s(sT0), s(sT0), 4 * 49152); I("s_add_u32", s(sT0), s(sT0), WS_H)
        I("s_mul_i32", s(sT1), s(sFS), 6); I("s_mul_i32", s(sT2), s(sT5), 3); I("s_add_u32", s(sT1), s(sT1), s(sT2))
        n = 0
        T, Z_, E_, V_ = 92, 100, 2, 10
        for ft in range(3):
            I("s_add_u32", s(sT2), s(sT1), ft); I("s_lshl_b32", s(sT2), s(sT2), 9); I("s_add_u32", s(sT2), s(sT2), s(sT0))
            for tt in range(2):
                g = ACC + 32 * ft + 16 * tt; u = g + 8; k = KC + 6 * tt; H = 72 + 4 * (n & 1); n += 1
                for p in range(4): I("v_pk_mul_f32", v(T + 2 * p, 2), v(g + 2 * p, 2), v(g + 2 * p, 2))
                for p in range(4): I("v_pk_fma_f32", v(T + 2 * p, 2), v(T + 2 * p, 2), v(k + 2, 2), v(k, 2), mods="op_sel_hi:[1,0,0]")
                for p in range(4): I("v_pk_mul_f32", v(Z_ + 2 * p, 2), v(g + 2 * p, 2), v(T + 2 * p, 2))
                for p in range(8): I("v_exp_f32", v(E_ + p), v(Z_ + p))
                for p in range(4): I("v_pk_mul_f32", v(V_ + 2 * p, 2), v(g + 2 * p, 2), v(u + 2 * p, 2))
                for p in range(4): I("v_pk_fma_f32", v(T + 2 * p, 2), v(E_ + 2 * p, 2), v(k + 4, 2), v(k + 4, 2), mods="op_sel_hi:[1,0,0]")
                for p in range(8): I("v_rcp_f32", v(Z_ + p), v(T + p))
                for p in range(4): I("v_pk_mul_f32", v(V_ + 2 * p, 2), v(V_ + 2 * p, 2), v(Z_ + 2 * p, 2))
                self.pack_bf(H, V_, 8)
                I("buffer_store_dwordx4", v(H, 4), v(HA + tt), srd(WS), s(sT2), mods="offen sc1", tag="h")
        I("s_lshl_b32", s(sT0), s(sMT), 1); I("s_add_u32", s(sT0), s(sT0), s(sT4)); I("s_lshl_b32", s(sT0), s(sT0), 4); I("s_add_u32", s(sT0), s(sT0), s(sFS))
        I("s_lshl1_add_u32", s(sT0), s(sT0), s(sT5)); I("s_lshl_b32", s(sT0), s(sT0), 5); I("s_add_u32", s(sT7), s(sT0), WS_FH)
        self.stamp(5)

    def wp_loads(self):
        a = self.a; I = a.I
        I("v_lshrrev_b32", v(2), 5, v(0)); I("v_lshlrev_b32", v(2), 6, v(2)); I("v_and_b32", v(3), 15, v(0)); I("v_add_u32", v(2), v(2), v(3))
        I("s_lshl_b32", s(sA0), s(sWL), 4); I("v_add_u32", v(2), s(sA0), v(2)); I("v_mul_u32_u24", v(2), YP, v(2))
        I("v_and_b32", v(3), 16, v(0)); I("v_add_u32", v(2), v(2), v(3))
        I("s_lshr_b32", s(sA0), s(sWV), 2); I("s_lshl1_add_u32", s(sA0), s(sP), s(sA0)); I("s_lshl_b32", s(sA0), s(sA0), 5)
        I("s_add_u32", s(sA0), s(sA0), WS_WP); I("s_add_u32", s(sA1), s(sA0), 128 * YP)
        I("buffer_load_dwordx4", v(vWP, 4), v(2), srd(WS), s(sA0), mods="offen sc1", tag="wp")
        I("buffer_load_dwordx4", v(vWP + 4, 4), v(2), srd(WS), s(sA1), mods="offen sc1", tag="wp")

    XD, WDM, RD = 8, 12, 18
    def chunk_dma(self, j):
        a = self.a; I = a.I; slot = (j % 3) * SLOT1
        I("s_lshl_b32", s(sT0), s(sCH), 7); I("s_add_u32", s(sT0), s(sT0), s(sT4))
        I("s_add_u32", "m0", s(sT6), slot)
        I("s_mul_i32", s(sT1), s(sCH), 64 * 3072); I("s_add_u32", s(sT1), s(sT1), s(sT5))
        for r in range(4): I("buffer_load_dwordx4", v(self.XD + r), srd(X), s(sT0), mods=f"offen offset:{1024*r} lds", tag=f"c{j}")
        I("s_add_u32", "m0", s(sT7), slot)
        self.inc_mod(sCH, 10)
        for r in range(4): I("buffer_load_dwordx4", v(self.WDM + r), srd(W1), s(sT1), mods=f"offen offset:{1024*r} lds", tag=f"c{j}")
        I("s_add_u32", "m0", s(sT7), slot + 4096)
        for r in range(2): I("buffer_load_dwordx4", v(self.WDM + 4 + r), srd(W1), s(sT1), mods=f"offen offset:{1024*r} lds", tag=f"c{j}")
    WRR, WII = 100, 112
    def w_loads(self):
        a = self.a; I = a.I
        I("s_lshl_b32", s(sT0), s(sWL), 6); I("v_add_u32", v(30), s(sT0), v(0))
        I("v_and_b32", v(2), 1, v(30)); I("v_mul_u32_u24", v(2), 4 * 64 * 642, v(2)); I("v_and_b32", v(3), "0xfffe", v(30)); I("v_add_u32", v(2), v(2), v(3))
        I("s_and_b32", s(sT0), s(sWG), 63); I("s_lshr_b32", s(sT1), s(sWG), 6); I("s_lshl_b32", s(sT1), s(sT1), 9); I("s_add_u32", s(sT0), s(sT0), s(sT1)); I("s_mul_i32", s(sT0), s(sT0), 642)
        for rho in range(4):
            if rho: I("s_add_u32", s(sT0), s(sT0), 64 * 642)
            for ps in range(3):
                I("buffer_load_ushort", v(self.WRR + 4 * ps + rho), v(2), srd(WR), s(sT0), mods=f"offen offset:{256*ps}", tag="w")
                I("buffer_load_ushort", v(self.WII + 4 * ps + rho), v(2), srd(WI), s(sT0), mods=f"offen offset:{256*ps}", tag="w")
    def w_pack(self):
        a = self.a; I = a.I
        a.wait_vm("w")
        for k in range(12): I("v_lshl_or_b32", v(self.WRR + k), v(self.WII + k), 16, v(self.WRR + k))
        I("v_lshlrev_b32", v(2), 4, v(30)); I("v_mov_b32", v(3), BIG); I("v_cmp_gt_u32", "vcc", 130, v(30)); I("v_cndmask_b32", v(3), v(3), v(2), "vcc")
        I("s_mul_i32", s(sT0), s(sWG), YP); I("s_add_u32", s(sT0), s(sT0), WS_WP)
        for ps in range(3):
            if ps: I("s_add_u32", s(sT0), s(sT0), 4096)
            I("buffer_store_dwordx4", v(self.WRR + 4 * ps, 4), v(3 if ps == 2 else 2), srd(WS), s(sT0), mods="offen sc1", tag="wps")
    def ld_start(self):
        a = self.a; I = a.I
        I("v_lshrrev_b32", v(2), 3, v(0)); I("v_mul_u32_u24", v(2), 1280, v(2)); I("v_lshrrev_b32", v(3), 4, v(0)); I("v_and_b32", v(4), 7, v(0))
        for r in range(4):
            I("v_add_u32", v(5), 4 * (r & 1), v(3)); I("v_xor_b32", v(5), v(5), v(4)); I("v_lshl_add_u32", v(5), v(5), 4, v(2))
            I("v_add_u32", v(self.XD + r), 9216 * r, v(5))
        I("s_lshr_b32", s(sT0), s(sWL), 1); I("s_mul_i32", s(sT1), s(sT0), 384); I("s_mov_b32", s(sT2), 21846)
        for jj in range(6):
            I("v_add_u32", v(2), s(sT1), v(0))
            if jj < 5: I("s_add_u32", s(sT1), s(sT1), 64)
            I("v_mul_u32_u24", v(3), s(sT2), v(2)); I("v_lshrrev_b32", v(3), 18, v(3))
            I("v_mul_u32_u24", v(3), 3072 - 192, v(3)); I("v_lshl_add_u32", v(3), v(2), 4, v(3))
            I("v_subrev_u32", v(self.WDM + jj), 1024 * (jj & 3), v(3))
        I("s_lshl2_add_u32", s(sT4), s(sMT), s(sWL)); I("s_mul_i32", s(sT4), s(sT4), 32 * 1280)
        I("s_mul_i32", s(sT5), s(sFS), 192)
        I("s_lshl_b32", s(sT6), s(sWL), 12)
        I("s_mul_i32", s(sT7), s(sT0), 6144); I("s_and_b32", s(sT0), s(sWL), 1); I("s_mul_i32", s(sT0), s(sT0), UPOFF); I("s_add_u32", s(sT7), s(sT7), s(sT0)); I("s_add_u32", s(sT7), s(sT7), W1OFF)
        if self.wpos == -1: self.w_loads()
        for j in range(3):
            if j == 1: break
            self.chunk_dma(j)
            if self.wpos == j: self.w_loads()

    def loader1(self):
        a = self.a; I = a.I; a.vm = self.lvm; a.lg = []
        a.label("L_ld1")
        I("s_mov_b32", s(sT2), 6554)
        for jj in range(5):
            I("v_add_u32", v(2), 64 * jj, v(0)); I("v_mul_u32_u24", v(3), s(sT2), v(2)); I("v_lshrrev_b32", v(3), 16, v(3))
            I("v_mul_u32_u24", v(3), 1280 - 160, v(3)); I("v_lshl_add_u32", v(3), v(2), 4, v(3)); I("v_subrev_u32", v(self.RD + jj), 1024 * (jj & 3), v(3))
        I("v_mov_b32", v(2), L_CNT); I("v_mov_b32", v(3), 0); I("ds_write_b32", v(2), v(3))
        for j in (1, 2):
            self.chunk_dma(j)
            if self.wpos == j: self.w_loads()
        self.nonce()
        wdone = False
        if self.wpos <= 0: self.w_pack(); wdone = True
        a.wait_lg0()
        for j in range(10):
            a.wait_vm(f"c{j}")
            if j == 9:
                self.spin([lambda: I("buffer_load_dword", v(31), v(24), srd(WS), s(sA2), mods="offen sc1")], [31], first_issued=True)
            if j in (0, 3, 6, 9): self.stamp(2 + j // 3)
            I("s_barrier")
            if j >= 1 and j + 2 <= 9: self.chunk_dma(j + 2)
            if j == 0:
                I("s_lshl_b32", s(sT0), s(sWL), 10); I("v_lshlrev_b32", v(2), 4, v(0)); I("s_add_u32", s(sT1), s(sT0), L_YS); I("v_add_u32", v(3), s(sT1), v(2))
                for u in range(3): I("ds_read_b128", v(124 + 4 * u, 4), v(3), mods=f"offset:{4096*u}", tag=f"y{u}")
                I("s_mul_i32", s(sT1), s(sWG), YP); I("s_add_u32", s(sT0), s(sT0), s(sT1)); I("s_add_u32", s(sT0), s(sT0), WS_Y)
                for u in range(3):
                    if u: I("s_add_u32", s(sT0), s(sT0), 4096)
                    if u == 2: I("s_cmp_eq_u32", s(sWL), 3); I("s_cselect_b32", s(sT0), BIG, s(sT0))
                    a.wait_lg(f"y{u}")
                    I("buffer_store_dwordx4", v(124 + 4 * u, 4), v(2), srd(WS), s(sT0), mods="offen sc1", tag="yst")
                if not wdone: self.w_pack(); wdone = True
            if j == 3:
                assert "yst" not in a.vm and "wps" not in a.vm
                I("s_lshl_b32", s(sT0), s(sWG), 5); I("s_add_u32", s(sT0), s(sT0), WS_FA); I("s_cmp_eq_u32", s(sWL), 0); I("s_cselect_b32", s(sT0), s(sT0), BIG)
                self.flag_store(s(sT0), 2)
            if j == 7:
                I("v_lshlrev_b32", v(24), 5, v(0)); I("s_lshl_b32", s(sA2), s(sWL), 11); I("s_add_u32", s(sA2), s(sA2), WS_FA)
                I("buffer_load_dword", v(31), v(24), srd(WS), s(sA2), mods="offen sc1", tag="fa")
        I("s_cmp_eq_u32", s(sWG), 0); I("s_cselect_b32", s(sT0), WS_E, BIG); I("s_cmp_eq_u32", s(sWL), 0); I("s_cselect_b32", s(sT0), s(sT0), BIG)
        self.flag_store(s(sT0), 2)
        I("v_lshrrev_b32", v(2), 2, v(0)); I("v_mul_u32_u24", v(2), YP, v(2)); I("v_lshrrev_b32", v(3), 4, v(0)); I("v_xor_b32", v(3), v(3), v(0)); I("v_and_b32", v(3), 3, v(3))
        I("v_lshl_add_u32", v(2), v(3), 4, v(2))
        I("s_mul_i32", s(sT0), s(sWL), 64 * YP); I("s_lshl_b32", s(sT1), s(sP), 6); I("s_add_u32", s(sT0), s(sT0), s(sT1)); I("s_add_u32", s(sT0), s(sT0), WS_Y)
        I("s_lshl_b32", s(sT1), s(sWL), 12); I("s_add_u32", "m0", s(sT1), L_YI)
        for u in range(4):
            if u: I("s_add_u32", s(sT0), s(sT0), 16 * YP - 1024)
            I("buffer_load_dwordx4", v(2), srd(WS), s(sT0), mods=f"offen offset:{1024*u} sc1 lds", tag="yi")
        self.wp_loads()
        I("s_barrier")
        self.stamp(6)
        I("s_lshr_b32", s(sT0), s(sWL), 1); I("s_mul_i32", s(sT0), s(sT0), 24); I("s_and_b32", s(sT1), s(sWL), 1); I("s_add_u32", s(sT0), s(sT0), s(sT1))
        I("s_mul_i32", s(sT4), s(sT0), 32 * 1280); I("s_mul_i32", s(sT0), s(sNG), 160); I("s_add_u32", s(sT4), s(sT4), s(sT0))
        I("s_mul_i32", s(sT5), s(sWL), 5120)
        I("s_mov_b32", s(sT6), s(sSG))
        self.ring_dma(0)
        a.wait_vm("yi")

    def ring_dma(self, q):
        a = self.a; I = a.I; slot = (q % NSLOT2) * SLOT2
        I("s_mul_i32", s(sT0), s(sT6), 64 * 1280); I("s_add_u32", s(sT0), s(sT0), s(sT4))
        I("s_add_u32", "m0", s(sT5), slot)
        self.inc_mod(sT6, 12)
        for r in range(4): I("buffer_load_dwordx4", v(self.RD + r), srd(WD), s(sT0), mods=f"offen offset:{1024*r} lds", tag=f"r{q}")
        I("s_add_u32", "m0", s(sT5), slot + 4096)
        I("buffer_load_dwordx4", v(self.RD + 4), srd(WD), s(sT0), mods="offen lds", tag=f"r{q}")

    def col_fft(self):
        a = self.a; I = a.I
        NS64, NS32, YF, O1, TT, BR, O2, O4, PK = 44, 52, 60, 92, 108, 124, 132, 148, 164
        M = "v_mfma_f32_16x16x32_bf16"
        for k in range(8): I("v_xor_b32", v(NS64 + k), "0x80008000", v(F64S + k)); I("v_xor_b32", v(NS32 + k), "0x80008000", v(F32S + k))
        I("s_lshr_b32", s(sA0), s(sWV), 2)
        I("v_and_b32", v(2), 15, v(0)); I("v_lshrrev_b32", v(3), 4, v(0)); I("v_lshrrev_b32", v(4), 2, v(2))
        I("s_lshl_b32", s(sA1), s(sA0), 1); I("v_xor_b32", v(5), s(sA1), v(4)); I("v_lshlrev_b32", v(5), 4, v(5)); I("v_lshl_add_u32", v(5), v(2), 6, v(5))
        I("v_lshl_add_u32", v(5), v(3), 11, v(5)); I("v_add_u32", v(6), L_YI, v(5)); I("v_xor_b32", v(7), 16, v(6))
        I("v_xor_b32", v(5), v(3), v(4)); I("v_lshlrev_b32", v(5), 4, v(5)); I("v_lshl_add_u32", v(5), v(2), 6, v(5))
        I("s_lshl_b32", s(sA1), s(sA0), 10); I("s_add_u32", s(sA1), s(sA1), L_EX); I("v_add_u32", v(8), s(sA1), v(5))
        I("v_bfe_u32", v(4), v(2), 1, 2); I("v_lshrrev_b32", v(5), 3, v(2)); I("v_lshlrev_b32", v(5), 1, v(5)); I("v_and_b32", v(9), 1, v(2)); I("v_add_u32", v(5), v(5), v(9))
        I("v_lshl_add_u32", v(5), v(4), 2, v(5)); I("v_xor_b32", v(4), v(4), v(3)); I("v_lshlrev_b32", v(4), 4, v(4)); I("v_lshl_add_u32", v(5), v(5), 6, v(4))
        I("s_lshl_b32", s(sA1), s(sA0), 13); I("s_lshr_b32", s(sA2), s(sWL), 1); I("s_lshl_b32", s(sA2), s(sA2), 11); I("s_add_u32", s(sA1), s(sA1), s(sA2))
        I("s_and_b32", s(sA2), s(sWL), 1); I("s_lshl3_add_u32", s(sA1), s(sA2), s(sA1)); I("s_add_u32", s(sA1), s(sA1), L_EX); I("v_add_u32", v(9), s(sA1), v(5))
        I("s_lshl_b32", s(sA1), s(sWL), 12); I("s_lshl_b32", s(sA2), s(sA0), 7); I("s_add_u32", s(sA1), s(sA1), s(sA2))
        I("v_lshlrev_b32", v(5), 4, v(3)); I("v_lshl_add_u32", v(5), v(2), 8, v(5)); I("v_add_u32", v(10), s(sA1), v(5))
        I("s_barrier")
        self.stamp(7)
        yf = lambda mt, j, ri: YF + 4 * ((mt * 2 + j) * 2 + ri)
        for mt in range(2):
            for j in range(2):
                for ri in range(2): I("ds_read_b128", v(yf(mt, j, ri), 4), v(6 + ri), mods=f"offset:{j*8192+mt*1024}", tag=f"y{mt}")
        def cplx(dre, dim, Ar, Ai, C, Sp, Sm, n, data_is_A):
            first = True
            for j in range(n):
                for (d, x1, c1) in ((dre, Ar(j), C(j)), (dim, Ai(j), C(j)), (dre, Ai(j), Sp(j)), (dim, Ar(j), Sm(j))):
                    src = 0 if (j == 0 and c1 == C(j) ) else v(d, 4)
                    p, q = (x1, c1) if data_is_A else (c1, x1)
                    I(M, v(d, 4), v(p, 4), v(q, 4), src)
        for mt in range(2):
            a.wait_lg(f"y{mt}")
            cplx(O1 + 8 * mt, O1 + 8 * mt + 4, lambda j: yf(mt, j, 0), lambda j: yf(mt, j, 1), lambda j: F64C + 4 * j, lambda j: F64S + 4 * j, lambda j: NS64 + 4 * j, 2, True)
        for mt in range(2):
            for i in range(4): self.cmul_tw(TT + 4 * mt + i, TT + 8 + 4 * mt + i, O1 + 8 * mt + i, O1 + 8 * mt + 4 + i, TW1 + 4 * mt + i, False)
        self.pack_bf(BR, TT, 16)
        for md in range(2):
            cplx(O2 + 8 * md, O2 + 8 * md + 4, lambda j: BR, lambda j: BR + 4, lambda j: F32C + 4 * md, lambda j: F32S + 4 * md, lambda j: NS32 + 4 * md, 1, False)
        Ll = self.lab("cfl"); Lj = self.lab("cfj")
        I("s_cmp_eq_u32", s(sROLE), 1); I("s_cbranch_scc1", Ll)
        a.wait_vm0(); self.flag_store(s(sT7), 2)
        I("s_branch", Lj)
        a.label(Ll); I("s_waitcnt", "vmcnt(5)")
        a.label(Lj)
        for k in range(8):
            md, i = k >> 2, k & 3; re, im = O2 + 8 * md + i, O2 + 8 * md + 4 + i
            I("v_lshlrev_b32", v(2), 16, v(vWP + k)); I("v_and_b32", v(3), "0xffff0000", v(vWP + k))
            I("v_mul_f32", v(TT + k), v(re), v(2)); I("v_mul_f32", v(TT + 8 + k), v(im), v(2))
            I("v_fma_f32", v(TT + k), "-" + v(im), v(3), v(TT + k)); I("v_fmac_f32", v(TT + 8 + k), v(re), v(3))
        self.pack_bf(BR, TT, 16)
        for nb in range(2):
            cplx(O1 + 8 * nb, O1 + 8 * nb + 4, lambda j: BR, lambda j: BR + 4, lambda j: F32C + 4 * nb, lambda j: NS32 + 4 * nb, lambda j: F32S + 4 * nb, 1, True)
        for nb in range(2):
            for i in range(4): self.cmul_tw(TT + 8 * nb + i, TT + 8 * nb + 4 + i, O1 + 8 * nb + i, O1 + 8 * nb + 4 + i, TW2 + 4 * nb + i, True)
        self.pack_bf(BR, TT, 16)
        for nb in range(2):
            for ri in range(2): I("ds_write_b64", v(9), v(BR + 4 * nb + 2 * ri, 2), mods=f"offset:{ri*4096+nb*1024}")
        a.wait_lg0(); I("s_barrier")
        ef = lambda col, ri, j: YF + 4 * ((col * 2 + ri) * 2 + j)
        for col in range(2):
            for ri in range(2):
                for j in range(2): I("ds_read_b128", v(ef(col, ri, j), 4), v(8), mods=f"offset:{col*8192+ri*4096+j*2048}", tag=f"e{col}")
        for col in range(2):
            a.wait_lg(f"e{col}")
            cplx(O4 + 8 * col, O4 + 8 * col + 4, lambda j: ef(col, 0, j), lambda j: ef(col, 1, j), lambda j: F64C + 4 * j, lambda j: NS64 + 4 * j, lambda j: F64S + 4 * j, 2, True)
        I("s_lshl_b32", s(sA1), s(sP), 14); I("s_add_u32", s(sA1), s(sA1), WS_Z); I("s_or_b32", s(sA1), s(sA1), s(sPOK))
        for u in range(2):
            for ii in range(2):
                for col in range(2):
                    i = 2 * u + ii
                    I("v_cvt_pk_bf16_f32", v(PK + 4 * u + 2 * ii + col), v(O4 + 8 * col + i), v(O4 + 8 * col + 4 + i))
            I("buffer_store_dwordx4", v(PK + 4 * u, 4), v(10), srd(WS), s(sA1), mods=f"offen offset:{64*u} sc1", tag="z")
        self.stamp(8)

    def z_arrive(self):
        a = self.a; I = a.I; L = self.lab("za")
        I("v_mov_b32", v(2), L_CNT); I("v_mov_b32", v(3), 1)
        I("s_mov_b64", "exec", 1); I("ds_add_rtn_u32", v(4), v(2), v(3)); I("s_mov_b64", "exec", -1)
        a.wait_lg0()
        I("v_readfirstlane_b32", s(sA0), v(4))
        I("s_lshl_b32", s(sA1), s(sP), 5); I("s_add_u32", s(sA1), s(sA1), WS_FZ); I("s_or_b32", s(sA1), s(sA1), s(sPOK))
        I("s_cmp_eq_u32", s(sA0), 7); I("s_cselect_b32", s(sA1), s(sA1), BIG)
        self.flag_store(s(sA1), 2)

    def gemm2_c(self):
        a = self.a; I = a.I; M = "v_mfma_f32_16x16x32_bf16"
        a.vm = ["flag", "z", "z"]
        GA_, SA_, AF, BQ, XF, ZI = 8, 48, (88, 108), 128, 192, 204
        aH, aZ, aW, aT, aX, aRW, aRR = 208, 210, 212, 214, 216, 217, 218
        I("s_and_b32", s(sT4), s(sWV), 1); I("s_lshr_b32", s(sT5), s(sWV), 1)
        I("v_lshlrev_b32", v(2), 4, v(0)); I("v_and_b32", v(3), 15, v(0)); I("v_lshrrev_b32", v(4), 4, v(0))
        I("s_mul_i32", s(sT0), s(sT5), 49152); I("v_add_u32", v(aH), s(sT0), v(2)); I("s_sub_u32", s(sT0), 49152, s(sT0)); I("v_add_u32", v(aH + 1), s(sT0), v(2))
        I("v_lshlrev_b32", v(5), 15, v(4)); I("v_lshl_add_u32", v(5), v(3), 3, v(5))
        I("s_lshl_b32", s(sT0), s(sT5), 7); I("v_add_u32", v(aZ), s(sT0), v(5)); I("s_sub_u32", s(sT0), 128, s(sT0)); I("v_add_u32", v(aZ + 1), s(sT0), v(5))
        I("v_lshrrev_b32", v(5), 1, v(4)); I("v_lshlrev_b32", v(5), 4, v(5)); I("v_and_b32", v(6), 1, v(4)); I("v_lshl_add_u32", v(5), v(6), 2, v(5)); I("v_lshrrev_b32", v(6), 2, v(3)); I("v_add_u32", v(5), v(5), v(6))
        I("v_mul_u32_u24", v(5), 160, v(5)); I("v_and_b32", v(6), 3, v(3)); I("v_mad_u32_u24", v(5), v(6), 40, v(5))
        I("s_mul_i32", s(sT0), s(sT5), 10240); I("v_add_u32", v(aW), s(sT0), v(5)); I("v_add_u32", v(aW + 1), 3 * SLOT2, v(aW))
        I("v_add_u32", v(aT), s(sT0), v(2)); I("v_add_u32", v(aT + 1), 3 * SLOT2, v(aT))
        I("s_mul_i32", s(sT0), s(sWV), 10240); I("v_add_u32", v(aRW), s(sT0), v(2)); I("s_xor_b32", s(sT0), s(sWV), 2); I("s_mul_i32", s(sT0), s(sT0), 10240); I("v_add_u32", v(aRR), s(sT0), v(2))
        I("s_lshl1_add_u32", s(sT0), s(sTQ), s(sT4))
        I("s_mul_i32", s(sT6), s(sT0), 2 * 49152); I("s_mul_i32", s(sT1), s(sT5), 24 * 1024); I("s_add_u32", s(sT6), s(sT6), s(sT1)); I("s_add_u32", s(sT6), s(sT6), WS_H)
        I("s_lshl_b32", s(sT7), s(sT0), 8); I("s_mul_i32", s(sT1), s(sT5), 80 * 16384); I("s_add_u32", s(sT3), s(sT7), WS_Z + 160 * 16384)
        I("s_add_u32", s(sT7), s(sT7), s(sT1)); I("s_add_u32", s(sT7), s(sT7), WS_Z)
        I("s_lshl1_add_u32", s(sT0), s(sT0), s(sT5)); I("s_mul_i32", s(sT0), s(sT0), 16 * 1280); I("s_mul_i32", s(sT1), s(sNG), 160); I("s_add_u32", s(sA3), s(sT0), s(sT1))
        I("v_mul_u32_u24", v(5), 1280, v(3)); I("v_mad_u32_u24", v(aX), v(4), 40, v(5))
        I("s_lshl_b32", s(sT0), s(sT5), 7); I("v_lshl_add_u32", v(219), v(3), 3, s(sT0))
        a.wait_vm("z")
        self.z_arrive()
        I("buffer_load_dwordx4", v(XF, 4), v(aX), srd(X), s(sA3), mods="offen", tag="x")
        I("buffer_load_dwordx4", v(XF + 4, 4), v(aX), srd(X), s(sA3), mods="offen offset:16", tag="x")
        I("buffer_load_dwordx2", v(XF + 8, 2), v(aX), srd(X), s(sA3), mods="offen offset:32", tag="x")
        I("s_mov_b32", s(sT4), s(sSG)); I("s_mov_b32", s(sT5), s(sTAU))
        self.stamp(9)
        I("s_barrier")
        self.stamp(10)
        def bfrag(q, u, tt): return BQ + 16 * (q % 4) + 4 * (2 * u + tt)
        def bload(q):
            if q < 12:
                I("s_lshl_b32", s(sT0), s(sT4), 11); I("s_add_u32", s(sT0), s(sT0), s(sT6)); self.inc_mod(sT4, 12)
                for u in range(2):
                    for tt in range(2): I("buffer_load_dwordx4", v(bfrag(q, u, tt), 4), v(aH + tt), srd(WS), s(sT0), mods=f"offen offset:{1024*u} sc1", tag=f"b{q}_{u}")
            elif q < 17:
                if q == 12: I("buffer_load_dword", v(ZI), v(219), srd(WS), s(sT3), mods="offen sc1", tag="b12_0")
                I("s_lshl_b32", s(sT0), s(sT5), 18); I("s_add_u32", s(sT0), s(sT0), s(sT7)); self.inc_mod(sT5, 5)
                for u in range(2):
                    for hp in range(2):
                        if u or hp: I("s_add_u32", s(sT0), s(sT0), 16384 if hp else 8 * 16384 - 16384)
                        for tt in range(2): I("buffer_load_dwordx2", v(bfrag(q, u, tt) + 2 * hp, 2), v(aZ + tt), srd(WS), s(sT0), mods="offen sc1", tag=f"b{q}_{u}")
        def areads(q, u):
            slot = q % NSLOT2; hi = slot // 3; off = (slot % 3) * SLOT2 + u * 5120; b = AF[u]; R = []
            for j in range(5):
                if q < 12:
                    for rd in range(2): R.append(("ds_read_b64_tr_b16", v(b + 4 * j + 2 * rd, 2), v(aW + hi), f"offset:{off + rd*1280 + 8*j}"))
                else: R.append(("ds_read_b128", v(b + 4 * j, 4), v(aT + hi), f"offset:{off + 1024*j}"))
            return R
        def group(q, u, R):
            acc = GA_ if q < 12 else SA_
            first = (q, u) in ((0, 0), (12, 0))
            a.wait_vm(f"b{q}_{u}")
            if (q, u) == (12, 0):
                I("v_lshlrev_b32", v(ZI), 16, v(ZI)); I("v_xor_b32", v(ZI + 1), "0x80000000", v(ZI)); I("v_mov_b32", v(ZI + 2), v(ZI)); I("v_mov_b32", v(ZI + 3), v(ZI + 1))
            per = (len(R) + 4) // 5
            for j in range(5):
                for tt in range(2):
                    d = v(acc + 20 * tt + 4 * j, 4)
                    c = d if not first else (v(ZI, 4) if (q == 12 and tt == 0) else 0)
                    I(M, d, v(AF[u] + 4 * j, 4), v(bfrag(q, u, tt), 4), c)
                    if tt == 0 or True:
                        for _ in range(per if tt == 0 else 0):
                            if R: o = R.pop(0); I(o[0], o[1], o[2], mods=o[3])
        for q in range(3): bload(q)
        for q in range(17):
            R = areads(q, 0)
            if q == 0:
                for o in R: I(o[0], o[1], o[2], mods=o[3])
            else:
                group(q - 1, 1, R)
            bload(q + 3)
            a.wait_lg0()
            group(q, 0, areads(q, 1))
            a.wait_lg0()
            if q < 16: I("s_barrier")
            if q == 11: self.stamp(11)
        group(16, 1, [])
        self.stamp(12)
        for j in range(5):
            I("ds_write_b128", v(aRW), v(GA_ + 20 + 4 * j, 4), mods=f"offset:{1024*j}")
            I("ds_write_b128", v(aRW), v(SA_ + 20 + 4 * j, 4), mods=f"offset:{5120+1024*j}")
        a.wait_lg0(); I("s_barrier")
        PG, PS = 88, 108
        for j in range(5):
            I("ds_read_b128", v(PG + 4 * j, 4), v(aRR), mods=f"offset:{1024*j}", tag=f"p{j}")
            I("ds_read_b128", v(PS + 4 * j, 4), v(aRR), mods=f"offset:{5120+1024*j}", tag=f"p{j}")
        a.wait_vm("x")
        OP = 128; T = 140
        for j in range(5):
            a.wait_lg(f"p{j}")
            g, sp = GA_ + 4 * j, SA_ + 4 * j
            for p in range(2): I("v_pk_add_f32", v(g + 2 * p, 2), v(g + 2 * p, 2), v(PG + 4 * j + 2 * p, 2))
            for i in range(4): I("v_mul_f32", v(T + i), fl(-1.4426950408889634), v(g + i))
            for i in range(4): I("v_exp_f32", v(T + i), v(T + i))
            for p in range(2): I("v_pk_add_f32", v(sp + 2 * p, 2), v(sp + 2 * p, 2), v(PS + 4 * j + 2 * p, 2))
            for i in range(4): I("v_add_f32", v(T + i), 1.0, v(T + i))
            for i in range(4): I("v_rcp_f32", v(T + i), v(T + i))
            for p in range(2): I("v_pk_mul_f32", v(g + 2 * p, 2), v(g + 2 * p, 2), v(sp + 2 * p, 2))
            for p in range(2):
                I("v_lshlrev_b32", v(T + 4 + 2 * p), 16, v(XF + 2 * j + p)); I("v_and_b32", v(T + 5 + 2 * p), "0xffff0000", v(XF + 2 * j + p))
            for p in range(2): I("v_pk_fma_f32", v(g + 2 * p, 2), v(g + 2 * p, 2), v(T + 2 * p, 2), v(T + 4 + 2 * p, 2))
            self.pack_bf(OP + 2 * j, g, 4)
        I("buffer_store_dwordx4", v(OP, 4), v(aX), srd(OUT), s(sA3), mods="offen")
        I("buffer_store_dwordx4", v(OP + 4, 4), v(aX), srd(OUT), s(sA3), mods="offen offset:16")
        I("buffer_store_dwordx2", v(OP + 8, 2), v(aX), srd(OUT), s(sA3), mods="offen offset:32")
        self.stamp(13)

    def t_gen(self, it):
        a = self.a; I = a.I; DL, G4, TT = 24, 29, 60
        I("s_lshl1_add_u32", s(sA0), s(sT7), s(sA3)); I("s_lshl_b32", s(sA0), s(sA0), 4); self.inc_mod(sT7, 5)
        I("v_cvt_f32_u32", v(30), s(sA0)); I("v_add_f32", v(30), v(30), v(G4))
        for j in range(5):
            I("v_mul_f32", v(31), v(30), v(DL + j)); I("v_fract_f32", v(31), v(31))
            c, sn = self.trig(DL + j, 31, [0, 1, 2, 3], TT)
            for p in range(4): I("v_cvt_pk_bf16_f32", v(100 + 20 * it + 4 * j + p), v(c + p), "-" + v(sn + p))
    def gemm2_l(self):
        a = self.a; I = a.I
        a.vm = ["r0"] * 5 + ["z", "z"]; a.lg = []
        self.ring_dma(1)
        a.wait_vm("z")
        self.z_arrive()
        for q in range(2, 6): self.ring_dma(q)
        DL, G4 = 24, 29
        I("v_and_b32", v(2), 15, v(0)); I("v_lshrrev_b32", v(3), 2, v(2)); I("v_mul_u32_u24", v(3), 20, v(3)); I("v_and_b32", v(2), 3, v(2)); I("v_add_u32", v(2), v(2), v(3))
        I("s_mul_i32", s(sT0), s(sNG), 80); I("v_add_u32", v(2), s(sT0), v(2)); I("v_cvt_f32_u32", v(2), v(2))
        for j in range(5):
            I("v_add_f32", v(3), fl(4.0 * j), v(2)); I("v_mul_f32", v(DL + j), fl(1 / 640), v(3))
        I("v_lshrrev_b32", v(3), 4, v(0)); I("v_lshlrev_b32", v(3), 2, v(3)); I("v_cvt_f32_u32", v(G4), v(3))
        I("s_lshr_b32", s(sT0), s(sWL), 1); I("s_mul_i32", s(sA3), s(sT0), 10); I("s_and_b32", s(sT0), s(sWL), 1); I("s_add_u32", s(sA3), s(sA3), s(sT0)); I("s_mov_b32", s(sT7), s(sTAU))
        I("v_lshl_add_u32", v(32), v(0), 4, s(sT5)); I("v_add_u32", v(33), 3 * SLOT2, v(32))
        I("v_and_b32", v(2), 31, v(0)); I("v_lshlrev_b32", v(34), 5, v(2)); I("s_lshl_b32", s(sA2), s(sTQ), 10); I("s_add_u32", s(sA2), s(sA2), WS_FH)
        self.stamp(9)
        Ls = self.lab("nh")
        I("s_cmp_lg_u32", s(sWL), 0); I("s_cbranch_scc1", Ls)
        sv = list(a.vm)
        self.spin([lambda: I("buffer_load_dword", v(35), v(34), srd(WS), s(sA2), mods="offen sc1")], [35])
        a.label(Ls); a.vm = sv
        I("s_lshl_b32", s(sT0), s(sWL), 6); I("v_add_u32", v(2), s(sT0), v(0)); I("v_min_u32", v(2), 160, v(2)); I("v_lshlrev_b32", v(34), 5, v(2)); I("s_mov_b32", s(sA2), WS_FZ)
        for q in range(17):
            if q < 12: a.wait_vm(f"r{q}")
            if q == 9: self.spin([lambda: I("buffer_load_dword", v(35), v(34), srd(WS), s(sA2), mods="offen sc1")], [35], first_issued=True)
            a.wait_lg0()
            if q in (0, 9): self.stamp(10 if q == 0 else 11)
            I("s_barrier")
            if 1 <= q <= 6: self.ring_dma(q + 5)
            if q <= 3: self.t_gen(q)
            if q == 4: self.t_gen(4)
            if q == 7: I("buffer_load_dword", v(35), v(34), srd(WS), s(sA2), mods="offen sc1", tag="fz")
            if 7 <= q <= 11:
                it = q - 7; slot = (q + 5) % NSLOT2
                for j in range(5): I("ds_write_b128", v(32 + slot // 3), v(100 + 20 * it + 4 * j, 4), mods=f"offset:{(slot % 3) * SLOT2 + 1024 * j}")
        I("s_barrier")

    def finish(self):
        a = self.a; I = a.I
        if self.prof:
            a.label("L_prof")
            I("s_memtime", s(98, 2)); a.wait_lg0(); I("s_sub_u32", s(sPROF + 14), s(98), s(sPROF + 14)); self.stamp(15)
            I("s_lshl3_add_u32", s(sT0), s(sWG), s(sWV)); I("s_lshl_b32", s(sT0), s(sT0), 7); I("s_add_u32", s(sT0), s(sT0), WS_PROF)
            I("v_mov_b32", v(2), 0); I("s_mov_b64", "exec", 1)
            for k in range(16):
                I("v_mov_b32", v(3), s(sPROF + k)); I("buffer_store_dword", v(3), v(2), srd(WS), s(sT0), mods=f"offen offset:{4*k}")
        a.label("L_end"); I("s_endpgm")

    def build(self):
        a = self.a; I = a.I
        endl = "L_prof" if self.prof else "L_end"
        if self.prof:
            for k in range(1, 16): I("s_mov_b32", s(sPROF + k), 0)
        self.prologue()
        I("s_mov_b32", s(sA3), WS_ST)
        self.row_fft(); self.gemm1()
        I("s_branch", "L_cf")
        self.loader1()
        a.label("L_cf"); a.reset()
        self.col_fft()
        I("s_cmp_eq_u32", s(sROLE), 1); I("s_cbranch_scc1", "L_g2l")
        self.gemm2_c()
        I("s_branch", endl)
        a.label("L_g2l")
        self.gemm2_l()
        self.finish()
        n = a.pad_hazards()
        hdr = open("recurrent_scan__spectral_gfnet__glu_gated_geglu__prompt.s.ref").read().split("; Override launch")[0]
        txt = hdr + f"; @launch grid=(256,1,1) block=(512,1,1) lds={LDS_BYTES}\n"
        txt += f'.amdgcn_target "amdgcn-amd-amdhsa--gfx950"\n.text\n.globl {NAME}\n.p2align 8\n.type {NAME},@function\n{NAME}:\n'
        txt += a.text()
        txt += f""".section .rodata,"a"
.p2align 6
.amdhsa_kernel {NAME}
  .amdhsa_next_free_vgpr 256
  .amdhsa_next_free_sgpr 102
  .amdhsa_accum_offset 256
  .amdhsa_group_segment_fixed_size 0
  .amdhsa_kernarg_size 80
  .amdhsa_user_sgpr_count 2
  .amdhsa_user_sgpr_kernarg_segment_ptr 1
  .amdhsa_system_sgpr_workgroup_id_x 1
.end_amdhsa_kernel
"""
        return txt, n

if __name__ == "__main__":
    import argparse
    ap = argparse.ArgumentParser(); ap.add_argument("-o", default="k.s"); ap.add_argument("--prof", action="store_true"); ap.add_argument("--wpos", type=int, default=-1)
    args = ap.parse_args()
    txt, n = G(prof=args.prof, wpos=args.wpos).build()
    open(args.o, "w").write(txt)
    print("nops", n, "lines", txt.count("\n"))
```

```python
import struct, sys
from asmlib import *
from model import *

NAME = "recurrent_scan__spectral_gfnet__glu_gated_geglu__prompt_kernel"
def fl(x): return "0x%08x" % struct.unpack("<I", struct.pack("<f", x))[0]

SLOT1 = 41024; W1OFF = 16384; UPOFF = 12288 + 32
L_XR = 123072
L_YS = 135360
L_WRAW = 147648
L_YI = 123072
L_EX = 139456
L_CS = 158144
L_CNT = 161216
LDS_BYTES = 161280
SLOT2 = 20480; NSLOT2 = 6
BIG = 0x7fff0000

sWG, sWV = 2, 3
X, WS, W1, WR, WI, WD, OUT = 24, 28, 32, 36, 40, 44, 48
sXCD, sI, sMT, sFS, sCH, sTQ, sNG, sP, sNONCE, sWL = 52, 53, 54, 55, 56, 57, 58, 59, 60, 61
sT0, sT1, sT2, sT3, sT4, sT5, sT6, sT7 = 62, 63, 64, 65, 66, 67, 68, 69
sPOK, sSG, sTAU, sLIM = 70, 71, 72, 73
sA0, sA1, sA2, sA3 = 74, 75, 76, 77
sROLE = 78
sWB = 79
sFFT = 100
sPROF = 80
srd = lambda r: s(r, 4)

F64C, F64S, F32C, F32S, TW1, TW2 = 208, 216, 224, 232, 240, 248
NS64, NS32 = 192, 200
vWP = 36
vE = 1

class G:
    def __init__(self, prof=False, stop=99, wpos=-1, exp=(), npre=1):
        self.npre = npre; self.tlbsh = 19
        self.exp = set(exp)
        self.a = Asm(); self.prof = prof; self.stop = stop; self.wpos = wpos; self.nlab = 0
    def lab(self, p): self.nlab += 1; return f"L_{p}{self.nlab}"
    def stamp(self, k):
        if not self.prof: return
        a = self.a
        a.I("s_memtime" if 'cyc' in self.exp else "s_memrealtime", s(98, 2)); a.wait_lg0(); a.I("s_mov_b32", s(sPROF + k), s(98))

    def trig(self, delta, base, koffs, tmp):
        a = self.a; n = len(koffs); T = []
        for e, k in enumerate(koffs):
            if k == 0: T.append(base)
            else:
                a.I("v_fmamk_f32", v(tmp + e), v(delta), fl(float(k)), v(base)); T.append(tmp + e)
        for e in range(n): a.I("v_cos_f32", v(tmp + n + e), v(T[e]))
        for e in range(n): a.I("v_sin_f32", v(tmp + 2 * n + e), v(T[e]))
        return tmp + n, tmp + 2 * n
    def pack_bf(self, dst, src, n, neg=False):
        sg = "-" if neg else ""
        for p in range(n // 2): self.a.I("v_cvt_pk_bf16_f32", v(dst + p), sg + v(src + 2 * p), sg + v(src + 2 * p + 1))
    def cmul_tw(self, dr, di, r, i, tw, inverse):
        a = self.a
        a.I("v_fma_mix_f32", v(dr), v(r), v(tw), "0", mods="op_sel_hi:[0,1,0]")
        a.I("v_fma_mix_f32", v(di), v(i), v(tw), "0", mods="op_sel_hi:[0,1,0]")
        a.I("v_fma_mix_f32", v(dr), ("-" if inverse else "") + v(i), v(tw), v(dr), mods="op_sel:[0,1,0] op_sel_hi:[0,1,0]")
        a.I("v_fma_mix_f32", v(di), ("" if inverse else "-") + v(r), v(tw), v(di), mods="op_sel:[0,1,0] op_sel_hi:[0,1,0]")
    def mod(self, dst, src, m, tmp):
        a = self.a
        a.I("s_mul_i32", s(tmp), s(src), (65536 + m - 1) // m); a.I("s_lshr_b32", s(tmp), s(tmp), 16)
        a.I("s_mul_i32", s(tmp), s(tmp), m); a.I("s_sub_u32", s(dst), s(src), s(tmp))
    def inc_mod(self, r, m):
        a = self.a
        a.I("s_add_u32", s(r), s(r), 1); a.I("s_cmp_eq_u32", s(r), m); a.I("s_cselect_b32", s(r), 0, s(r))
    def spin(self, loads, regs_, first=None, level=None):
        a = self.a; L = self.lab("poll"); Dn = self.lab("pdone"); C = self.lab("pchk")
        a.I("s_mov_b32", s(sLIM), 20000)
        keep = []
        if first:
            a.wait_vm(first); keep = list(a.vm); a.I("s_branch", C)
        a.label(L)
        for ld in loads: ld()
        a.wait_vm0(); a.vm = keep
        a.label(C)
        if level is None:
            a.I("v_cmp_eq_u32", "vcc", s(sNONCE), v(regs_[0]))
            for r in regs_[1:]:
                a.I("v_cmp_eq_u32", s(sA0, 2), s(sNONCE), v(r)); a.I("s_and_b64", "vcc", "vcc", s(sA0, 2))
        else:
            a.I("s_add_u32", s(sA0), s(sNONCE), level); a.I("v_subrev_u32", v(regs_[0]), s(sA0), v(regs_[0]))
            a.I("v_cmp_ge_u32", "vcc", 2 - level, v(regs_[0]))
        a.I("s_cmp_eq_u64", "vcc", "exec"); a.I("s_cbranch_scc1", Dn)
        a.I("s_sub_u32", s(sLIM), s(sLIM), 1); a.I("s_cmp_eq_u32", s(sLIM), 0); a.I("s_cbranch_scc1", Dn)
        a.I("s_sleep", 1); a.I("s_branch", L)
        a.label(Dn)
    def lds_sync(self, k, t0):
        a = self.a; I = a.I; L = self.lab("ls"); Dn = self.lab("lsd")
        I("v_mov_b32", v(t0), L_CNT + 4 * k); I("v_mov_b32", v(t0 + 1), 1)
        I("s_mov_b64", "exec", 1); I("ds_add_u32", v(t0), v(t0 + 1)); I("s_mov_b64", "exec", -1)
        I("s_mov_b32", s(sLIM), 200000)
        a.label(L)
        I("ds_read_b32", v(t0 + 1), v(t0)); a.wait_lg0()
        I("v_readfirstlane_b32", s(sA0), v(t0 + 1)); I("s_cmp_ge_u32", s(sA0), 4); I("s_cbranch_scc1", Dn)
        I("s_sub_u32", s(sLIM), s(sLIM), 1); I("s_cmp_lg_u32", s(sLIM), 0); I("s_cbranch_scc1", L)
        a.label(Dn)
    def flag_store(self, soff, tmpv, level=0):
        a = self.a
        a.I("v_mov_b32", v(tmpv), s(sNONCE)); a.I("v_mov_b32", v(tmpv + 1), 0)
        if level: a.I("v_add_u32", v(tmpv), level, v(tmpv))
        a.I("s_mov_b64", "exec", 1)
        a.I("buffer_store_dword", v(tmpv), v(tmpv + 1), srd(WS), soff, mods="offen sc1", tag="flag")
        a.I("s_mov_b64", "exec", -1)

    def prologue(self):
        a = self.a; I = a.I
        I("s_cmp_ge_u32", s(sWG), 256); I("s_cbranch_scc1", "L_end")
        I("s_load_dwordx16", s(4, 16), s(0, 2), 0); I("s_load_dwordx4", s(20, 4), s(0, 2), 64)
        if self.prof: I("s_memtime" if 'cyc' in self.exp else "s_memrealtime", s(98, 2))
        I("v_lshrrev_b32", v(1), 6, v(0)); I("v_and_b32", v(0), 63, v(0)); I("v_readfirstlane_b32", s(sWV), v(1))
        if 'nopf' not in self.exp:
            I("s_getpc_b64", s(sT0, 2)); I("s_lshr_b32", s(sT2), s(sWG), 3); I("s_mul_i32", s(sT2), s(sT2), "PFL*128")
            I("v_lshl_add_u32", v(4), v(0), 7, s(sT2)); I("v_min_u32", v(4), "PFMAX", v(4)); I("v_mov_b32", v(5), s(sT1))
            I("v_add_co_u32", v(4), "vcc", s(sT0), v(4)); I("v_addc_co_u32", v(5), "vcc", 0, v(5), "vcc")
            I("s_cmp_lg_u32", s(sWV), 7); I("s_cbranch_scc1", "L_nopf")
            I("s_mov_b64", "exec", "(1<<PFL)-1")
            I("global_load_dword", v(6), v(4, 2), "off"); a.vm.pop()
            I("s_mov_b64", "exec", -1)
            a.label("L_nopf")
        I("s_and_b32", s(sXCD), s(sWG), 7); I("s_lshr_b32", s(sI), s(sWG), 3)
        I("s_and_b32", s(sT0), s(sXCD), 1); I("s_lshl_b32", s(sT0), s(sT0), 3); I("s_and_b32", s(sT1), s(sI), 7); I("s_add_u32", s(sMT), s(sT0), s(sT1))
        I("s_lshr_b32", s(sT0), s(sXCD), 1); I("s_lshl_b32", s(sT0), s(sT0), 2); I("s_lshr_b32", s(sT1), s(sI), 3); I("s_add_u32", s(sFS), s(sT0), s(sT1))
        I("s_add_u32", s(sT0), s(sMT), s(sFS)); self.mod(sCH, sT0, 10, sT1)
        I("s_and_b32", s(sT0), s(sI), 3); I("s_lshl2_add_u32", s(sTQ), s(sXCD), s(sT0)); I("s_lshr_b32", s(sNG), s(sI), 2)
        I("s_add_u32", s(sT0), s(sT0), s(sNG)); I("s_and_b32", s(sSG), s(sT0), 3)
        self.mod(sTAU, sNG, 5, sT1)
        self.mod(sT0, sI, 20, sT1); I("s_mul_i32", s(sP), s(sXCD), 20); I("s_add_u32", s(sP), s(sP), s(sT0))
        I("s_cmp_lt_u32", s(sI), 20); I("s_cselect_b32", s(sPOK), 0, BIG)
        I("s_cmp_eq_u32", s(sWG), 160); I("s_cselect_b32", s(sP), 160, s(sP)); I("s_cselect_b32", s(sPOK), 0, s(sPOK))
        I("s_and_b32", s(sWL), s(sWV), 3)
        I("s_cmp_eq_u32", s(sPOK), 0); I("s_cselect_b32", s(sFFT), 1, 0)
        a.wait_lg0()
        if self.prof:
            I("s_mov_b32", s(sPROF), s(98)); I("s_memtime", s(98, 2)); a.wait_lg0(); I("s_mov_b32", s(sPROF + 14), s(98))
        for r, p, n in ((X, 4, S * D * 2), (WS, 22, WS_END), (WR, 6, S * 642), (WI, 8, S * 642), (WD, 16, F * D * 2), (OUT, 18, S * D * 2)):
            I("s_mov_b32", s(r), s(p)); I("s_mov_b32", s(r + 1), s(p + 1)); I("s_mov_b32", s(r + 2), n); I("s_mov_b32", s(r + 3), "0x20000")
        I("s_bitcmp1_b32", s(sWV), 0)
        I("s_cselect_b32", s(W1), s(14), s(12)); I("s_cselect_b32", s(W1 + 1), s(15), s(13)); I("s_mov_b32", s(W1 + 2), D * F * 2); I("s_mov_b32", s(W1 + 3), "0x20000")
        I("v_mov_b32", v(2), 0)
        I("buffer_load_dword", v(vE), v(2), srd(WS), 0, mods="offen sc1", tag="E")
        I("s_cmp_ge_u32", s(sWV), 4); I("s_cselect_b32", s(sROLE), 1, 0)
        I("s_cmp_eq_u32", s(sROLE), 1); I("s_cbranch_scc1", "L_ld0")
        I("s_setprio", 1)
        I("s_lshr_b32", s(sT0), s(sWG), 7); I("s_lshl_b32", s(sT0), s(sT0), 5)
        I("s_lshr_b32", s(sT1), s(sWV), 1); I("s_lshl4_add_u32", s(sT0), s(sT1), s(sT0))
        I("s_bfe_u32", s(sT1), s(sWG), 5 | (2 << 16)); I("s_lshl2_add_u32", s(sT0), s(sT1), s(sT0))
        I("s_and_b32", s(sT1), s(sWV), 1); I("s_lshl1_add_u32", s(sT0), s(sT1), s(sT0))
        I("s_lshl_b32", s(sT0), s(sT0), 5); I("s_and_b32", s(sT1), s(sWG), 31); I("s_add_u32", s(sT6), s(sT0), s(sT1))
        I("s_mul_i32", s(sT0), s(sT6), 1280)
        I("s_mul_i32", s(sT7), s(sWV), 3072); I("s_add_u32", s(sT7), s(sT7), L_XR)
        I("s_mov_b32", "m0", s(sT7))
        I("v_lshlrev_b32", v(2), 4, v(0))
        I("v_add_u32", v(3), 39680, v(2)); I("v_cmp_gt_u32", "vcc", 16, v(0)); I("v_cndmask_b32", v(4), v(3), v(2), "vcc")
        I("v_mov_b32", v(5), BIG); I("v_cmp_gt_u32", "vcc", 32, v(0)); I("v_cndmask_b32", v(5), v(5), v(3), "vcc")
        I("buffer_load_dwordx4", v(2), srd(X), s(sT0), mods="offen lds", tag="xr")
        I("buffer_load_dwordx4", v(4), srd(X), s(sT0), mods="offen offset:1024 lds", tag="xr")
        I("buffer_load_dwordx4", v(5), srd(X), s(sT0), mods="offen offset:2048 lds", tag="xr")
        self.cvm = a.vm

    def consts(self):
        a = self.a; I = a.I
        I("v_and_b32", v(60), 15, v(0)); I("v_lshrrev_b32", v(61), 4, v(0))
        I("v_cvt_f32_u32", v(62), v(60)); I("v_lshlrev_b32", v(61), 2, v(61)); I("v_cvt_f32_u32", v(63), v(61))
        I("s_lshl_b32", s(sT0), s(sWL), 4); I("v_cvt_f32_u32", v(64), s(sT0))
        I("v_add_f32", v(65), v(62), v(64))
        I("v_mul_f32", v(66), fl(1 / 64), v(65)); I("v_mul_f32", v(67), v(63), v(66))
        for j in range(2):
            c, sn = self.trig(66, 67, [32 * j + 16 * (e >> 2) + (e & 3) for e in range(8)], 70)
            self.pack_bf(F64C + 4 * j, c, 8); self.pack_bf(F64S + 4 * j, sn, 8)
        I("v_mul_f32", v(66), fl(1 / 2048), v(65)); I("v_mul_f32", v(67), v(63), v(66))
        c, sn = self.trig(66, 67, [16 * (e >> 2) + (e & 3) for e in range(8)], 70)
        for e in range(8): I("v_cvt_pk_f16_f32", v(TW1 + e), v(c + e), v(sn + e))
        I("v_add_f32", v(64), v(64), v(63))
        for md in range(2):
            if md: I("v_add_f32", v(62), fl(16.0), v(62))
            I("v_mul_f32", v(66), fl(1 / 32), v(62)); I("v_mul_f32", v(67), v(63), v(66))
            c, sn = self.trig(66, 67, [16 * (e >> 2) + (e & 3) for e in range(8)], 70)
            self.pack_bf(F32C + 4 * md, c, 8); self.pack_bf(F32S + 4 * md, sn, 8)
            I("v_mul_f32", v(66), fl(1 / 2048), v(62)); I("v_mul_f32", v(67), v(64), v(66))
            c, sn = self.trig(66, 67, [0, 1, 2, 3], 70)
            for e in range(4): I("v_cvt_pk_f16_f32", v(TW2 + 4 * md + e), v(c + e), v(sn + e))
        for k in range(8): I("v_xor_b32", v(NS64 + k), "0x80008000", v(F64S + k)); I("v_xor_b32", v(NS32 + k), "0x80008000", v(F32S + k))

    def nonce(self):
        a = self.a; I = a.I
        a.wait_vm("E")
        I("v_readfirstlane_b32", s(sNONCE), v(vE))
        I("s_mul_i32", s(sNONCE), s(sNONCE), "0x9e3779b1"); I("s_add_u32", s(sNONCE), s(sNONCE), "0x7f4a7c15")

    def row_fft(self):
        a = self.a; I = a.I; a.vm = self.cvm
        FC, FS, TW, G0, G1, G2 = 8, 16, 24, 36, 40, 44
        I("v_and_b32", v(60), 31, v(0)); I("v_lshrrev_b32", v(61), 5, v(0))
        I("v_cvt_f32_u32", v(62), v(60)); I("v_cvt_f32_u32", v(63), v(61))
        I("v_mul_f32", v(66), fl(1 / 32), v(62)); I("v_mul_f32", v(67), fl(8.0), v(63)); I("v_mul_f32", v(67), v(67), v(66))
        for jj in range(2):
            c, sn = self.trig(66, 67, [16 * jj + e for e in range(8)], 70)
            self.pack_bf(FC + 4 * jj, c, 8); self.pack_bf(FS + 4 * jj, sn, 8, neg=True)
        I("v_mul_f32", v(63), 4.0, v(63))
        I("v_mul_f32", v(66), fl(1 / 640), v(62)); I("v_mul_f32", v(67), v(63), v(66))
        c, sn = self.trig(66, 67, [8 * (e >> 2) + (e & 3) for e in range(12)], 70)
        for e in range(12): I("v_cvt_pk_f16_f32", v(TW + e), v(c + e), v(sn + e))
        I("v_cmp_gt_u32", "vcc", 32, v(0))
        for e in range(8, 12): I("v_cndmask_b32", v(TW + e), 0, v(TW + e), "vcc")
        I("v_lshrrev_b32", v(64), 1, v(60)); I("v_cvt_f32_u32", v(64), v(64)); I("v_and_b32", v(65), 1, v(60)); I("v_cvt_f32_u32", v(65), v(65))
        I("v_mul_f32", v(66), fl(1 / 20), v(64)); I("v_mul_f32", v(67), v(63), v(66)); I("v_fmac_f32", v(67), fl(0.25), v(65))
        c, sn = self.trig(66, 67, [8 * (e >> 2) + (e & 3) for e in range(12)], 70)
        self.pack_bf(G0, c, 8); self.pack_bf(G1, sn, 8); self.pack_bf(G2, c + 8, 4); self.pack_bf(G2 + 2, sn + 8, 4)
        aT, aS, aY, fA, fB, e0 = 48, 49, 50, 51, 52, 53
        I("v_and_b32", v(64), 15, v(0)); I("v_lshrrev_b32", v(65), 2, v(64)); I("v_lshl_add_u32", v(65), v(61), 3, v(65))
        I("v_mul_u32_u24", v(65), 40, v(65)); I("v_and_b32", v(64), 3, v(64)); I("v_lshl_add_u32", v(65), v(64), 3, v(65))
        I("v_and_b32", v(64), 16, v(0)); I("v_lshl_add_u32", v(65), v(64), 1, v(65)); I("v_add_u32", v(aT), s(sT7), v(65))
        I("v_mul_u32_u24", v(64), 1280, v(61)); I("v_mad_u32_u24", v(64), v(60), 40, v(64)); I("v_add_u32", v(aS), s(sT7), v(64))
        I("s_lshl_b32", s(sT0), s(sWV), 2); I("s_add_u32", s(sT0), s(sT0), L_YS)
        I("v_lshlrev_b32", v(64), 5, v(60)); I("v_lshl_add_u32", v(64), v(61), 11, v(64)); I("v_add_u32", v(aY), s(sT0), v(64))
        I("v_cmp_eq_u32", "vcc", 0, v(0)); I("v_cndmask_b32", v(fA), 1.0, 0.5, "vcc"); I("v_cndmask_b32", v(e0), 0, 1.0, "vcc")
        I("v_cmp_eq_u32", "vcc", 32, v(0)); I("v_cndmask_b32", v(fB), 1.0, 0.5, "vcc")
        I("v_lshl_add_u32", v(54), v(61), 5, s(sT6)); I("v_lshlrev_b32", v(54), 3, v(54))
        self.gemm1_setup()
        self.nonce()
        a.wait_vm("xr")
        self.stamp(1)
        SD, AF = 60, 72
        for u in range(5): I("ds_read_b64", v(SD + 2 * u, 2), v(aS), mods=f"offset:{8*u}", tag="sd")
        for r in range(2):
            for jj in range(2):
                for rd in range(2):
                    I("ds_read_b64_tr_b16", v(AF + 8 * r + 4 * jj + 2 * rd, 2), v(aT), mods=f"offset:{1280*r+640*jj+160*rd}", tag=f"af{r}")
        A1 = 112
        def st1(r):
            for ri, Fm in ((0, FC), (1, FS)):
                d = v(A1 + 32 * r + 16 * ri, 16)
                I("v_mfma_f32_32x32x16_bf16", d, v(AF + 8 * r, 4), v(Fm, 4), 0)
                I("v_mfma_f32_32x32x16_bf16", d, v(AF + 8 * r + 4, 4), v(Fm + 4, 4), d)
        a.wait_lg("af0"); st1(0); a.wait_lg("af1"); st1(1)
        s0, s1, q0, q1, t0, t1 = 88, 89, 90, 91, 92, 93
        for u in range(10):
            I("v_lshlrev_b32", v(t0), 16, v(SD + u)); I("v_and_b32", v(t1), "0xffff0000", v(SD + u))
            if u == 0:
                I("v_mov_b32", v(s0), v(t0)); I("v_mov_b32", v(s1), v(t1)); I("v_mul_f32", v(q0), v(t0), v(t0)); I("v_mul_f32", v(q1), v(t1), v(t1))
            else:
                I("v_add_f32", v(s0), v(s0), v(t0)); I("v_add_f32", v(s1), v(s1), v(t1)); I("v_fmac_f32", v(q0), v(t0), v(t0)); I("v_fmac_f32", v(q1), v(t1), v(t1))
        I("v_add_f32", v(s0), v(s0), v(s1)); I("v_add_f32", v(q0), v(q0), v(q1))
        for sh in (1, 2, 4, 8):
            for r_ in (s0, q0): I("v_add_f32_dpp", v(r_), v(r_), v(r_), mods=f"row_shr:{sh} row_mask:0xf bank_mask:0xf bound_ctrl:1")
        for r_ in (s0, q0): I("v_add_f32_dpp", v(r_), v(r_), v(r_), mods="row_bcast:15 row_mask:0xa bank_mask:0xf")
        I("v_mul_f32", v(s0), fl(1 / 640), v(s0)); I("v_mul_f32", v(q0), fl(1 / 640), v(q0))
        I("v_fma_f32", v(q0), "-" + v(s0), v(s0), v(q0)); I("v_max_f32", v(q0), 0, v(q0))
        I("v_cvt_pk_bf16_f32", v(t0), v(s0), v(q0))
        I("v_and_b32", v(t1), "0xffff0000", v(t0)); I("v_add_f32", v(t1), fl(1e-5), v(t1))
        I("v_cvt_pk_bf16_f32", v(t1), v(t1), v(t1)); I("v_and_b32", v(t1), "0xffff0000", v(t1))
        I("v_sqrt_f32", v(t1), v(t1)); I("v_cvt_pk_bf16_f32", v(t1), v(t1), v(t1)); I("v_and_b32", v(t1), "0xffff0000", v(t1))
        I("v_rcp_f32", v(q1), v(t1)); I("v_and_b32", v(94), "0xffff", v(t0)); I("v_or_b32", v(94), v(94), v(t1)); I("v_mov_b32", v(95), s(sNONCE))
        I("v_mul_f32", v(q1), fl(SC), v(q1)); I("v_lshlrev_b32", v(s1), 16, v(t0)); I("v_mul_f32", v(s1), fl(-640.0), v(s1))
        I("s_mov_b32", "exec_lo", "0x80000000"); I("s_mov_b32", "exec_hi", "0x80000000")
        I("buffer_store_dwordx2", v(94, 2), v(54), srd(WS), s(sA3), mods="offen sc1", tag="gr")
        I("s_mov_b64", "exec", -1)
        I("v_readlane_b32", s(sT0), v(q1), 31); I("v_readlane_b32", s(sT1), v(q1), 63)
        I("v_readlane_b32", s(sT2), v(s1), 31); I("v_readlane_b32", s(sT3), v(s1), 63)
        B2 = 60; A2 = 176; TR, TI = 88, 100
        for r in range(2):
            re, im = A1 + 32 * r, A1 + 32 * r + 16
            for e in range(12): self.cmul_tw(TR + e, TI + e, re + e, im + e, TW + e, False)
            b = B2 + 12 * r
            self.pack_bf(b, TR, 8); self.pack_bf(b + 4, TI, 8); self.pack_bf(b + 8, TR + 8, 4); self.pack_bf(b + 10, TI + 8, 4)
            d = v(A2 + 16 * r, 16)
            I("v_mfma_f32_32x32x16_bf16", d, v(G0, 4), v(b, 4), 0)
            I("v_mfma_f32_32x32x16_bf16", d, v(G1, 4), v(b + 4, 4), d)
            I("v_mfma_f32_32x32x16_bf16", d, v(G2, 4), v(b + 8, 4), d)
        for r in range(2):
            o = A2 + 16 * r
            I("v_fma_f32", v(o), v(e0), s(sT2 + r), v(o))
            I("v_mul_f32", v(o), v(o), v(fA)); I("v_mul_f32", v(o + 8), v(o + 8), v(fB))
            for e in range(12): I("v_mul_f32", v(o + e), s(sT0 + r), v(o + e))
        for e in range(12):
            I("v_cvt_pk_bf16_f32", v(88 + e), v(A2 + e), v(A2 + 16 + e))
        for e in range(12):
            I("ds_write_b32", v(aY), v(88 + e), mods=f"offset:{(e >> 2) * 4096 + ((e & 3) >> 1) * 1024 + (e & 1) * 16}", tag="ys")

    XB, WB, CSW, CSR, GA, SEL, HA, XA, WE, GR = 208, 212, 214, 215, 216, 220, 224, 226, 230, 232
    def gemm1_setup(self):
        a = self.a; I = a.I
        XB, WB, CSW, CSR, GA, SEL, HA = self.XB, self.WB, self.CSW, self.CSR, self.GA, self.SEL, self.HA
        I("s_and_b32", s(sT4), s(sWV), 1); I("s_lshr_b32", s(sT5), s(sWV), 1)
        I("v_and_b32", v(2), 31, v(0)); I("v_lshrrev_b32", v(3), 5, v(0)); I("v_bfe_u32", v(4), v(0), 1, 3)
        I("s_lshl_b32", s(sT0), s(sT4), 13); I("v_lshl_add_u32", v(5), v(2), 7, s(sT0))
        I("s_lshl_b32", s(sT2), s(sT4), 2)
        for sp in range(4):
            I("s_xor_b32", s(sT1), s(sT2), 2 * sp)
            I("v_add_u32", v(6), s(sT1), v(3)); I("v_xor_b32", v(6), v(6), v(4)); I("v_lshl_add_u32", v(XB + sp), v(6), 4, v(5))
        I("v_and_b32", v(6), 15, v(0)); I("v_lshrrev_b32", v(7), 2, v(6)); I("v_lshl_add_u32", v(7), v(3), 3, v(7)); I("v_mul_u32_u24", v(7), 192, v(7))
        I("v_and_b32", v(6), 3, v(6)); I("v_lshl_add_u32", v(7), v(6), 3, v(7))
        I("v_bfe_u32", v(6), v(0), 4, 1); I("v_mul_u32_u24", v(6), UPOFF, v(6)); I("v_add_u32", v(7), v(7), v(6))
        I("s_mul_i32", s(sT0), s(sT5), 96); I("s_add_u32", s(sT0), s(sT0), W1OFF); I("s_mul_i32", s(sT1), s(sT4), 6144)
        I("s_add_u32", s(sT2), s(sT0), s(sT1)); I("s_sub_u32", s(sT3), s(sT0), s(sT1))
        I("v_add_u32", v(WB), s(sT2), v(7)); I("v_add_u32", v(WB + 1), s(sT3), v(7))
        I("s_mul_i32", s(sT0), s(sWV), 768); I("s_add_u32", s(sT0), s(sT0), L_CS); I("v_lshl_add_u32", v(CSW), v(0), 2, s(sT0))
        I("s_xor_b32", s(sT0), s(sWV), 1); I("s_mul_i32", s(sT0), s(sT0), 768); I("s_add_u32", s(sT0), s(sT0), L_CS); I("v_lshl_add_u32", v(CSR), v(0), 2, s(sT0))
        I("s_lshl1_add_u32", s(sT0), s(sMT), s(sT4)); I("s_lshl_b32", s(sT0), s(sT0), 9); I("v_lshl_add_u32", v(GA), v(2), 3, s(sT0))
        I("v_cmp_eq_u32", "vcc", 0, v(2)); I("v_cmp_eq_u32", s(sT0, 2), 20, v(2)); I("s_or_b64", "vcc", "vcc", s(sT0, 2))
        I("v_mov_b32", v(6), "0x3f803f80")
        for k in range(4): I("v_cndmask_b32", v(SEL + k), 0, v(6), "vcc")
        I("v_bfe_u32", v(6), v(0), 4, 1); I("v_mul_u32_u24", v(6), 49152, v(6)); I("v_lshl_add_u32", v(6), v(3), 8, v(6))
        I("v_and_b32", v(7), 15, v(0)); I("v_lshl_add_u32", v(HA), v(7), 4, v(6)); I("v_add_u32", v(HA + 1), 98304, v(HA))

    def gemm1(self):
        a = self.a; I = a.I
        XB, WB, CSW, CSR, GA, SEL, HA, XA, WE, GR = self.XB, self.WB, self.CSW, self.CSR, self.GA, self.SEL, self.HA, self.XA, self.WE, self.GR
        CS, BUF, ACC = 60, (72, 92), 112
        def reads(sp, b, xa, we):
            R = [("ds_read_b128", v(b, 4), v(xa + sp), ""), ("ds_read_b128", v(b + 4, 4), v(xa + sp), "offset:4096")]
            for ft in range(3):
                for rd in range(2):
                    R.append(("ds_read_b64_tr_b16", v(b + 8 + 4 * ft + 2 * rd, 2), v(we + (sp >> 1)), f"offset:{sp*3072 + rd*768 + ft*32}"))
            return R
        def group(b, R, cs=False, gaps=None, zero=False, cszero=False):
            k = 0
            for ft in range(3):
                for tt in range(2):
                    d = v(ACC + 32 * ft + 16 * tt, 16)
                    if 'nomfma' not in self.exp: I("v_mfma_f32_32x32x16_bf16", d, v(b + 8 + 4 * ft, 4), v(b + 4 * tt, 4), 0 if zero else d)
                    for _ in range(2):
                        if R: o = R.pop(0); I(o[0], o[1], o[2], mods=o[3])
                    if cs and tt == 0 and 'nocs' not in self.exp:
                        I("v_mfma_f32_16x16x32_bf16", v(CS + 4 * ft, 4), v(SEL, 4), v(b + 8 + 4 * ft, 4), 0 if cszero else v(CS + 4 * ft, 4))
                    if gaps and k in gaps: gaps[k]()
                    k += 1
        def tail_gaps():
            def g0():
                I("s_add_u32", s(sT1), s(sT1), SLOT1); I("s_cmp_eq_u32", s(sT1), 3 * SLOT1); I("s_cselect_b32", s(sT1), 0, s(sT1))
            def g1():
                for ft in range(3): I("ds_write_b32", v(CSW), v(CS + 4 * ft), mods=f"offset:{256*ft}")
            def g4():
                for k in range(4): I("v_add_u32", v(XA + k), s(sT1), v(XB + k))
                I("v_add_u32", v(WE), s(sT1), v(WB)); I("v_add_u32", v(WE + 1), s(sT1), v(WB + 1))
            return {0: g0, 1: g1, 4: g4}
        a.wait_lg0()
        I("s_mov_b32", s(sT0), 1); I("s_mov_b32", s(sT1), 0)
        self.stamp(2)
        I("s_barrier")
        self.stamp(3)
        for o in reads(0, BUF[0], XB, WB): I(o[0], o[1], o[2], mods=o[3])
        a.wait_lg0()
        group(BUF[0], reads(1, BUF[1], XB, WB), cs=True, zero=True, cszero=True); a.wait_lg0()
        group(BUF[1], reads(2, BUF[0], XB, WB), cs=True); a.wait_lg0()
        group(BUF[0], reads(3, BUF[1], XB, WB), gaps=tail_gaps()); a.wait_lg0()
        I("s_barrier")
        a.label("L_g1")
        def gl():
            I("s_cmp_lg_u32", s(sT0), 6); I("s_cbranch_scc1", "L_g1n")
            for tt in range(2): I("buffer_load_dwordx2", v(GR + 2 * tt, 2), v(GA), srd(WS), s(sA3), mods=f"offen offset:{256*tt} sc1", tag="gl")
            a.label("L_g1n")
        group(BUF[1], reads(0, BUF[0], XA, WE), gaps={4: gl}); a.wait_lg0()
        group(BUF[0], reads(1, BUF[1], XA, WE), cs=True); a.wait_lg0()
        group(BUF[1], reads(2, BUF[0], XA, WE), cs=True); a.wait_lg0()
        tg = tail_gaps()
        def g2(): I("s_add_u32", s(sT0), s(sT0), 1); I("s_cmp_lt_u32", s(sT0), 10)
        tg[2] = g2
        group(BUF[0], reads(3, BUF[1], XA, WE), gaps=tg); a.wait_lg0()
        I("s_barrier")
        I("s_cbranch_scc1", "L_g1")
        self.stamp(4)
        for ft in range(3): I("ds_read_b32", v(20 + ft), v(CSR), mods=f"offset:{256*ft}", tag="cs")
        group(BUF[1], [])
        self.spin([lambda: I("buffer_load_dwordx2", v(GR, 2), v(GA), srd(WS), s(sA3), mods="offen sc1"),
                   lambda: I("buffer_load_dwordx2", v(GR + 2, 2), v(GA), srd(WS), s(sA3), mods="offen offset:256 sc1")], [GR + 1, GR + 3], first="gl")
        a.wait_lg0()
        AC, BC = 72, 84
        I("s_mov_b32", s(sT0), "0x01000100")
        for tt in range(2):
            d = BC + 4 * tt
            I("v_perm_b32", v(d), v(GR + 2 * tt), v(GR + 2 * tt), s(sT0)); I("v_xor_b32", v(d), "0x80008000", v(d))
            for k in range(1, 4): I("v_mov_b32", v(d + k), v(d))
        for ft in range(3):
            c = 20 + ft; d = AC + 4 * ft
            I("v_add_f32", v(c), v(c), v(CS + 4 * ft))
            I("v_cvt_pk_bf16_f32", v(24), v(c), v(c)); I("v_and_b32", v(25), "0xffff0000", v(24)); I("v_sub_f32", v(c), v(c), v(25))
            I("v_cvt_pk_bf16_f32", v(d), v(25), v(c)); I("v_and_b32", v(25), "0xffff0000", v(d)); I("v_sub_f32", v(c), v(c), v(25))
            I("v_cvt_pk_bf16_f32", v(d + 1), v(c), 0); I("v_mov_b32", v(d + 2), 0); I("v_mov_b32", v(d + 3), 0)
            for tt in range(2):
                dd = v(ACC + 32 * ft + 16 * tt, 16)
                I("v_mfma_f32_32x32x16_bf16", dd, v(AC + 4 * ft, 4), v(BC + 4 * tt, 4), dd)
        K0 = -2 * 0.7978845608028654 * 1.4426950408889634; K1 = K0 * 0.044715
        KC = 60
        for tt in range(2):
            k = KC + 6 * tt
            I("v_and_b32", v(24), "0xffff0000", v(GR + 2 * tt)); I("v_rcp_f32", v(25), v(24)); I("v_mul_f32", v(k + 4), v(24), v(24))
            I("v_mul_f32", v(k), fl(K0), v(25)); I("v_mul_f32", v(26), v(25), v(25)); I("v_mul_f32", v(26), v(26), v(25)); I("v_mul_f32", v(k + 2), fl(K1), v(26))
        I("s_lshl1_add_u32", s(sT0), s(sMT), s(sT4)); I("s_mul_i32", s(sT2), s(sT0), 4 * 49152); I("s_lshl1_add_u32", s(sT1), s(sFS), s(sT5))
        I("s_lshl_b32", s(sT3), s(sT1), 9); I("s_add_u32", s(sT2), s(sT2), s(sT3)); I("s_add_u32", s(sT2), s(sT2), WS_H)
        I("s_lshl_b32", s(sT0), s(sT0), 5); I("s_add_u32", s(sT0), s(sT0), s(sT1)); I("s_lshl_b32", s(sT0), s(sT0), 5); I("s_add_u32", s(sT7), s(sT0), WS_FH)
        n = 0
        T, Z_, E_, V_ = 92, 100, 2, 10
        for ft in range(3):
            if ft: I("s_add_u32", s(sT2), s(sT2), 16384)
            for tt in range(2):
                g = ACC + 32 * ft + 16 * tt; u = g + 8; k = KC + 6 * tt; H = 72 + 4 * (n & 1); n += 1
                for p in range(4): I("v_pk_mul_f32", v(T + 2 * p, 2), v(g + 2 * p, 2), v(g + 2 * p, 2))
                for p in range(4): I("v_pk_fma_f32", v(T + 2 * p, 2), v(T + 2 * p, 2), v(k + 2, 2), v(k, 2), mods="op_sel_hi:[1,0,0]")
                for p in range(4): I("v_pk_mul_f32", v(Z_ + 2 * p, 2), v(g + 2 * p, 2), v(T + 2 * p, 2))
                for p in range(8): I("v_exp_f32", v(E_ + p), v(Z_ + p))
                for p in range(4): I("v_pk_mul_f32", v(V_ + 2 * p, 2), v(g + 2 * p, 2), v(u + 2 * p, 2))
                for p in range(4): I("v_pk_fma_f32", v(T + 2 * p, 2), v(E_ + 2 * p, 2), v(k + 4, 2), v(k + 4, 2), mods="op_sel_hi:[1,0,0]")
                for p in range(8): I("v_rcp_f32", v(Z_ + p), v(T + p))
                for p in range(4): I("v_pk_mul_f32", v(V_ + 2 * p, 2), v(V_ + 2 * p, 2), v(Z_ + 2 * p, 2))
                self.pack_bf(H, V_, 8)
                I("buffer_store_dwordx4", v(H, 4), v(HA + tt), srd(WS), s(sT2), mods="offen" if 'hplain' in self.exp else "offen sc1", tag=f"h{ft}")
            if ft and 'nostage' not in self.exp:
                a.wait_vm(f"h{ft-1}"); self.flag_store(s(sT7), 18, level=ft - 1)
        self.stamp(5)

    XD, WDM, RD = 8, 12, 18
    def chunk_a(self, j):
        a = self.a; I = a.I; slot = (j % 3) * SLOT1
        I("s_lshl_b32", s(sT0), s(sCH), 7); I("s_add_u32", s(sT0), s(sT0), s(sT4))
        I("s_add_u32", "m0", s(sT6), slot)
        I("s_mul_i32", s(sWB), s(sCH), 64 * 3072); I("s_add_u32", s(sWB), s(sWB), s(sT5))
        for r in range(4): I("buffer_load_dwordx4", v(self.XD + r), srd(X), s(sT0), mods=f"offen offset:{1024*r} lds", tag=f"c{j}")
        I("s_add_u32", "m0", s(sT6), slot + 4096); I("s_add_u32", s(sT0), s(sT0), 32 * 1280)
        for r in range(4): I("buffer_load_dwordx4", v(self.XD + r), srd(X), s(sT0), mods=f"offen offset:{1024*r} lds", tag=f"c{j}")
        I("s_add_u32", "m0", s(sT7), slot)
        self.inc_mod(sCH, 10)
        for r in range(4): I("buffer_load_dwordx4", v(self.WDM + r), srd(W1), s(sWB), mods=f"offen offset:{1024*r} lds", tag=f"c{j}")
    def chunk_b(self, j):
        a = self.a; I = a.I; slot = (j % 3) * SLOT1
        I("s_add_u32", "m0", s(sT7), slot + 4096)
        for r in range(2): I("buffer_load_dwordx4", v(self.WDM + 4 + r), srd(W1), s(sWB), mods=f"offen offset:{1024*r} lds", tag=f"c{j}")
        I("s_add_u32", "m0", s(sT7), slot + 6144); I("s_add_u32", s(sWB), s(sWB), 32 * 3072)
        for r in range(4): I("buffer_load_dwordx4", v(self.WDM + r), srd(W1), s(sWB), mods=f"offen offset:{1024*r} lds", tag=f"c{j}")
        I("s_add_u32", "m0", s(sT7), slot + 10240)
        for r in range(2): I("buffer_load_dwordx4", v(self.WDM + 4 + r), srd(W1), s(sWB), mods=f"offen offset:{1024*r} lds", tag=f"c{j}")
    def common_l(self):
        a = self.a; I = a.I
        I("s_setprio", 0)
        self.consts()
        I("v_lshlrev_b32", v(self.RD), 4, v(0))
        I("v_lshlrev_b32", v(2), 2, v(0)); I("v_add_u32", v(2), L_CNT, v(2)); I("v_mov_b32", v(3), 0)
        I("s_mov_b64", "exec", 15); I("ds_write_b32", v(2), v(3)); I("s_mov_b64", "exec", -1)
    def stream(self):
        a = self.a; I = a.I
        I("v_lshrrev_b32", v(2), 3, v(0)); I("v_mul_u32_u24", v(2), 1280, v(2)); I("v_lshrrev_b32", v(3), 4, v(0)); I("v_and_b32", v(4), 7, v(0))
        for r in range(4):
            I("v_add_u32", v(5), 4 * (r & 1), v(3)); I("v_xor_b32", v(5), v(5), v(4)); I("v_lshl_add_u32", v(5), v(5), 4, v(2))
            I("v_add_u32", v(self.XD + r), 9216 * r, v(5))
        I("s_mov_b32", s(sT2), 21846)
        for jj in range(6):
            I("v_add_u32", v(2), 64 * jj, v(0))
            I("v_mul_u32_u24", v(3), s(sT2), v(2)); I("v_lshrrev_b32", v(3), 18, v(3))
            I("v_mul_u32_u24", v(3), 3072 - 192, v(3)); I("v_lshl_add_u32", v(3), v(2), 4, v(3))
            I("v_subrev_u32", v(self.WDM + jj), 1024 * (jj & 3), v(3))
        I("s_lshl1_add_u32", s(sT4), s(sMT), s(sWL)); I("s_mul_i32", s(sT4), s(sT4), 64 * 1280)
        I("s_mul_i32", s(sT5), s(sFS), 192)
        I("s_lshl_b32", s(sT6), s(sWL), 13)
        I("s_mul_i32", s(sT7), s(sWL), UPOFF); I("s_add_u32", s(sT7), s(sT7), W1OFF)
        self.chunk_a(0); self.chunk_b(0)
        I("s_branch", "L_cl"); self.svm = a.vm
    def stream2(self):
        a = self.a; I = a.I; a.vm = self.svm; a.lg = ["x"]
        self.chunk_a(1)
        self.nonce()
        a.wait_lg0()
        for j in range(10):
            a.wait_vm(f"c{j}")
            if j in (0, 3, 6, 9): self.stamp(2 + j // 3)
            I("s_barrier")
            if j == 0: self.chunk_b(1)
            if j + 2 <= 9: self.chunk_a(j + 2); self.chunk_b(j + 2)
        I("s_branch", "L_lj")
    def w_dma(self):
        if 'noW' in self.exp: return
        a = self.a; I = a.I
        I("s_mov_b32", s(sT2), 1599); I("s_mov_b32", s(sT3), 64 * 642 - 656)
        for i in range(6):
            I("v_add_u32", v(2), 64 * i, v(0)); I("v_mul_u32_u24", v(3), s(sT2), v(2)); I("v_lshrrev_b32", v(3), 16, v(3))
            I("v_lshlrev_b32", v(2), 4, v(2)); I("v_mad_u32_u24", v(3), v(3), s(sT3), v(2)); I("v_subrev_u32", v(8 + i), 1024 * (i & 3), v(3))
        I("s_and_b32", s(sT0), s(sWG), 63); I("s_lshr_b32", s(sT1), s(sWG), 6); I("s_lshl_b32", s(sT1), s(sT1), 9); I("s_add_u32", s(sT0), s(sT0), s(sT1)); I("s_mul_i32", s(sT0), s(sT0), 642)
        I("s_and_b32", s(sT0), s(sT0), -4)
        I("s_cmp_eq_u32", s(sWL), 3); I("s_cselect_b32", s(WR), s(WI), s(WR)); I("s_cselect_b32", s(WR + 1), s(WI + 1), s(WR + 1))
        I("s_cselect_b32", s(sT1), 5248, 0); I("s_add_u32", s(sT1), s(sT1), L_WRAW); I("s_mov_b32", "m0", s(sT1))
        for i in range(6):
            if i == 4: I("s_add_u32", "m0", s(sT1), 4096)
            if i == 5: I("s_mov_b64", "exec", "0xff")
            I("buffer_load_dwordx4", v(8 + i), srd(WR), s(sT0), mods=f"offen offset:{1024*(i&3)} lds", tag="w")
        I("s_mov_b64", "exec", -1)
    def w_pack(self):
        if 'noW' in self.exp: return
        a = self.a; I = a.I; DT = 100
        I("v_bfe_u32", v(2), v(0), 4, 1); I("v_bfe_u32", v(3), v(0), 2, 2); I("v_lshl_add_u32", v(3), v(2), 2, v(3)); I("v_mul_u32_u24", v(3), 656, v(3))
        I("v_and_b32", v(4), 3, v(0)); I("v_lshl_add_u32", v(3), v(4), 3, v(3)); I("v_lshrrev_b32", v(4), 5, v(0)); I("v_lshl_add_u32", v(3), v(4), 5, v(3))
        I("s_and_b32", s(sT0), s(sWL), 1); I("s_mul_i32", s(sT1), s(sT0), 6 * 64); I("s_add_u32", s(sT1), s(sT1), L_WRAW); I("v_add_u32", v(3), s(sT1), v(3))
        for t in range(6):
            for ar in range(2): I("ds_read_b64_tr_b16", v(DT + 4 * t + 2 * ar, 2), v(3), mods=f"offset:{ar*5248+64*t}", tag=f"t{t}")
        I("v_and_b32", v(5), 15, v(0)); I("v_lshl_add_u32", v(5), v(4), 4, v(5)); I("v_lshlrev_b32", v(5), 5, v(5)); I("v_lshl_add_u32", v(5), v(2), 4, v(5))
        I("s_mul_i32", s(sT0), s(sT0), 6144); I("s_add_u32", s(sT1), s(sT0), L_YS); I("v_add_u32", v(5), s(sT1), v(5)); I("v_add_u32", v(6), s(sT1), v(self.RD))
        for t in range(6):
            a.wait_lg(f"t{t}"); I("ds_write_b128", v(5), v(DT + 4 * t, 4), mods=f"offset:{1024*t}")
        for t in range(6): I("ds_read_b128", v(DT + 24 + 4 * t, 4), v(6), mods=f"offset:{1024*t}", tag=f"u{t}")
        I("s_mul_i32", s(sT1), s(sWG), YP); I("s_add_u32", s(sT0), s(sT0), s(sT1)); I("s_and_b32", s(sT1), s(sWG), 1); I("s_lshl_b32", s(sT1), s(sT1), 5)
        I("s_sub_u32", s(sT0), s(sT0), s(sT1)); I("s_add_u32", s(sT0), s(sT0), WS_WP)
        I("s_cmp_eq_u32", s(sWL), 3); I("s_cselect_b32", s(sT2), 8, 64); I("s_cselect_b32", s(sT3), 0, 64)
        I("v_mov_b32", v(4), BIG); I("v_cmp_gt_u32", "vcc", s(sT2), v(0)); I("v_cndmask_b32", v(2), v(4), v(self.RD), "vcc")
        I("v_cmp_gt_u32", "vcc", s(sT3), v(0)); I("v_cndmask_b32", v(3), v(4), v(self.RD), "vcc")
        for t in range(6):
            if t == 4: I("s_add_u32", s(sT0), s(sT0), 4096)
            a.wait_lg(f"u{t}")
            I("buffer_store_dwordx4", v(DT + 24 + 4 * t, 4), v({4: 2, 5: 3}.get(t, self.RD)), srd(WS), s(sT0), mods=f"offen offset:{1024*(t&3)} sc1", tag="st")
    def wd_dma(self):
        if 'nowd' in self.exp: return
        a = self.a; I = a.I
        for i in range(5):
            I("v_add_u32", v(3), 64 * i, v(0)); I("v_mul_u32_u24", v(3), 1639, v(3)); I("v_lshrrev_b32", v(3), 16, v(3))
            I("v_mul_u32_u24", v(3), 640, v(3)); I("v_add_u32", v(8 + i), v(3), v(self.RD))
        I("v_add_u32", v(12), 4096, v(12))
        I("s_and_b32", s(sT2), s(sWL), 1); I("s_and_b32", s(sT0), s(sWG), -2); I("s_add_u32", s(sT0), s(sT0), s(sT2)); I("s_mul_i32", s(sT0), s(sT0), 8 * 1280)
        I("s_and_b32", s(sT1), s(sWG), 1); I("s_mul_i32", s(sT1), s(sT1), 640); I("s_add_u32", s(sT0), s(sT0), s(sT1))
        I("s_mul_i32", s(sT1), s(sT2), 5120); I("s_add_u32", "m0", s(sT1), L_XR)
        for i in range(5):
            if i == 4: I("s_add_u32", "m0", s(sT1), L_XR + 4096)
            I("buffer_load_dwordx4", v(8 + i), srd(WD), s(sT0), mods=f"offen offset:{1024*(i&3)} lds", tag="wd")
    def wd_pack(self):
        if 'nowd' in self.exp: return
        a = self.a; I = a.I; DT = 148
        I("v_bfe_u32", v(2), v(0), 4, 1); I("v_bfe_u32", v(3), v(0), 2, 2); I("v_lshl_add_u32", v(3), v(2), 2, v(3)); I("v_mul_u32_u24", v(3), 640, v(3))
        I("v_and_b32", v(4), 3, v(0)); I("v_mad_u32_u24", v(3), v(4), 40, v(3)); I("v_lshrrev_b32", v(4), 5, v(0)); I("v_lshl_add_u32", v(3), v(4), 3, v(3))
        I("s_and_b32", s(sA0), s(sWL), 1); I("s_mul_i32", s(sT0), s(sA0), 320); I("s_add_u32", s(sT0), s(sT0), L_XR); I("v_add_u32", v(3), s(sT0), v(3))
        for n in range(2):
            for jj in range(3):
                for rd in range(2): I("ds_read_b64_tr_b16", v(DT + 12 * n + 4 * jj + 2 * rd, 2), v(3), mods=f"offset:{rd*5120+16*jj+160*n}", tag=f"d{n}{jj}")
        I("v_and_b32", v(5), 31, v(0)); I("v_lshlrev_b32", v(5), 4, v(5)); I("v_lshl_add_u32", v(5), v(4), 10, v(5))
        I("v_mov_b32", v(6), BIG); I("v_cmp_gt_u32", "vcc", 32, v(0)); I("v_cndmask_b32", v(6), v(6), v(5), "vcc")
        I("s_lshr_b32", s(sT0), s(sWG), 1); self.mod(sT1, sT0, 6, sT2); I("s_lshr_b32", s(sT2), s(sWG), 1)
        I("s_mul_i32", s(sT2), s(sT2), 10923); I("s_lshr_b32", s(sT2), s(sT2), 16)
        I("s_cmp_ge_u32", s(sT1), 3); I("s_cselect_b32", s(sT3), 1, 0)
        I("s_mul_i32", s(sT0), s(sT3), 3); I("s_sub_u32", s(sT1), s(sT1), s(sT0))
        I("s_lshl4_add_u32", s(sT1), s(sT1), s(sT2))
        I("s_and_b32", s(sT0), s(sWG), 1); I("s_lshl1_add_u32", s(sT0), s(sT0), s(sA0)); I("s_mul_i32", s(sT0), s(sT0), 96); I("s_add_u32", s(sT0), s(sT0), s(sT1))
        I("s_mul_i32", s(sT0), s(sT0), 5120); I("s_lshl_b32", s(sT3), s(sT3), 9); I("s_add_u32", s(sT0), s(sT0), s(sT3)); I("s_add_u32", s(sT0), s(sT0), WS_WD)
        I("s_cmp_lt_u32", s(sWG), 192); I("s_cselect_b32", s(sT0), s(sT0), BIG)
        for n in range(2):
            for jj in range(3):
                a.wait_lg(f"d{n}{jj}")
                if jj == 2: I("s_add_u32", s(sT0), s(sT0), 4096)
                I("buffer_store_dwordx4", v(DT + 12 * n + 4 * jj, 4), v(6 if jj == 2 else 5), srd(WS), s(sT0), mods=f"offen offset:{2048*(jj&1)} sc1", tag="st")
            if n == 0: I("s_add_u32", s(sT0), s(sT0), 48 * 5120 - 4096)
    def y_store(self):
        if 'noY' in self.exp: return
        a = self.a; I = a.I; DT = 60
        I("s_and_b32", s(sT0), s(sWL), 1); I("s_mul_i32", s(sT0), s(sT0), 6144); I("s_add_u32", s(sT1), s(sT0), L_YS); I("v_add_u32", v(3), s(sT1), v(self.RD))
        for u in range(6): I("ds_read_b128", v(DT + 4 * u, 4), v(3), mods=f"offset:{1024*u}", tag=f"y{u}")
        I("s_mul_i32", s(sT1), s(sWG), YP); I("s_add_u32", s(sT0), s(sT0), s(sT1)); I("s_add_u32", s(sT0), s(sT0), WS_Y)
        for u in range(6):
            if u == 4: I("s_add_u32", s(sT0), s(sT0), 4096)
            if u == 5: I("s_cmp_eq_u32", s(sWL), 3); I("s_cselect_b32", s(sT0), BIG, s(sT0))
            a.wait_lg(f"y{u}")
            I("buffer_store_dwordx4", v(DT + 4 * u, 4), v(self.RD), srd(WS), s(sT0), mods=f"offen offset:{1024*(u&3)} sc1", tag="st")
    def side2(self):
        a = self.a; I = a.I; a.vm = self.dvm; a.lg = ["x"]; wp = self.wpos
        self.nonce()
        a.wait_lg0()
        jW = 1 if wp < 0 else wp + 2
        jF = max(jW, 2) + 2
        lda = [lambda k=k: I("buffer_load_dword", v(30 + k), v(24), srd(WS), s(sA2), mods=f"offen offset:{2048*k} sc1", tag="fa") for k in range(2)]
        for j in range(10):
            if j == jW: a.wait_vm("w")
            if j == 2: a.wait_vm("wd")
            if j == jF: a.wait_vm("st")
            if j == 9: self.spin(lda, [30, 31], first="fa")
            if j in (0, 3, 6, 9): self.stamp(2 + j // 3)
            I("s_barrier")
            if j == 0: self.wd_dma()
            if j == wp: self.w_dma()
            if j == 0: self.y_store()
            if j == jW: self.w_pack()
            if j == 2: self.wd_pack()
            if j == jF:
                I("s_lshl_b32", s(sT0), s(sWG), 5); I("s_add_u32", s(sT0), s(sT0), WS_FA); I("s_cmp_eq_u32", s(sWL), 2); I("s_cselect_b32", s(sT0), s(sT0), BIG)
                self.flag_store(s(sT0), 2)
            if j == 8:
                I("v_lshlrev_b32", v(24), 5, v(0)); I("s_and_b32", s(sA2), s(sWL), 1); I("s_lshl_b32", s(sA2), s(sA2), 12); I("s_add_u32", s(sA2), s(sA2), WS_FA)
                for f in lda: f()
    def loader1(self):
        a = self.a; I = a.I
        a.label("L_ld0"); a.vm = ["E"]; a.lg = []
        I("s_setprio", 2)
        I("s_cmp_ge_u32", s(sWL), 2); I("s_cselect_b32", s(sROLE), 2, 1)
        I("s_cmp_eq_u32", s(sROLE), 2); I("s_cbranch_scc1", "L_sd0")
        self.stream()
        a.label("L_sd0"); a.vm = ["E"]
        if 'notlb' not in self.exp:
            I("v_lshlrev_b32", v(2), self.tlbsh, v(0))
            I("buffer_load_dword", v(7), v(2), srd(WS), 0, mods="offen sc1", tag="tlb")
            I("buffer_load_dword", v(7), v(2), srd(OUT), 0, mods="offen sc1", tag="tlb")
            I("buffer_load_dword", v(7), v(2), srd(WD), 0, mods="offen sc1", tag="tlb")
        if self.wpos < 0: self.w_dma()
        self.dvm = a.vm
        a.label("L_cl")
        self.common_l()
        I("s_cmp_eq_u32", s(sROLE), 2); I("s_cbranch_scc1", "L_sd1")
        self.stream2()
        a.label("L_sd1")
        self.side2()
        a.label("L_lj"); a.vm = []
        I("s_lshr_b32", s(sT0), s(sWL), 1); I("s_lshl_b32", s(sT0), s(sT0), 3); I("s_and_b32", s(sT1), s(sWL), 1); I("s_add_u32", s(sT0), s(sT0), s(sT1))
        I("s_mul_i32", s(sT1), s(sNG), 48); I("s_add_u32", s(sT0), s(sT0), s(sT1)); I("s_mul_i32", s(sT4), s(sT0), 5120); I("s_add_u32", s(sT4), s(sT4), WS_WD)
        I("s_mul_i32", s(sT5), s(sWL), 5120)
        I("s_cmp_eq_u32", s(sFFT), 0)
        if 'nofft' in self.exp: I("s_branch", "L_nofft")
        I("s_cbranch_scc1", "L_nofft")
        I("v_lshrrev_b32", v(2), 2, v(0)); I("v_mul_u32_u24", v(2), YP, v(2)); I("v_lshrrev_b32", v(3), 4, v(0)); I("v_xor_b32", v(3), v(3), v(0)); I("v_and_b32", v(3), 3, v(3))
        I("v_lshl_add_u32", v(14), v(3), 4, v(2))
        I("s_mul_i32", s(sT0), s(sWL), 64 * YP); I("s_lshl_b32", s(sT1), s(sP), 6); I("s_add_u32", s(sT0), s(sT0), s(sT1)); I("s_add_u32", s(sT0), s(sT0), WS_Y)
        I("s_lshl_b32", s(sT2), s(sWL), 12); I("s_add_u32", "m0", s(sT2), L_YI)
        for u in range(4):
            if u: I("s_add_u32", s(sT0), s(sT0), 16 * YP - 1024)
            I("buffer_load_dwordx4", v(14), srd(WS), s(sT0), mods=f"offen offset:{1024*u} sc1 lds", tag="yi")
        I("s_cmp_eq_u32", s(sWG), 0); I("s_cselect_b32", s(sT0), WS_E, BIG); I("s_cmp_eq_u32", s(sWL), 0); I("s_cselect_b32", s(sT0), s(sT0), BIG)
        self.flag_store(s(sT0), 2)
        self.col_setup()
        I("s_barrier")
        self.stamp(6)
        I("s_mul_i32", s(sT0), s(sWL), 16 * YP); I("s_add_u32", s(sT0), s(sT0), s(sT1)); I("s_add_u32", s(sT0), s(sT0), WS_WP)
        I("s_add_u32", "m0", s(sT2), 5 * SLOT2)
        for u in range(4):
            if u: I("s_add_u32", s(sT0), s(sT0), 64 * YP - 1024)
            I("buffer_load_dwordx4", v(14), srd(WS), s(sT0), mods=f"offen offset:{1024*u} sc1 lds", tag="wp")
        for q in range(self.npre): self.ring_dma(q)
        self.col_fft()
        self.ring_dma(self.npre)
        a.wait_vm("z")
        self.z_arrive()
        I("s_branch", "L_g2l")
        a.label("L_nofft"); a.vm = []; a.lg = []
        I("s_barrier")
        for q in range(self.npre + 1): self.ring_dma(q)
        a.label("L_g2l")

    def ring_dma(self, q):
        if 'noring' in self.exp or ('norefill' in self.exp and q >= 6): return
        a = self.a; I = a.I; slot = (q % NSLOT2) * SLOT2
        I("s_add_u32", s(sT0), s(sSG), q); I("s_and_b32", s(sT0), s(sT0), 3); I("s_mul_i32", s(sT0), s(sT0), 10240); I("s_add_u32", s(sT0), s(sT0), s(sT4))
        if q >= 4: I("s_add_u32", s(sT0), s(sT0), (q >> 2) * 81920)
        I("s_add_u32", "m0", s(sT5), slot)
        for r in range(4): I("buffer_load_dwordx4", v(self.RD), srd(WS), s(sT0), mods=f"offen offset:{1024*r} sc1 lds", tag=f"r{q}")
        I("s_add_u32", "m0", s(sT5), slot + 4096); I("s_add_u32", s(sT0), s(sT0), 4096)
        I("buffer_load_dwordx4", v(self.RD), srd(WS), s(sT0), mods="offen sc1 lds", tag=f"r{q}")

    aY, aER, aEW, aZS, aWP = 6, 10, 11, 12, 15
    def col_setup(self):
        a = self.a; I = a.I; aY, aER, aEW, aZS = self.aY, self.aER, self.aEW, self.aZS
        I("v_and_b32", v(2), 15, v(0)); I("v_lshrrev_b32", v(3), 4, v(0)); I("v_lshrrev_b32", v(4), 2, v(2))
        I("v_lshlrev_b32", v(5), 4, v(4)); I("v_lshl_add_u32", v(5), v(2), 6, v(5))
        I("v_lshl_add_u32", v(5), v(3), 11, v(5)); I("v_add_u32", v(aY), L_YI, v(5))
        for k in range(1, 4): I("v_xor_b32", v(aY + k), 16 * k, v(aY))
        I("v_and_b32", v(5), 1, v(3)); I("v_xor_b32", v(5), v(5), v(4)); I("v_lshlrev_b32", v(5), 4, v(5)); I("v_lshl_add_u32", v(5), v(2), 6, v(5))
        I("v_lshrrev_b32", v(13), 1, v(3)); I("v_lshl_add_u32", v(5), v(13), 10, v(5)); I("s_add_u32", s(sA1), s(sT2), 5 * SLOT2)
        I("v_add_u32", v(self.aWP), s(sA1), v(5)); I("v_xor_b32", v(self.aWP + 1), 32, v(self.aWP))
        I("v_xor_b32", v(5), v(3), v(4)); I("v_lshlrev_b32", v(5), 4, v(5)); I("v_lshl_add_u32", v(5), v(2), 6, v(5)); I("v_add_u32", v(aER), L_EX, v(5))
        I("v_bfe_u32", v(4), v(2), 1, 2); I("v_lshrrev_b32", v(5), 3, v(2)); I("v_lshlrev_b32", v(5), 1, v(5)); I("v_and_b32", v(13), 1, v(2)); I("v_add_u32", v(5), v(5), v(13))
        I("v_lshl_add_u32", v(5), v(4), 2, v(5)); I("v_xor_b32", v(4), v(4), v(3)); I("v_lshlrev_b32", v(4), 4, v(4)); I("v_lshl_add_u32", v(5), v(5), 6, v(4))
        I("s_lshr_b32", s(sA2), s(sWL), 1); I("s_lshl_b32", s(sA1), s(sA2), 11)
        I("s_and_b32", s(sA2), s(sWL), 1); I("s_lshl3_add_u32", s(sA1), s(sA2), s(sA1)); I("s_add_u32", s(sA1), s(sA1), L_EX); I("v_add_u32", v(aEW), s(sA1), v(5))
        I("s_lshl_b32", s(sA1), s(sWL), 12); I("v_lshlrev_b32", v(5), 4, v(3)); I("v_lshl_add_u32", v(5), v(2), 8, v(5)); I("v_add_u32", v(aZS), s(sA1), v(5))

    def col_fft(self):
        a = self.a; I = a.I; aY, aER, aEW, aZS = self.aY, self.aER, self.aEW, self.aZS
        YF, O1, TT, BR, O2 = (52, 84), (116, 132), 148, (164, 172), (52, 84)
        M = "v_mfma_f32_16x16x32_bf16"
        a.wait_vm("yi")
        self.lds_sync(0, 2)
        self.stamp(7)
        yf = lambda c, mt, j, ri: YF[c] + 4 * ((mt * 2 + j) * 2 + ri)
        for c in range(2):
            for mt in range(2):
                for j in range(2):
                    for ri in range(2): I("ds_read_b128", v(yf(c, mt, j, ri), 4), v(aY + 2 * c + ri), mods=f"offset:{j*8192+mt*1024}", tag=f"y{c}{mt}")
        def cplx(dre, dim, Ar, Ai, C, Sp, Sm, n, data_is_A):
            for j in range(n):
                for k, (d, x1, c1) in enumerate(((dre, Ar(j), C(j)), (dim, Ai(j), C(j)), (dre, Ai(j), Sp(j)), (dim, Ar(j), Sm(j)))):
                    p, q = (x1, c1) if data_is_A else (c1, x1)
                    I(M, v(d, 4), v(p, 4), v(q, 4), 0 if (j == 0 and k < 2) else v(d, 4))
        def s1(c):
            for mt in range(2):
                a.wait_lg(f"y{c}{mt}")
                cplx(O1[c] + 8 * mt, O1[c] + 8 * mt + 4, lambda j: yf(c, mt, j, 0), lambda j: yf(c, mt, j, 1), lambda j: F64C + 4 * j, lambda j: F64S + 4 * j, lambda j: NS64 + 4 * j, 2, True)
        def s2(c):
            for mt in range(2):
                for i in range(4): self.cmul_tw(TT + 4 * mt + i, TT + 8 + 4 * mt + i, O1[c] + 8 * mt + i, O1[c] + 8 * mt + 4 + i, TW1 + 4 * mt + i, False)
            self.pack_bf(BR[c], TT, 16)
            for md in range(2):
                cplx(O2[c] + 8 * md, O2[c] + 8 * md + 4, lambda j: BR[c], lambda j: BR[c] + 4, lambda j: F32C + 4 * md, lambda j: F32S + 4 * md, lambda j: NS32 + 4 * md, 1, False)
        def wread():
            a.wait_vm("wp")
            for c in range(2):
                for md in range(2): I("ds_read_b128", v(vWP + 8 * c + 4 * md, 4), v(self.aWP + c), mods=f"offset:{2048*md}", tag="wp")
        def s3(c):
            a.wait_lg("wp")
            for k in range(8):
                md, i = k >> 2, k & 3; re, im = O2[c] + 8 * md + i, O2[c] + 8 * md + 4 + i; w = vWP + 8 * c + 4 * md + (i >> 1)
                if i & 1: I("v_and_b32", v(2), "0xffff0000", v(w)); I("v_and_b32", v(3), "0xffff0000", v(w + 2))
                else: I("v_lshlrev_b32", v(2), 16, v(w)); I("v_lshlrev_b32", v(3), 16, v(w + 2))
                I("v_mul_f32", v(TT + k), v(re), v(2)); I("v_mul_f32", v(TT + 8 + k), v(im), v(2))
                I("v_fma_f32", v(TT + k), "-" + v(im), v(3), v(TT + k)); I("v_fmac_f32", v(TT + 8 + k), v(re), v(3))
            self.pack_bf(BR[c], TT, 16)
            for nb in range(2):
                cplx(O1[c] + 8 * nb, O1[c] + 8 * nb + 4, lambda j: BR[c], lambda j: BR[c] + 4, lambda j: F32C + 4 * nb, lambda j: NS32 + 4 * nb, lambda j: F32S + 4 * nb, 1, True)
        def s3b(c):
            for nb in range(2):
                for i in range(4): self.cmul_tw(TT + 8 * nb + i, TT + 8 * nb + 4 + i, O1[c] + 8 * nb + i, O1[c] + 8 * nb + 4 + i, TW2 + 4 * nb + i, True)
            self.pack_bf(BR[c], TT, 16)
            for nb in range(2):
                for ri in range(2): I("ds_write_b64", v(aEW), v(BR[c] + 4 * nb + 2 * ri, 2), mods=f"offset:{c*8192+ri*4096+nb*1024}")
        s1(0); s1(1); s2(0); wread(); s2(1); s3(0); s3(1); s3b(0); s3b(1)
        self.lds_sync(1, 2)
        ef = lambda mt, col, ri, j: YF[mt] + 4 * ((col * 2 + ri) * 2 + j)
        for mt in range(2):
            for col in range(2):
                for ri in range(2):
                    for j in range(2): I("ds_read_b128", v(ef(mt, col, ri, j), 4), v(aER), mods=f"offset:{col*8192+ri*4096+j*2048+mt*1024}", tag=f"e{mt}{col}")
        I("s_lshl_b32", s(sA1), s(sP), 14); I("s_add_u32", s(sA1), s(sA1), WS_Z); I("s_or_b32", s(sA1), s(sA1), s(sPOK))
        for mt in range(2):
            for col in range(2):
                a.wait_lg(f"e{mt}{col}")
                cplx(O1[mt] + 8 * col, O1[mt] + 8 * col + 4, lambda j: ef(mt, col, 0, j), lambda j: ef(mt, col, 1, j), lambda j: F64C + 4 * j, lambda j: NS64 + 4 * j, lambda j: F64S + 4 * j, 2, True)
        for mt in range(2):
            for u in range(2):
                pk = TT + 8 * mt + 4 * u
                for ii in range(2):
                    for col in range(2):
                        i = 2 * u + ii
                        I("v_cvt_pk_bf16_f32", v(pk + 2 * ii + col), v(O1[mt] + 8 * col + i), v(O1[mt] + 8 * col + 4 + i))
                I("buffer_store_dwordx4", v(pk, 4), v(aZS), srd(WS), s(sA1), mods=f"offen offset:{128*mt+64*u} sc1", tag="z")
        self.stamp(8)

    def z_arrive(self):
        a = self.a; I = a.I
        I("v_mov_b32", v(2), L_CNT + 8); I("v_mov_b32", v(3), 1)
        I("s_mov_b64", "exec", 1); I("ds_add_rtn_u32", v(4), v(2), v(3)); I("s_mov_b64", "exec", -1)
        a.wait_lg0()
        I("v_readfirstlane_b32", s(sA0), v(4))
        I("s_lshl_b32", s(sA1), s(sP), 5); I("s_add_u32", s(sA1), s(sA1), WS_FZ); I("s_or_b32", s(sA1), s(sA1), s(sPOK))
        I("s_cmp_eq_u32", s(sA0), 3); I("s_cselect_b32", s(sA1), s(sA1), BIG)
        self.flag_store(s(sA1), 2)

    def gemm2_c(self):
        a = self.a; I = a.I; M = "v_mfma_f32_16x16x32_bf16"
        GA_, SA_, AF, BQ, XF, ZI = 8, 48, (88, 108), 128, 192, 204
        aH, aZ, aT, aX, aRW, aRR, aZ3, aF = 208, 210, 212, 214, 215, 216, 217, 218
        I("s_and_b32", s(sT4), s(sWV), 1); I("s_lshr_b32", s(sT5), s(sWV), 1)
        I("v_lshlrev_b32", v(2), 4, v(0)); I("v_and_b32", v(3), 15, v(0)); I("v_lshrrev_b32", v(4), 4, v(0))
        I("s_mul_i32", s(sT0), s(sT5), 49152); I("v_add_u32", v(aH), s(sT0), v(2)); I("s_sub_u32", s(sT0), 49152, s(sT0)); I("v_add_u32", v(aH + 1), s(sT0), v(2))
        I("v_lshlrev_b32", v(5), 15, v(4)); I("v_lshl_add_u32", v(5), v(3), 3, v(5))
        I("s_lshl_b32", s(sT0), s(sT5), 7); I("v_add_u32", v(aZ), s(sT0), v(5)); I("s_sub_u32", s(sT0), 128, s(sT0)); I("v_add_u32", v(aZ + 1), s(sT0), v(5))
        I("s_mul_i32", s(sT0), s(sT5), 10240); I("v_add_u32", v(aT), s(sT0), v(2)); I("v_add_u32", v(aT + 1), 3 * SLOT2, v(aT))
        I("s_mul_i32", s(sT0), s(sWV), 10240); I("v_add_u32", v(aRW), s(sT0), v(2)); I("s_xor_b32", s(sT0), s(sWV), 2); I("s_mul_i32", s(sT0), s(sT0), 10240); I("v_add_u32", v(aRR), s(sT0), v(2))
        I("s_lshl1_add_u32", s(sT0), s(sTQ), s(sT4))
        I("s_mul_i32", s(sT6), s(sT0), 2 * 49152); I("s_lshl_b32", s(sT1), s(sT5), 13); I("s_add_u32", s(sT6), s(sT6), s(sT1)); I("s_add_u32", s(sT6), s(sT6), WS_H)
        I("s_lshl_b32", s(sWB), s(sT0), 8); I("s_mul_i32", s(sT1), s(sT5), 80 * 16384); I("s_add_u32", s(sT3), s(sWB), WS_Z + 160 * 16384)
        I("s_add_u32", s(sWB), s(sWB), s(sT1)); I("s_add_u32", s(sWB), s(sWB), WS_Z)
        I("s_lshl1_add_u32", s(sT0), s(sT0), s(sT5)); I("s_mul_i32", s(sT0), s(sT0), 16 * 1280); I("s_mul_i32", s(sT1), s(sNG), 160); I("s_add_u32", s(sA3), s(sT0), s(sT1))
        I("v_mul_u32_u24", v(5), 1280, v(3)); I("v_mad_u32_u24", v(aX), v(4), 40, v(5))
        I("s_lshl_b32", s(sT0), s(sT5), 7); I("v_lshl_add_u32", v(aZ3), v(3), 3, s(sT0))
        I("v_and_b32", v(5), 31, v(0)); I("v_lshlrev_b32", v(aF), 5, v(5)); I("s_lshl_b32", s(sA2), s(sTQ), 10); I("s_add_u32", s(sA2), s(sA2), WS_FH)
        I("s_mov_b32", s(sT5), s(sTAU))
        a.wait_vm("h2"); self.flag_store(s(sT7), 2, level=2)
        I("buffer_load_dwordx4", v(XF, 4), v(aX), srd(X), s(sA3), mods="offen", tag="x")
        I("buffer_load_dwordx4", v(XF + 4, 4), v(aX), srd(X), s(sA3), mods="offen offset:16", tag="x")
        I("buffer_load_dwordx2", v(XF + 8, 2), v(aX), srd(X), s(sA3), mods="offen offset:32", tag="x")
        self.stamp(8)
        self.spin([lambda: I("buffer_load_dword", v(5), v(aF), srd(WS), s(sA2), mods="offen sc1")], [5], level=0)
        self.stamp(9)
        def bfrag(q, u, tt): return BQ + 16 * (q % 4) + 4 * (2 * u + tt)
        def bload(q):
            if 'nob' in self.exp: return
            if q < 12:
                I("s_add_u32", s(sT0), s(sSG), q); I("s_and_b32", s(sT0), s(sT0), 3); I("s_lshl_b32", s(sT0), s(sT0), 11); I("s_add_u32", s(sT0), s(sT0), s(sT6))
                if q >= 4: I("s_add_u32", s(sT0), s(sT0), (q >> 2) * 16384)
                for u in range(2):
                    for tt in range(2): I("buffer_load_dwordx4", v(bfrag(q, u, tt), 4), v(aH + tt), srd(WS), s(sT0), mods=f"offen offset:{1024*u} sc1", tag=f"b{q}_{u}")
            elif q < 17:
                if q == 12: I("buffer_load_dword", v(ZI), v(aZ3), srd(WS), s(sT3), mods="offen sc1", tag="b12_0")
                I("s_lshl_b32", s(sT0), s(sT5), 18); I("s_add_u32", s(sT0), s(sT0), s(sWB)); self.inc_mod(sT5, 5)
                for u in range(2):
                    for hp in range(2):
                        if u or hp: I("s_add_u32", s(sT0), s(sT0), 16384 if hp else 8 * 16384 - 16384)
                        for tt in range(2): I("buffer_load_dwordx2", v(bfrag(q, u, tt) + 2 * hp, 2), v(aZ + tt), srd(WS), s(sT0), mods="offen sc1", tag=f"b{q}_{u}")
        def areads(q, u):
            slot = q % NSLOT2; hi = slot // 3; off = (slot % 3) * SLOT2 + u * 5120; b = AF[u]
            return [("ds_read_b128", v(b + 4 * j, 4), v(aT + hi), f"offset:{off + 1024*j}", f"a{q}_{u}_{j}") for j in range(5)]
        def group(q, u, R, mid=None):
            acc = GA_ if q < 12 else SA_
            first = (q, u) in ((0, 0), (12, 0))
            a.wait_vm(f"b{q}_{u}")
            if (q, u) == (12, 0):
                I("v_lshlrev_b32", v(ZI), 16, v(ZI)); I("v_xor_b32", v(ZI + 1), "0x80000000", v(ZI)); I("v_mov_b32", v(ZI + 2), v(ZI)); I("v_mov_b32", v(ZI + 3), v(ZI + 1))
            k = 0
            for j in range(5):
                a.wait_lg(f"a{q}_{u}_{j}")
                for tt in range(2):
                    d = v(acc + 20 * tt + 4 * j, 4)
                    c = d if not first else (v(ZI, 4) if (q == 12 and tt == 0) else 0)
                    I(M, d, v(AF[u] + 4 * j, 4), v(bfrag(q, u, tt), 4), c)
                    if R: o = R.pop(0); I(o[0], o[1], o[2], mods=o[3], tag=o[4])
                    if k == 5 and mid: mid()
                    k += 1
        for q in range(3): bload(q)
        I("s_barrier")
        self.stamp(10)
        for q in range(17):
            R = areads(q, 0)
            if q == 0:
                for o in R: I(o[0], o[1], o[2], mods=o[3], tag=o[4])
            else:
                group(q - 1, 1, R)
            group(q, 0, areads(q, 1), mid=lambda: bload(q + 3))
            if q < 16: I("s_barrier")
            if q == 11: self.stamp(11)
        group(16, 1, [])
        self.stamp(12)
        for j in range(5):
            I("ds_write_b128", v(aRW), v(GA_ + 20 + 4 * j, 4), mods=f"offset:{1024*j}")
            I("ds_write_b128", v(aRW), v(SA_ + 20 + 4 * j, 4), mods=f"offset:{5120+1024*j}")
        a.wait_lg0(); I("s_barrier")
        PG, PS = 88, 108
        for j in range(5):
            I("ds_read_b128", v(PG + 4 * j, 4), v(aRR), mods=f"offset:{1024*j}", tag=f"p{j}")
            I("ds_read_b128", v(PS + 4 * j, 4), v(aRR), mods=f"offset:{5120+1024*j}", tag=f"p{j}")
        a.wait_vm("x")
        OP = 128; T = 140
        for j in range(5):
            a.wait_lg(f"p{j}")
            g, sp = GA_ + 4 * j, SA_ + 4 * j
            for i in range(4): I("v_add_f32", v(g + i), v(g + i), v(PG + 4 * j + i))
            for i in range(4): I("v_mul_f32", v(T + i), fl(-1.4426950408889634), v(g + i))
            for i in range(4): I("v_exp_f32", v(T + i), v(T + i))
            for i in range(4): I("v_add_f32", v(sp + i), v(sp + i), v(PS + 4 * j + i))
            for i in range(4): I("v_add_f32", v(T + i), 1.0, v(T + i))
            for i in range(4): I("v_rcp_f32", v(T + i), v(T + i))
            for i in range(4): I("v_mul_f32", v(g + i), v(g + i), v(sp + i))
            for p in range(2):
                I("v_lshlrev_b32", v(T + 4 + 2 * p), 16, v(XF + 2 * j + p)); I("v_and_b32", v(T + 5 + 2 * p), "0xffff0000", v(XF + 2 * j + p))
            for i in range(4): I("v_fma_f32", v(g + i), v(g + i), v(T + i), v(T + 4 + i))
            self.pack_bf(OP + 2 * j, g, 4)
        I("buffer_store_dwordx4", v(OP, 4), v(aX), srd(OUT), s(sA3), mods="offen")
        I("buffer_store_dwordx4", v(OP + 4, 4), v(aX), srd(OUT), s(sA3), mods="offen offset:16")
        I("buffer_store_dwordx2", v(OP + 8, 2), v(aX), srd(OUT), s(sA3), mods="offen offset:32")
        self.stamp(13)

    def t_unit(self, it, js):
        if 'not' in self.exp: return
        a = self.a; I = a.I; DL, G4, TT = 24, 29, 180; d = 60 + 24 * it + 8 * js
        if js == 0:
            I("s_lshl1_add_u32", s(sA0), s(sT7), s(sA3)); I("s_lshl_b32", s(sA0), s(sA0), 4); self.inc_mod(sT7, 5)
            I("v_cvt_f32_u32", v(30), s(sA0)); I("v_add_f32", v(30), v(30), v(G4))
        I("v_mul_f32", v(31), v(30), v(DL + js)); I("v_fract_f32", v(31), v(31))
        c, sn = self.trig(DL + js, 31, [0, 1, 2, 3], TT)
        for p in range(4): I("v_cvt_pk_bf16_f32", v(d + p), v(c + p), "-" + v(sn + p))
        for p in range(4): I("v_alignbit_b32", v(d + 4 + p), v(d + p), v(d + p), v(27))
        for p in range(4): I("v_xor_b32", v(d + 4 + p), v(28), v(d + 4 + p))
    def gemm2_l(self):
        a = self.a; I = a.I
        for q in range(self.npre + 1, 5): self.ring_dma(q)
        DL, G4 = 24, 29
        I("v_and_b32", v(2), 15, v(0)); I("v_lshrrev_b32", v(3), 2, v(2)); I("v_mul_u32_u24", v(3), 20, v(3)); I("v_and_b32", v(2), 3, v(2)); I("v_add_u32", v(3), v(2), v(3))
        I("s_mul_i32", s(sT0), s(sNG), 80); I("s_lshr_b32", s(sT1), s(sWL), 1); I("s_lshl3_add_u32", s(sT0), s(sT1), s(sT0)); I("v_add_u32", v(3), s(sT0), v(3)); I("v_cvt_f32_u32", v(3), v(3))
        for j in range(3):
            I("v_add_f32", v(4), fl(4.0 * j), v(3)); I("v_mul_f32", v(DL + j), fl(1 / 640), v(4))
        I("v_and_b32", v(4), 1, v(2)); I("v_lshlrev_b32", v(27), 4, v(4))
        I("v_mov_b32", v(28), 0); I("v_mov_b32", v(4), "0x80000000"); I("v_cmp_eq_u32", "vcc", 1, v(2)); I("v_cndmask_b32", v(28), v(28), v(4), "vcc")
        I("v_mov_b32", v(4), "0x80008000"); I("v_cmp_eq_u32", "vcc", 2, v(2)); I("v_cndmask_b32", v(28), v(28), v(4), "vcc")
        I("v_mov_b32", v(4), "0x8000"); I("v_cmp_eq_u32", "vcc", 3, v(2)); I("v_cndmask_b32", v(28), v(28), v(4), "vcc")
        I("v_lshrrev_b32", v(3), 4, v(0)); I("v_lshlrev_b32", v(3), 2, v(3)); I("v_cvt_f32_u32", v(G4), v(3))
        I("s_and_b32", s(sA3), s(sWL), 1); I("s_mov_b32", s(sT7), s(sTAU))
        I("s_mul_i32", s(sT0), s(sA3), 5120); I("s_lshl_b32", s(sT1), s(sT1), 11); I("s_add_u32", s(sT0), s(sT0), s(sT1))
        I("v_lshl_add_u32", v(32), v(0), 4, s(sT0)); I("v_add_u32", v(33), 3 * SLOT2, v(32))
        I("v_and_b32", v(2), 31, v(0)); I("v_lshlrev_b32", v(34), 5, v(2)); I("s_lshl_b32", s(sA2), s(sTQ), 10); I("s_add_u32", s(sA2), s(sA2), WS_FH)
        I("s_lshl_b32", s(sT0), s(sWL), 6); I("v_add_u32", v(2), s(sT0), v(0)); I("v_min_u32", v(2), 160, v(2)); I("v_lshlrev_b32", v(19), 5, v(2)); I("s_mov_b32", s(sT6), WS_FZ)
        self.stamp(9)
        units = [(it, js) for it in range(5) for js in range(3)]
        ldh = lambda: I("buffer_load_dword", v(35), v(34), srd(WS), s(sA2), mods="offen sc1", tag="fh")
        ldz = lambda: I("buffer_load_dword", v(35), v(19), srd(WS), s(sT6), mods="offen sc1", tag="fz")
        for q in range(17):
            if q < 12: a.wait_vm(f"r{q}")
            if q == 1: self.spin([ldh], [35], first="fh", level=1)
            if q == 5: self.spin([ldh], [35], first="fh", level=2)
            if q == 9 and 'nofft' not in self.exp: self.spin([ldz], [35], first="fz")
            a.wait_lg0()
            if q in (0, 9): self.stamp(10 if q == 0 else 11)
            I("s_barrier")
            if q in (0, 4): ldh()
            if q == 0: self.ring_dma(5)
            if 2 <= q <= 7: self.ring_dma(q + 4)
            if q == 8: ldz()
            if 8 <= q <= 12:
                it = q - 8; slot = (q + 4) % NSLOT2
                assert (it, 2) not in units
                for js in range(3):
                    for kh in range(2):
                        I("ds_write_b128", v(32 + slot // 3), v(60 + 24 * it + 8 * js + 4 * kh, 4), mods=f"offset:{(slot % 3) * SLOT2 + 1024 * js + 10240 * kh}")
            for _ in range(2):
                if units: self.t_unit(*units.pop(0))
        I("s_barrier")

    def finish(self):
        a = self.a; I = a.I
        if self.prof:
            a.label("L_prof")
            I("s_memtime", s(98, 2)); a.wait_lg0(); I("s_sub_u32", s(sPROF + 14), s(98), s(sPROF + 14)); self.stamp(15)
            I("s_lshl3_add_u32", s(sT0), s(sWG), s(sWV)); I("s_lshl_b32", s(sT0), s(sT0), 7); I("s_add_u32", s(sT0), s(sT0), WS_PROF)
            I("v_mov_b32", v(2), 0); I("s_mov_b64", "exec", 1)
            for k in range(16):
                I("v_mov_b32", v(3), s(sPROF + k)); I("buffer_store_dword", v(3), v(2), srd(WS), s(sT0), mods=f"offen offset:{4*k}")
        a.label("L_end"); I("s_endpgm")

    def build(self):
        a = self.a; I = a.I
        endl = "L_prof" if self.prof else "L_end"
        if self.prof:
            for k in range(1, 16): I("s_mov_b32", s(sPROF + k), 0)
        self.prologue()
        I("s_mov_b32", s(sA3), WS_ST)
        self.row_fft(); self.gemm1(); self.gemm2_c()
        I("s_branch", endl)
        self.loader1(); self.gemm2_l()
        self.finish()
        n = a.pad_hazards()
        hdr = open("recurrent_scan__spectral_gfnet__glu_gated_geglu__prompt.s.ref").read().split("; Override launch")[0]
        txt = hdr + f"; @launch grid=(256,1,1) block=(512,1,1) lds={LDS_BYTES}\n"
        txt += f'.amdgcn_target "amdgcn-amd-amdhsa--gfx950"\n.text\n.globl {NAME}\n.p2align 8\n.type {NAME},@function\n{NAME}:\n'
        txt += a.text()
        txt += f"L_codeend:\n.set PFMAX, ((L_codeend - {NAME}) & ~127) - 128\n"
        nl = (len(a.ins) * 7 // 128 + 31) // 32 + 1
        txt = txt.replace("PFL*128", str(nl * 128)).replace("(1<<PFL)-1", str((1 << nl) - 1))
        txt += f""".section .rodata,"a"
.p2align 6
.amdhsa_kernel {NAME}
  .amdhsa_next_free_vgpr 256
  .amdhsa_next_free_sgpr 102
  .amdhsa_accum_offset 256
  .amdhsa_group_segment_fixed_size 0
  .amdhsa_kernarg_size 80
  .amdhsa_user_sgpr_count 2
  .amdhsa_user_sgpr_kernarg_segment_ptr 1
  .amdhsa_system_sgpr_workgroup_id_x 1
.end_amdhsa_kernel
"""
        return txt, n

if __name__ == "__main__":
    import argparse
    ap = argparse.ArgumentParser(); ap.add_argument("-o", default="k.s"); ap.add_argument("--prof", action="store_true"); ap.add_argument("--wpos", type=int, default=-1); ap.add_argument("--exp", default=""); ap.add_argument("--npre", type=int, default=1)
    args = ap.parse_args()
    txt, n = G(prof=args.prof, wpos=args.wpos, exp=args.exp.split(','), npre=args.npre).build()
    open(args.o, "w").write(txt)
    print("nops", n, "lines", txt.count("\n"))
```

```python
import struct, sys
from asmlib import *
from model import *

NAME = "recurrent_scan__spectral_gfnet__glu_gated_geglu__prompt_kernel"
def fl(x): return "0x%08x" % struct.unpack("<I", struct.pack("<f", x))[0]

SLOT1 = 41024; W1OFF = 16384; UPOFF = 12288 + 32
L_XR = 123072
L_YS = 135360
L_WRAW = 147648
L_YI = 123072
L_EX = 139456
L_CS = 158144
L_CNT = 161216
LDS_BYTES = 161280
SLOT2 = 20480; NSLOT2 = 6
BIG = 0x7fff0000

sWG, sWV = 2, 3
X, WS, W1, WR, WI, WD, OUT = 24, 28, 32, 36, 40, 44, 48
sXCD, sI, sMT, sFS, sCH, sTQ, sNG, sP, sNONCE, sWL = 52, 53, 54, 55, 56, 57, 58, 59, 60, 61
sT0, sT1, sT2, sT3, sT4, sT5, sT6, sT7 = 62, 63, 64, 65, 66, 67, 68, 69
sPOK, sSG, sTAU, sLIM = 70, 71, 72, 73
sA0, sA1, sA2, sA3 = 74, 75, 76, 77
sROLE = 78
sWB = 79
sFFT = 100
sPROF = 80
srd = lambda r: s(r, 4)

F64C, F64S, F32C, F32S, TW1, TW2 = 208, 216, 224, 232, 240, 248
NS64, NS32 = 192, 200
vWP = 36
vE = 1

class G:
    def __init__(self, prof=False, stop=99, wpos=-1, exp=(), npre=1):
        self.npre = npre; self.tlbsh = 19
        self.exp = set(exp)
        self.a = Asm(); self.prof = prof; self.stop = stop; self.wpos = wpos; self.nlab = 0
    def lab(self, p): self.nlab += 1; return f"L_{p}{self.nlab}"
    def stamp(self, k):
        if not self.prof: return
        a = self.a
        a.I("s_memtime" if 'cyc' in self.exp else "s_memrealtime", s(98, 2)); a.wait_lg0(); a.I("s_mov_b32", s(sPROF + k), s(98))

    def trig(self, delta, base, koffs, tmp):
        a = self.a; n = len(koffs); T = []
        for e, k in enumerate(koffs):
            if k == 0: T.append(base)
            else:
                a.I("v_fmamk_f32", v(tmp + e), v(delta), fl(float(k)), v(base)); T.append(tmp + e)
        for e in range(n): a.I("v_cos_f32", v(tmp + n + e), v(T[e]))
        for e in range(n): a.I("v_sin_f32", v(tmp + 2 * n + e), v(T[e]))
        return tmp + n, tmp + 2 * n
    def pack_bf(self, dst, src, n, neg=False):
        sg = "-" if neg else ""
        for p in range(n // 2): self.a.I("v_cvt_pk_bf16_f32", v(dst + p), sg + v(src + 2 * p), sg + v(src + 2 * p + 1))
    def cmul_tw(self, dr, di, r, i, tw, inverse):
        a = self.a
        a.I("v_fma_mix_f32", v(dr), v(r), v(tw), "0", mods="op_sel_hi:[0,1,0]")
        a.I("v_fma_mix_f32", v(di), v(i), v(tw), "0", mods="op_sel_hi:[0,1,0]")
        a.I("v_fma_mix_f32", v(dr), ("-" if inverse else "") + v(i), v(tw), v(dr), mods="op_sel:[0,1,0] op_sel_hi:[0,1,0]")
        a.I("v_fma_mix_f32", v(di), ("" if inverse else "-") + v(r), v(tw), v(di), mods="op_sel:[0,1,0] op_sel_hi:[0,1,0]")
    def mod(self, dst, src, m, tmp):
        a = self.a
        a.I("s_mul_i32", s(tmp), s(src), (65536 + m - 1) // m); a.I("s_lshr_b32", s(tmp), s(tmp), 16)
        a.I("s_mul_i32", s(tmp), s(tmp), m); a.I("s_sub_u32", s(dst), s(src), s(tmp))
    def inc_mod(self, r, m):
        a = self.a
        a.I("s_add_u32", s(r), s(r), 1); a.I("s_cmp_eq_u32", s(r), m); a.I("s_cselect_b32", s(r), 0, s(r))
    def spin(self, loads, regs_, first=None, level=None):
        a = self.a; L = self.lab("poll"); Dn = self.lab("pdone"); C = self.lab("pchk")
        a.I("s_mov_b32", s(sLIM), 20000)
        keep = []
        if first:
            a.wait_vm(first); keep = list(a.vm); a.I("s_branch", C)
        a.label(L)
        for ld in loads: ld()
        a.wait_vm0(); a.vm = keep
        a.label(C)
        if level is None:
            a.I("v_cmp_eq_u32", "vcc", s(sNONCE), v(regs_[0]))
            for r in regs_[1:]:
                a.I("v_cmp_eq_u32", s(sA0, 2), s(sNONCE), v(r)); a.I("s_and_b64", "vcc", "vcc", s(sA0, 2))
        else:
            a.I("s_add_u32", s(sA0), s(sNONCE), level); a.I("v_subrev_u32", v(regs_[0]), s(sA0), v(regs_[0]))
            a.I("v_cmp_ge_u32", "vcc", 2 - level, v(regs_[0]))
        a.I("s_cmp_eq_u64", "vcc", "exec"); a.I("s_cbranch_scc1", Dn)
        a.I("s_sub_u32", s(sLIM), s(sLIM), 1); a.I("s_cmp_eq_u32", s(sLIM), 0); a.I("s_cbranch_scc1", Dn)
        a.I("s_sleep", 1); a.I("s_branch", L)
        a.label(Dn)
    def lds_sync(self, k, t0):
        a = self.a; I = a.I; L = self.lab("ls"); Dn = self.lab("lsd")
        I("v_mov_b32", v(t0), L_CNT + 4 * k); I("v_mov_b32", v(t0 + 1), 1)
        I("s_mov_b64", "exec", 1); I("ds_add_u32", v(t0), v(t0 + 1)); I("s_mov_b64", "exec", -1)
        I("s_mov_b32", s(sLIM), 200000)
        a.label(L)
        I("ds_read_b32", v(t0 + 1), v(t0)); a.wait_lg0()
        I("v_readfirstlane_b32", s(sA0), v(t0 + 1)); I("s_cmp_ge_u32", s(sA0), 4); I("s_cbranch_scc1", Dn)
        I("s_sub_u32", s(sLIM), s(sLIM), 1); I("s_cmp_lg_u32", s(sLIM), 0); I("s_cbranch_scc1", L)
        a.label(Dn)
    def flag_store(self, soff, tmpv, level=0):
        a = self.a
        a.I("v_mov_b32", v(tmpv), s(sNONCE)); a.I("v_mov_b32", v(tmpv + 1), 0)
        if level: a.I("v_add_u32", v(tmpv), level, v(tmpv))
        a.I("s_mov_b64", "exec", 1)
        a.I("buffer_store_dword", v(tmpv), v(tmpv + 1), srd(WS), soff, mods="offen sc1", tag="flag")
        a.I("s_mov_b64", "exec", -1)

    def prologue(self):
        a = self.a; I = a.I
        I("s_cmp_ge_u32", s(sWG), 256); I("s_cbranch_scc1", "L_end")
        I("s_load_dwordx16", s(4, 16), s(0, 2), 0); I("s_load_dwordx4", s(20, 4), s(0, 2), 64)
        if self.prof: I("s_memtime" if 'cyc' in self.exp else "s_memrealtime", s(98, 2))
        I("v_lshrrev_b32", v(1), 6, v(0)); I("v_and_b32", v(0), 63, v(0)); I("v_readfirstlane_b32", s(sWV), v(1))
        if 'nopf' not in self.exp:
            I("s_getpc_b64", s(sT0, 2)); I("s_lshr_b32", s(sT2), s(sWG), 3); I("s_mul_i32", s(sT2), s(sT2), "PFL*128")
            I("v_lshl_add_u32", v(4), v(0), 7, s(sT2)); I("v_min_u32", v(4), "PFMAX", v(4)); I("v_mov_b32", v(5), s(sT1))
            I("v_add_co_u32", v(4), "vcc", s(sT0), v(4)); I("v_addc_co_u32", v(5), "vcc", 0, v(5), "vcc")
            I("s_cmp_lg_u32", s(sWV), 7); I("s_cbranch_scc1", "L_nopf")
            I("s_mov_b64", "exec", "(1<<PFL)-1")
            I("global_load_dword", v(6), v(4, 2), "off"); a.vm.pop()
            I("s_mov_b64", "exec", -1)
            a.label("L_nopf")
        I("s_and_b32", s(sXCD), s(sWG), 7); I("s_lshr_b32", s(sI), s(sWG), 3)
        I("s_and_b32", s(sT0), s(sXCD), 1); I("s_lshl_b32", s(sT0), s(sT0), 3); I("s_and_b32", s(sT1), s(sI), 7); I("s_add_u32", s(sMT), s(sT0), s(sT1))
        I("s_lshr_b32", s(sT0), s(sXCD), 1); I("s_lshl_b32", s(sT0), s(sT0), 2); I("s_lshr_b32", s(sT1), s(sI), 3); I("s_add_u32", s(sFS), s(sT0), s(sT1))
        I("s_add_u32", s(sT0), s(sMT), s(sFS)); self.mod(sCH, sT0, 10, sT1)
        I("s_and_b32", s(sT0), s(sI), 3); I("s_lshl2_add_u32", s(sTQ), s(sXCD), s(sT0)); I("s_lshr_b32", s(sNG), s(sI), 2)
        I("s_add_u32", s(sT0), s(sT0), s(sNG)); I("s_and_b32", s(sSG), s(sT0), 3)
        self.mod(sTAU, sNG, 5, sT1)
        self.mod(sT0, sI, 20, sT1); I("s_mul_i32", s(sP), s(sXCD), 20); I("s_add_u32", s(sP), s(sP), s(sT0))
        I("s_cmp_lt_u32", s(sI), 20); I("s_cselect_b32", s(sPOK), 0, BIG)
        I("s_cmp_eq_u32", s(sWG), 160); I("s_cselect_b32", s(sP), 160, s(sP)); I("s_cselect_b32", s(sPOK), 0, s(sPOK))
        I("s_and_b32", s(sWL), s(sWV), 3)
        I("s_cmp_eq_u32", s(sPOK), 0); I("s_cselect_b32", s(sFFT), 1, 0)
        a.wait_lg0()
        if self.prof:
            I("s_mov_b32", s(sPROF), s(98)); I("s_memtime", s(98, 2)); a.wait_lg0(); I("s_mov_b32", s(sPROF + 14), s(98))
        for r, p, n in ((X, 4, S * D * 2), (WS, 22, WS_END), (WR, 6, S * 642), (WI, 8, S * 642), (WD, 16, F * D * 2), (OUT, 18, S * D * 2)):
            I("s_mov_b32", s(r), s(p)); I("s_mov_b32", s(r + 1), s(p + 1)); I("s_mov_b32", s(r + 2), n); I("s_mov_b32", s(r + 3), "0x20000")
        I("s_bitcmp1_b32", s(sWV), 0)
        I("s_cselect_b32", s(W1), s(14), s(12)); I("s_cselect_b32", s(W1 + 1), s(15), s(13)); I("s_mov_b32", s(W1 + 2), D * F * 2); I("s_mov_b32", s(W1 + 3), "0x20000")
        I("v_mov_b32", v(2), 0)
        I("buffer_load_dword", v(vE), v(2), srd(WS), 0, mods="offen sc1", tag="E")
        I("s_cmp_ge_u32", s(sWV), 4); I("s_cselect_b32", s(sROLE), 1, 0)
        I("s_cmp_eq_u32", s(sROLE), 1); I("s_cbranch_scc1", "L_ld0")
        I("s_setprio", 1)
        I("s_lshr_b32", s(sT0), s(sWG), 7); I("s_lshl_b32", s(sT0), s(sT0), 5)
        I("s_lshr_b32", s(sT1), s(sWV), 1); I("s_lshl4_add_u32", s(sT0), s(sT1), s(sT0))
        I("s_bfe_u32", s(sT1), s(sWG), 5 | (2 << 16)); I("s_lshl2_add_u32", s(sT0), s(sT1), s(sT0))
        I("s_and_b32", s(sT1), s(sWV), 1); I("s_lshl1_add_u32", s(sT0), s(sT1), s(sT0))
        I("s_lshl_b32", s(sT0), s(sT0), 5); I("s_and_b32", s(sT1), s(sWG), 31); I("s_add_u32", s(sT6), s(sT0), s(sT1))
        I("s_mul_i32", s(sT0), s(sT6), 1280)
        I("s_mul_i32", s(sT7), s(sWV), 3072); I("s_add_u32", s(sT7), s(sT7), L_XR)
        I("s_mov_b32", "m0", s(sT7))
        I("v_lshlrev_b32", v(2), 4, v(0))
        I("v_add_u32", v(3), 39680, v(2)); I("v_cmp_gt_u32", "vcc", 16, v(0)); I("v_cndmask_b32", v(4), v(3), v(2), "vcc")
        I("v_mov_b32", v(5), BIG); I("v_cmp_gt_u32", "vcc", 32, v(0)); I("v_cndmask_b32", v(5), v(5), v(3), "vcc")
        I("buffer_load_dwordx4", v(2), srd(X), s(sT0), mods="offen lds", tag="xr")
        I("buffer_load_dwordx4", v(4), srd(X), s(sT0), mods="offen offset:1024 lds", tag="xr")
        I("buffer_load_dwordx4", v(5), srd(X), s(sT0), mods="offen offset:2048 lds", tag="xr")
        self.cvm = a.vm

    def consts(self):
        a = self.a; I = a.I
        I("v_and_b32", v(60), 15, v(0)); I("v_lshrrev_b32", v(61), 4, v(0))
        I("v_cvt_f32_u32", v(62), v(60)); I("v_lshlrev_b32", v(61), 2, v(61)); I("v_cvt_f32_u32", v(63), v(61))
        I("s_lshl_b32", s(sT0), s(sWL), 4); I("v_cvt_f32_u32", v(64), s(sT0))
        I("v_add_f32", v(65), v(62), v(64))
        I("v_mul_f32", v(66), fl(1 / 64), v(65)); I("v_mul_f32", v(67), v(63), v(66))
        for j in range(2):
            c, sn = self.trig(66, 67, [32 * j + 16 * (e >> 2) + (e & 3) for e in range(8)], 70)
            self.pack_bf(F64C + 4 * j, c, 8); self.pack_bf(F64S + 4 * j, sn, 8)
        I("v_mul_f32", v(66), fl(1 / 2048), v(65)); I("v_mul_f32", v(67), v(63), v(66))
        c, sn = self.trig(66, 67, [16 * (e >> 2) + (e & 3) for e in range(8)], 70)
        for e in range(8): I("v_cvt_pk_f16_f32", v(TW1 + e), v(c + e), v(sn + e))
        I("v_add_f32", v(64), v(64), v(63))
        for md in range(2):
            if md: I("v_add_f32", v(62), fl(16.0), v(62))
            I("v_mul_f32", v(66), fl(1 / 32), v(62)); I("v_mul_f32", v(67), v(63), v(66))
            c, sn = self.trig(66, 67, [16 * (e >> 2) + (e & 3) for e in range(8)], 70)
            self.pack_bf(F32C + 4 * md, c, 8); self.pack_bf(F32S + 4 * md, sn, 8)
            I("v_mul_f32", v(66), fl(1 / 2048), v(62)); I("v_mul_f32", v(67), v(64), v(66))
            c, sn = self.trig(66, 67, [0, 1, 2, 3], 70)
            for e in range(4): I("v_cvt_pk_f16_f32", v(TW2 + 4 * md + e), v(c + e), v(sn + e))
        for k in range(8): I("v_xor_b32", v(NS64 + k), "0x80008000", v(F64S + k)); I("v_xor_b32", v(NS32 + k), "0x80008000", v(F32S + k))

    def nonce(self):
        a = self.a; I = a.I
        a.wait_vm("E")
        I("v_readfirstlane_b32", s(sNONCE), v(vE))
        I("s_mul_i32", s(sNONCE), s(sNONCE), "0x9e3779b1"); I("s_add_u32", s(sNONCE), s(sNONCE), "0x7f4a7c15")

    def row_fft(self):
        a = self.a; I = a.I; a.vm = self.cvm
        FC, FS, TW, G0, G1, G2 = 8, 16, 24, 36, 40, 44
        I("v_and_b32", v(60), 31, v(0)); I("v_lshrrev_b32", v(61), 5, v(0))
        I("v_cvt_f32_u32", v(62), v(60)); I("v_cvt_f32_u32", v(63), v(61))
        I("v_mul_f32", v(66), fl(1 / 32), v(62)); I("v_mul_f32", v(67), fl(8.0), v(63)); I("v_mul_f32", v(67), v(67), v(66))
        for jj in range(2):
            c, sn = self.trig(66, 67, [16 * jj + e for e in range(8)], 70)
            self.pack_bf(FC + 4 * jj, c, 8); self.pack_bf(FS + 4 * jj, sn, 8, neg=True)
        I("v_mul_f32", v(63), 4.0, v(63))
        I("v_mul_f32", v(66), fl(1 / 640), v(62)); I("v_mul_f32", v(67), v(63), v(66))
        c, sn = self.trig(66, 67, [8 * (e >> 2) + (e & 3) for e in range(12)], 70)
        for e in range(12): I("v_cvt_pk_f16_f32", v(TW + e), v(c + e), v(sn + e))
        I("v_cmp_gt_u32", "vcc", 32, v(0))
        for e in range(8, 12): I("v_cndmask_b32", v(TW + e), 0, v(TW + e), "vcc")
        I("v_lshrrev_b32", v(64), 1, v(60)); I("v_cvt_f32_u32", v(64), v(64)); I("v_and_b32", v(65), 1, v(60)); I("v_cvt_f32_u32", v(65), v(65))
        I("v_mul_f32", v(66), fl(1 / 20), v(64)); I("v_mul_f32", v(67), v(63), v(66)); I("v_fmac_f32", v(67), fl(0.25), v(65))
        c, sn = self.trig(66, 67, [8 * (e >> 2) + (e & 3) for e in range(12)], 70)
        self.pack_bf(G0, c, 8); self.pack_bf(G1, sn, 8); self.pack_bf(G2, c + 8, 4); self.pack_bf(G2 + 2, sn + 8, 4)
        aT, aS, aY, fA, fB, e0 = 48, 49, 50, 51, 52, 53
        I("v_and_b32", v(64), 15, v(0)); I("v_lshrrev_b32", v(65), 2, v(64)); I("v_lshl_add_u32", v(65), v(61), 3, v(65))
        I("v_mul_u32_u24", v(65), 40, v(65)); I("v_and_b32", v(64), 3, v(64)); I("v_lshl_add_u32", v(65), v(64), 3, v(65))
        I("v_and_b32", v(64), 16, v(0)); I("v_lshl_add_u32", v(65), v(64), 1, v(65)); I("v_add_u32", v(aT), s(sT7), v(65))
        I("v_mul_u32_u24", v(64), 1280, v(61)); I("v_mad_u32_u24", v(64), v(60), 40, v(64)); I("v_add_u32", v(aS), s(sT7), v(64))
        I("s_lshl_b32", s(sT0), s(sWV), 2); I("s_add_u32", s(sT0), s(sT0), L_YS)
        I("v_lshlrev_b32", v(64), 5, v(60)); I("v_lshl_add_u32", v(64), v(61), 11, v(64)); I("v_add_u32", v(aY), s(sT0), v(64))
        I("v_cmp_eq_u32", "vcc", 0, v(0)); I("v_cndmask_b32", v(fA), 1.0, 0.5, "vcc"); I("v_cndmask_b32", v(e0), 0, 1.0, "vcc")
        I("v_cmp_eq_u32", "vcc", 32, v(0)); I("v_cndmask_b32", v(fB), 1.0, 0.5, "vcc")
        I("v_lshl_add_u32", v(54), v(61), 5, s(sT6)); I("v_lshlrev_b32", v(54), 3, v(54))
        self.gemm1_setup()
        self.nonce()
        a.wait_vm("xr")
        self.stamp(1)
        SD, AF = 60, 72
        for u in range(5): I("ds_read_b64", v(SD + 2 * u, 2), v(aS), mods=f"offset:{8*u}", tag="sd")
        for r in range(2):
            for jj in range(2):
                for rd in range(2):
                    I("ds_read_b64_tr_b16", v(AF + 8 * r + 4 * jj + 2 * rd, 2), v(aT), mods=f"offset:{1280*r+640*jj+160*rd}", tag=f"af{r}")
        A1 = 112
        def st1(r):
            for ri, Fm in ((0, FC), (1, FS)):
                d = v(A1 + 32 * r + 16 * ri, 16)
                I("v_mfma_f32_32x32x16_bf16", d, v(AF + 8 * r, 4), v(Fm, 4), 0)
                I("v_mfma_f32_32x32x16_bf16", d, v(AF + 8 * r + 4, 4), v(Fm + 4, 4), d)
        a.wait_lg("af0"); st1(0); a.wait_lg("af1"); st1(1)
        s0, s1, q0, q1, t0, t1 = 88, 89, 90, 91, 92, 93
        for u in range(10):
            I("v_lshlrev_b32", v(t0), 16, v(SD + u)); I("v_and_b32", v(t1), "0xffff0000", v(SD + u))
            if u == 0:
                I("v_mov_b32", v(s0), v(t0)); I("v_mov_b32", v(s1), v(t1)); I("v_mul_f32", v(q0), v(t0), v(t0)); I("v_mul_f32", v(q1), v(t1), v(t1))
            else:
                I("v_add_f32", v(s0), v(s0), v(t0)); I("v_add_f32", v(s1), v(s1), v(t1)); I("v_fmac_f32", v(q0), v(t0), v(t0)); I("v_fmac_f32", v(q1), v(t1), v(t1))
        I("v_add_f32", v(s0), v(s0), v(s1)); I("v_add_f32", v(q0), v(q0), v(q1))
        for sh in (1, 2, 4, 8):
            for r_ in (s0, q0): I("v_add_f32_dpp", v(r_), v(r_), v(r_), mods=f"row_shr:{sh} row_mask:0xf bank_mask:0xf bound_ctrl:1")
        for r_ in (s0, q0): I("v_add_f32_dpp", v(r_), v(r_), v(r_), mods="row_bcast:15 row_mask:0xa bank_mask:0xf")
        I("v_mul_f32", v(s0), fl(1 / 640), v(s0)); I("v_mul_f32", v(q0), fl(1 / 640), v(q0))
        I("v_fma_f32", v(q0), "-" + v(s0), v(s0), v(q0)); I("v_max_f32", v(q0), 0, v(q0))
        I("v_cvt_pk_bf16_f32", v(t0), v(s0), v(q0))
        I("v_and_b32", v(t1), "0xffff0000", v(t0)); I("v_add_f32", v(t1), fl(1e-5), v(t1))
        I("v_cvt_pk_bf16_f32", v(t1), v(t1), v(t1)); I("v_and_b32", v(t1), "0xffff0000", v(t1))
        I("v_sqrt_f32", v(t1), v(t1)); I("v_cvt_pk_bf16_f32", v(t1), v(t1), v(t1)); I("v_and_b32", v(t1), "0xffff0000", v(t1))
        I("v_rcp_f32", v(q1), v(t1)); I("v_and_b32", v(94), "0xffff", v(t0)); I("v_or_b32", v(94), v(94), v(t1)); I("v_mov_b32", v(95), s(sNONCE))
        I("v_mul_f32", v(q1), fl(SC), v(q1)); I("v_lshlrev_b32", v(s1), 16, v(t0)); I("v_mul_f32", v(s1), fl(-640.0), v(s1))
        I("s_mov_b32", "exec_lo", "0x80000000"); I("s_mov_b32", "exec_hi", "0x80000000")
        I("buffer_store_dwordx2", v(94, 2), v(54), srd(WS), s(sA3), mods="offen sc1", tag="gr")
        I("s_mov_b64", "exec", -1)
        I("v_readlane_b32", s(sT0), v(q1), 31); I("v_readlane_b32", s(sT1), v(q1), 63)
        I("v_readlane_b32", s(sT2), v(s1), 31); I("v_readlane_b32", s(sT3), v(s1), 63)
        B2 = 60; A2 = 176; TR, TI = 88, 100
        for r in range(2):
            re, im = A1 + 32 * r, A1 + 32 * r + 16
            for e in range(12): self.cmul_tw(TR + e, TI + e, re + e, im + e, TW + e, False)
            b = B2 + 12 * r
            self.pack_bf(b, TR, 8); self.pack_bf(b + 4, TI, 8); self.pack_bf(b + 8, TR + 8, 4); self.pack_bf(b + 10, TI + 8, 4)
            d = v(A2 + 16 * r, 16)
            I("v_mfma_f32_32x32x16_bf16", d, v(G0, 4), v(b, 4), 0)
            I("v_mfma_f32_32x32x16_bf16", d, v(G1, 4), v(b + 4, 4), d)
            I("v_mfma_f32_32x32x16_bf16", d, v(G2, 4), v(b + 8, 4), d)
        for r in range(2):
            o = A2 + 16 * r
            I("v_fma_f32", v(o), v(e0), s(sT2 + r), v(o))
            I("v_mul_f32", v(o), v(o), v(fA)); I("v_mul_f32", v(o + 8), v(o + 8), v(fB))
            for e in range(12): I("v_mul_f32", v(o + e), s(sT0 + r), v(o + e))
        for e in range(12):
            I("v_cvt_pk_bf16_f32", v(88 + e), v(A2 + e), v(A2 + 16 + e))
        for e in range(12):
            I("ds_write_b32", v(aY), v(88 + e), mods=f"offset:{(e >> 2) * 4096 + ((e & 3) >> 1) * 1024 + (e & 1) * 16}", tag="ys")

    XB, WB, CSW, CSR, GA, SEL, HA, XA, WE, GR = 208, 212, 214, 215, 216, 220, 224, 226, 230, 232
    def gemm1_setup(self):
        a = self.a; I = a.I
        XB, WB, CSW, CSR, GA, SEL, HA = self.XB, self.WB, self.CSW, self.CSR, self.GA, self.SEL, self.HA
        I("s_and_b32", s(sT4), s(sWV), 1); I("s_lshr_b32", s(sT5), s(sWV), 1)
        I("v_and_b32", v(2), 31, v(0)); I("v_lshrrev_b32", v(3), 5, v(0)); I("v_bfe_u32", v(4), v(0), 1, 3)
        I("s_lshl_b32", s(sT0), s(sT4), 13); I("v_lshl_add_u32", v(5), v(2), 7, s(sT0))
        I("s_lshl_b32", s(sT2), s(sT4), 2)
        for sp in range(4):
            I("s_xor_b32", s(sT1), s(sT2), 2 * sp)
            I("v_add_u32", v(6), s(sT1), v(3)); I("v_xor_b32", v(6), v(6), v(4)); I("v_lshl_add_u32", v(XB + sp), v(6), 4, v(5))
        I("v_and_b32", v(6), 15, v(0)); I("v_lshrrev_b32", v(7), 2, v(6)); I("v_lshl_add_u32", v(7), v(3), 3, v(7)); I("v_mul_u32_u24", v(7), 192, v(7))
        I("v_and_b32", v(6), 3, v(6)); I("v_lshl_add_u32", v(7), v(6), 3, v(7))
        I("v_bfe_u32", v(6), v(0), 4, 1); I("v_mul_u32_u24", v(6), UPOFF, v(6)); I("v_add_u32", v(7), v(7), v(6))
        I("s_mul_i32", s(sT0), s(sT5), 96); I("s_add_u32", s(sT0), s(sT0), W1OFF); I("s_mul_i32", s(sT1), s(sT4), 6144)
        I("s_add_u32", s(sT2), s(sT0), s(sT1)); I("s_sub_u32", s(sT3), s(sT0), s(sT1))
        I("v_add_u32", v(WB), s(sT2), v(7)); I("v_add_u32", v(WB + 1), s(sT3), v(7))
        I("s_mul_i32", s(sT0), s(sWV), 768); I("s_add_u32", s(sT0), s(sT0), L_CS); I("v_lshl_add_u32", v(CSW), v(0), 2, s(sT0))
        I("s_xor_b32", s(sT0), s(sWV), 1); I("s_mul_i32", s(sT0), s(sT0), 768); I("s_add_u32", s(sT0), s(sT0), L_CS); I("v_lshl_add_u32", v(CSR), v(0), 2, s(sT0))
        I("s_lshl1_add_u32", s(sT0), s(sMT), s(sT4)); I("s_lshl_b32", s(sT0), s(sT0), 9); I("v_lshl_add_u32", v(GA), v(2), 3, s(sT0))
        I("v_cmp_eq_u32", "vcc", 0, v(2)); I("v_cmp_eq_u32", s(sT0, 2), 20, v(2)); I("s_or_b64", "vcc", "vcc", s(sT0, 2))
        I("v_mov_b32", v(6), "0x3f803f80")
        for k in range(4): I("v_cndmask_b32", v(SEL + k), 0, v(6), "vcc")
        I("v_bfe_u32", v(6), v(0), 4, 1); I("v_mul_u32_u24", v(6), 49152, v(6)); I("v_lshl_add_u32", v(6), v(3), 8, v(6))
        I("v_and_b32", v(7), 15, v(0)); I("v_lshl_add_u32", v(HA), v(7), 4, v(6)); I("v_add_u32", v(HA + 1), 98304, v(HA))

    def gemm1(self):
        a = self.a; I = a.I
        XB, WB, CSW, CSR, GA, SEL, HA, XA, WE, GR = self.XB, self.WB, self.CSW, self.CSR, self.GA, self.SEL, self.HA, self.XA, self.WE, self.GR
        CS, BUF, ACC = 60, (72, 92), 112
        def reads(sp, b, xa, we):
            R = [("ds_read_b128", v(b, 4), v(xa + sp), ""), ("ds_read_b128", v(b + 4, 4), v(xa + sp), "offset:4096")]
            for ft in range(3):
                for rd in range(2):
                    R.append(("ds_read_b64_tr_b16", v(b + 8 + 4 * ft + 2 * rd, 2), v(we + (sp >> 1)), f"offset:{sp*3072 + rd*768 + ft*32}"))
            return R
        def group(b, R, cs=False, gaps=None, zero=False, cszero=False):
            k = 0
            for ft in range(3):
                for tt in range(2):
                    d = v(ACC + 32 * ft + 16 * tt, 16)
                    if 'nomfma' not in self.exp: I("v_mfma_f32_32x32x16_bf16", d, v(b + 8 + 4 * ft, 4), v(b + 4 * tt, 4), 0 if zero else d)
                    for _ in range(2):
                        if R: o = R.pop(0); I(o[0], o[1], o[2], mods=o[3])
                    if cs and tt == 0 and 'nocs' not in self.exp:
                        I("v_mfma_f32_16x16x32_bf16", v(CS + 4 * ft, 4), v(SEL, 4), v(b + 8 + 4 * ft, 4), 0 if cszero else v(CS + 4 * ft, 4))
                    if gaps and k in gaps: gaps[k]()
                    k += 1
        def tail_gaps():
            def g0():
                I("s_add_u32", s(sT1), s(sT1), SLOT1); I("s_cmp_eq_u32", s(sT1), 3 * SLOT1); I("s_cselect_b32", s(sT1), 0, s(sT1))
            def g1():
                for ft in range(3): I("ds_write_b32", v(CSW), v(CS + 4 * ft), mods=f"offset:{256*ft}")
            def g4():
                for k in range(4): I("v_add_u32", v(XA + k), s(sT1), v(XB + k))
                I("v_add_u32", v(WE), s(sT1), v(WB)); I("v_add_u32", v(WE + 1), s(sT1), v(WB + 1))
            return {0: g0, 1: g1, 4: g4}
        a.wait_lg0()
        I("s_mov_b32", s(sT0), 1); I("s_mov_b32", s(sT1), 0)
        self.stamp(2)
        I("s_barrier")
        self.stamp(3)
        for o in reads(0, BUF[0], XB, WB): I(o[0], o[1], o[2], mods=o[3])
        a.wait_lg0()
        group(BUF[0], reads(1, BUF[1], XB, WB), cs=True, zero=True, cszero=True); a.wait_lg0()
        group(BUF[1], reads(2, BUF[0], XB, WB), cs=True); a.wait_lg0()
        group(BUF[0], reads(3, BUF[1], XB, WB), gaps=tail_gaps()); a.wait_lg0()
        I("s_barrier")
        a.label("L_g1")
        def gl():
            I("s_cmp_lg_u32", s(sT0), 6); I("s_cbranch_scc1", "L_g1n")
            for tt in range(2): I("buffer_load_dwordx2", v(GR + 2 * tt, 2), v(GA), srd(WS), s(sA3), mods=f"offen offset:{256*tt} sc1", tag="gl")
            a.label("L_g1n")
        group(BUF[1], reads(0, BUF[0], XA, WE), gaps={4: gl}); a.wait_lg0()
        group(BUF[0], reads(1, BUF[1], XA, WE), cs=True); a.wait_lg0()
        group(BUF[1], reads(2, BUF[0], XA, WE), cs=True); a.wait_lg0()
        tg = tail_gaps()
        def g2(): I("s_add_u32", s(sT0), s(sT0), 1); I("s_cmp_lt_u32", s(sT0), 10)
        tg[2] = g2
        group(BUF[0], reads(3, BUF[1], XA, WE), gaps=tg); a.wait_lg0()
        I("s_barrier")
        I("s_cbranch_scc1", "L_g1")
        self.stamp(4)
        for ft in range(3): I("ds_read_b32", v(20 + ft), v(CSR), mods=f"offset:{256*ft}", tag="cs")
        group(BUF[1], [])
        self.spin([lambda: I("buffer_load_dwordx2", v(GR, 2), v(GA), srd(WS), s(sA3), mods="offen sc1"),
                   lambda: I("buffer_load_dwordx2", v(GR + 2, 2), v(GA), srd(WS), s(sA3), mods="offen offset:256 sc1")], [GR + 1, GR + 3], first="gl")
        a.wait_lg0()
        AC, BC = 72, 84
        I("s_mov_b32", s(sT0), "0x01000100")
        for tt in range(2):
            d = BC + 4 * tt
            I("v_perm_b32", v(d), v(GR + 2 * tt), v(GR + 2 * tt), s(sT0)); I("v_xor_b32", v(d), "0x80008000", v(d))
            for k in range(1, 4): I("v_mov_b32", v(d + k), v(d))
        for ft in range(3):
            c = 20 + ft; d = AC + 4 * ft
            I("v_add_f32", v(c), v(c), v(CS + 4 * ft))
            I("v_cvt_pk_bf16_f32", v(24), v(c), v(c)); I("v_and_b32", v(25), "0xffff0000", v(24)); I("v_sub_f32", v(c), v(c), v(25))
            I("v_cvt_pk_bf16_f32", v(d), v(25), v(c)); I("v_and_b32", v(25), "0xffff0000", v(d)); I("v_sub_f32", v(c), v(c), v(25))
            I("v_cvt_pk_bf16_f32", v(d + 1), v(c), 0); I("v_mov_b32", v(d + 2), 0); I("v_mov_b32", v(d + 3), 0)
            for tt in range(2):
                dd = v(ACC + 32 * ft + 16 * tt, 16)
                I("v_mfma_f32_32x32x16_bf16", dd, v(AC + 4 * ft, 4), v(BC + 4 * tt, 4), dd)
        K0 = -2 * 0.7978845608028654 * 1.4426950408889634; K1 = K0 * 0.044715
        KC = 60
        for tt in range(2):
            k = KC + 6 * tt
            I("v_and_b32", v(24), "0xffff0000", v(GR + 2 * tt)); I("v_rcp_f32", v(25), v(24)); I("v_mul_f32", v(k + 4), v(24), v(24))
            I("v_mul_f32", v(k), fl(K0), v(25)); I("v_mul_f32", v(26), v(25), v(25)); I("v_mul_f32", v(26), v(26), v(25)); I("v_mul_f32", v(k + 2), fl(K1), v(26))
        I("s_lshl1_add_u32", s(sT0), s(sMT), s(sT4)); I("s_mul_i32", s(sT2), s(sT0), 4 * 49152); I("s_lshl1_add_u32", s(sT1), s(sFS), s(sT5))
        I("s_lshl_b32", s(sT3), s(sT1), 9); I("s_add_u32", s(sT2), s(sT2), s(sT3)); I("s_add_u32", s(sT2), s(sT2), WS_H)
        I("s_lshl_b32", s(sT0), s(sT0), 5); I("s_add_u32", s(sT0), s(sT0), s(sT1)); I("s_lshl_b32", s(sT0), s(sT0), 5); I("s_add_u32", s(sT7), s(sT0), WS_FH)
        n = 0
        T, Z_, E_, V_ = 92, 100, 2, 10
        for ft in range(3):
            if ft: I("s_add_u32", s(sT2), s(sT2), 16384)
            for tt in range(2):
                g = ACC + 32 * ft + 16 * tt; u = g + 8; k = KC + 6 * tt; H = 72 + 4 * (n & 1); n += 1
                for p in range(4): I("v_pk_mul_f32", v(T + 2 * p, 2), v(g + 2 * p, 2), v(g + 2 * p, 2))
                for p in range(4): I("v_pk_fma_f32", v(T + 2 * p, 2), v(T + 2 * p, 2), v(k + 2, 2), v(k, 2), mods="op_sel_hi:[1,0,0]")
                for p in range(4): I("v_pk_mul_f32", v(Z_ + 2 * p, 2), v(g + 2 * p, 2), v(T + 2 * p, 2))
                for p in range(8): I("v_exp_f32", v(E_ + p), v(Z_ + p))
                for p in range(4): I("v_pk_mul_f32", v(V_ + 2 * p, 2), v(g + 2 * p, 2), v(u + 2 * p, 2))
                for p in range(4): I("v_pk_fma_f32", v(T + 2 * p, 2), v(E_ + 2 * p, 2), v(k + 4, 2), v(k + 4, 2), mods="op_sel_hi:[1,0,0]")
                for p in range(8): I("v_rcp_f32", v(Z_ + p), v(T + p))
                for p in range(4): I("v_pk_mul_f32", v(V_ + 2 * p, 2), v(V_ + 2 * p, 2), v(Z_ + 2 * p, 2))
                self.pack_bf(H, V_, 8)
                I("buffer_store_dwordx4", v(H, 4), v(HA + tt), srd(WS), s(sT2), mods="offen" if 'hplain' in self.exp else "offen sc1", tag=f"h{ft}")
            if ft and 'nostage' not in self.exp:
                a.wait_vm(f"h{ft-1}"); self.flag_store(s(sT7), 18, level=ft - 1)
        self.stamp(5)

    XD, WDM, RD = 8, 12, 18
    def chunk_a(self, j):
        a = self.a; I = a.I; slot = (j % 3) * SLOT1
        I("s_lshl_b32", s(sT0), s(sCH), 7); I("s_add_u32", s(sT0), s(sT0), s(sT4))
        I("s_add_u32", "m0", s(sT6), slot)
        I("s_mul_i32", s(sWB), s(sCH), 64 * 3072); I("s_add_u32", s(sWB), s(sWB), s(sT5))
        for r in range(4): I("buffer_load_dwordx4", v(self.XD + r), srd(X), s(sT0), mods=f"offen offset:{1024*r} lds", tag=f"c{j}")
        I("s_add_u32", "m0", s(sT6), slot + 4096); I("s_add_u32", s(sT0), s(sT0), 32 * 1280)
        for r in range(4): I("buffer_load_dwordx4", v(self.XD + r), srd(X), s(sT0), mods=f"offen offset:{1024*r} lds", tag=f"c{j}")
        I("s_add_u32", "m0", s(sT7), slot)
        self.inc_mod(sCH, 10)
        for r in range(4): I("buffer_load_dwordx4", v(self.WDM + r), srd(W1), s(sWB), mods=f"offen offset:{1024*r} lds", tag=f"c{j}")
    def chunk_b(self, j):
        a = self.a; I = a.I; slot = (j % 3) * SLOT1
        I("s_add_u32", "m0", s(sT7), slot + 4096)
        for r in range(2): I("buffer_load_dwordx4", v(self.WDM + 4 + r), srd(W1), s(sWB), mods=f"offen offset:{1024*r} lds", tag=f"c{j}")
        I("s_add_u32", "m0", s(sT7), slot + 6144); I("s_add_u32", s(sWB), s(sWB), 32 * 3072)
        for r in range(4): I("buffer_load_dwordx4", v(self.WDM + r), srd(W1), s(sWB), mods=f"offen offset:{1024*r} lds", tag=f"c{j}")
        I("s_add_u32", "m0", s(sT7), slot + 10240)
        for r in range(2): I("buffer_load_dwordx4", v(self.WDM + 4 + r), srd(W1), s(sWB), mods=f"offen offset:{1024*r} lds", tag=f"c{j}")
    def common_l(self):
        a = self.a; I = a.I
        I("s_setprio", 0)
        self.consts()
        I("v_lshlrev_b32", v(self.RD), 4, v(0))
        I("v_lshlrev_b32", v(2), 2, v(0)); I("v_add_u32", v(2), L_CNT, v(2)); I("v_mov_b32", v(3), 0)
        I("s_mov_b64", "exec", 15); I("ds_write_b32", v(2), v(3)); I("s_mov_b64", "exec", -1)
    def stream(self):
        a = self.a; I = a.I
        I("v_lshrrev_b32", v(2), 3, v(0)); I("v_mul_u32_u24", v(2), 1280, v(2)); I("v_lshrrev_b32", v(3), 4, v(0)); I("v_and_b32", v(4), 7, v(0))
        for r in range(4):
            I("v_add_u32", v(5), 4 * (r & 1), v(3)); I("v_xor_b32", v(5), v(5), v(4)); I("v_lshl_add_u32", v(5), v(5), 4, v(2))
            I("v_add_u32", v(self.XD + r), 9216 * r, v(5))
        I("s_mov_b32", s(sT2), 21846)
        for jj in range(6):
            I("v_add_u32", v(2), 64 * jj, v(0))
            I("v_mul_u32_u24", v(3), s(sT2), v(2)); I("v_lshrrev_b32", v(3), 18, v(3))
            I("v_mul_u32_u24", v(3), 3072 - 192, v(3)); I("v_lshl_add_u32", v(3), v(2), 4, v(3))
            I("v_subrev_u32", v(self.WDM + jj), 1024 * (jj & 3), v(3))
        I("s_lshl1_add_u32", s(sT4), s(sMT), s(sWL)); I("s_mul_i32", s(sT4), s(sT4), 64 * 1280)
        I("s_mul_i32", s(sT5), s(sFS), 192)
        I("s_lshl_b32", s(sT6), s(sWL), 13)
        I("s_mul_i32", s(sT7), s(sWL), UPOFF); I("s_add_u32", s(sT7), s(sT7), W1OFF)
        self.chunk_a(0); self.chunk_b(0)
        I("s_branch", "L_cl"); self.svm = a.vm
    def stream2(self):
        a = self.a; I = a.I; a.vm = self.svm; a.lg = ["x"]
        self.chunk_a(1)
        self.nonce()
        a.wait_lg0()
        for j in range(10):
            a.wait_vm(f"c{j}")
            if j in (0, 3, 6, 9): self.stamp(2 + j // 3)
            I("s_barrier")
            if j == 0: self.chunk_b(1)
            if j + 2 <= 9: self.chunk_a(j + 2); self.chunk_b(j + 2)
        I("s_branch", "L_lj")
    def w_dma(self):
        if 'noW' in self.exp: return
        a = self.a; I = a.I
        I("s_mov_b32", s(sT2), 1599); I("s_mov_b32", s(sT3), 64 * 642 - 656)
        for i in range(6):
            I("v_add_u32", v(2), 64 * i, v(0)); I("v_mul_u32_u24", v(3), s(sT2), v(2)); I("v_lshrrev_b32", v(3), 16, v(3))
            I("v_lshlrev_b32", v(2), 4, v(2)); I("v_mad_u32_u24", v(3), v(3), s(sT3), v(2)); I("v_subrev_u32", v(8 + i), 1024 * (i & 3), v(3))
        I("s_and_b32", s(sT0), s(sWG), 63); I("s_lshr_b32", s(sT1), s(sWG), 6); I("s_lshl_b32", s(sT1), s(sT1), 9); I("s_add_u32", s(sT0), s(sT0), s(sT1)); I("s_mul_i32", s(sT0), s(sT0), 642)
        I("s_and_b32", s(sT0), s(sT0), -4)
        I("s_cmp_eq_u32", s(sWL), 3); I("s_cselect_b32", s(WR), s(WI), s(WR)); I("s_cselect_b32", s(WR + 1), s(WI + 1), s(WR + 1))
        I("s_cselect_b32", s(sT1), 5248, 0); I("s_add_u32", s(sT1), s(sT1), L_WRAW); I("s_mov_b32", "m0", s(sT1))
        for i in range(6):
            if i == 4: I("s_add_u32", "m0", s(sT1), 4096)
            if i == 5: I("s_mov_b64", "exec", "0xff")
            I("buffer_load_dwordx4", v(8 + i), srd(WR), s(sT0), mods=f"offen offset:{1024*(i&3)} lds", tag="w")
        I("s_mov_b64", "exec", -1)
    def w_pack(self):
        if 'noW' in self.exp: return
        a = self.a; I = a.I; DT = 100
        I("v_bfe_u32", v(2), v(0), 4, 1); I("v_bfe_u32", v(3), v(0), 2, 2); I("v_lshl_add_u32", v(3), v(2), 2, v(3)); I("v_mul_u32_u24", v(3), 656, v(3))
        I("v_and_b32", v(4), 3, v(0)); I("v_lshl_add_u32", v(3), v(4), 3, v(3)); I("v_lshrrev_b32", v(4), 5, v(0)); I("v_lshl_add_u32", v(3), v(4), 5, v(3))
        I("s_and_b32", s(sT0), s(sWL), 1); I("s_mul_i32", s(sT1), s(sT0), 6 * 64); I("s_add_u32", s(sT1), s(sT1), L_WRAW); I("v_add_u32", v(3), s(sT1), v(3))
        for t in range(6):
            for ar in range(2): I("ds_read_b64_tr_b16", v(DT + 4 * t + 2 * ar, 2), v(3), mods=f"offset:{ar*5248+64*t}", tag=f"t{t}")
        I("v_and_b32", v(5), 15, v(0)); I("v_lshl_add_u32", v(5), v(4), 4, v(5)); I("v_lshlrev_b32", v(5), 5, v(5)); I("v_lshl_add_u32", v(5), v(2), 4, v(5))
        I("s_mul_i32", s(sT0), s(sT0), 6144); I("s_add_u32", s(sT1), s(sT0), L_YS); I("v_add_u32", v(5), s(sT1), v(5)); I("v_add_u32", v(6), s(sT1), v(self.RD))
        for t in range(6):
            a.wait_lg(f"t{t}"); I("ds_write_b128", v(5), v(DT + 4 * t, 4), mods=f"offset:{1024*t}")
        for t in range(6): I("ds_read_b128", v(DT + 24 + 4 * t, 4), v(6), mods=f"offset:{1024*t}", tag=f"u{t}")
        I("s_mul_i32", s(sT1), s(sWG), YP); I("s_add_u32", s(sT0), s(sT0), s(sT1)); I("s_and_b32", s(sT1), s(sWG), 1); I("s_lshl_b32", s(sT1), s(sT1), 5)
        I("s_sub_u32", s(sT0), s(sT0), s(sT1)); I("s_add_u32", s(sT0), s(sT0), WS_WP)
        I("s_cmp_eq_u32", s(sWL), 3); I("s_cselect_b32", s(sT2), 8, 64); I("s_cselect_b32", s(sT3), 0, 64)
        I("v_mov_b32", v(4), BIG); I("v_cmp_gt_u32", "vcc", s(sT2), v(0)); I("v_cndmask_b32", v(2), v(4), v(self.RD), "vcc")
        I("v_cmp_gt_u32", "vcc", s(sT3), v(0)); I("v_cndmask_b32", v(3), v(4), v(self.RD), "vcc")
        for t in range(6):
            if t == 4: I("s_add_u32", s(sT0), s(sT0), 4096)
            a.wait_lg(f"u{t}")
            I("buffer_store_dwordx4", v(DT + 24 + 4 * t, 4), v({4: 2, 5: 3}.get(t, self.RD)), srd(WS), s(sT0), mods=f"offen offset:{1024*(t&3)} sc1", tag="st")
    def wd_dma(self):
        if 'nowd' in self.exp: return
        a = self.a; I = a.I
        for i in range(5):
            I("v_add_u32", v(3), 64 * i, v(0)); I("v_mul_u32_u24", v(3), 1639, v(3)); I("v_lshrrev_b32", v(3), 16, v(3))
            I("v_mul_u32_u24", v(3), 640, v(3)); I("v_add_u32", v(8 + i), v(3), v(self.RD))
        I("v_add_u32", v(12), 4096, v(12))
        I("s_and_b32", s(sT2), s(sWL), 1); I("s_and_b32", s(sT0), s(sWG), -2); I("s_add_u32", s(sT0), s(sT0), s(sT2)); I("s_mul_i32", s(sT0), s(sT0), 8 * 1280)
        I("s_and_b32", s(sT1), s(sWG), 1); I("s_mul_i32", s(sT1), s(sT1), 640); I("s_add_u32", s(sT0), s(sT0), s(sT1))
        I("s_mul_i32", s(sT1), s(sT2), 5120); I("s_add_u32", "m0", s(sT1), L_XR)
        for i in range(5):
            if i == 4: I("s_add_u32", "m0", s(sT1), L_XR + 4096)
            I("buffer_load_dwordx4", v(8 + i), srd(WD), s(sT0), mods=f"offen offset:{1024*(i&3)} lds", tag="wd")
    def wd_pack(self):
        if 'nowd' in self.exp: return
        a = self.a; I = a.I; DT = 148
        I("v_bfe_u32", v(2), v(0), 4, 1); I("v_bfe_u32", v(3), v(0), 2, 2); I("v_lshl_add_u32", v(3), v(2), 2, v(3)); I("v_mul_u32_u24", v(3), 640, v(3))
        I("v_and_b32", v(4), 3, v(0)); I("v_mad_u32_u24", v(3), v(4), 40, v(3)); I("v_lshrrev_b32", v(4), 5, v(0)); I("v_lshl_add_u32", v(3), v(4), 3, v(3))
        I("s_and_b32", s(sA0), s(sWL), 1); I("s_mul_i32", s(sT0), s(sA0), 320); I("s_add_u32", s(sT0), s(sT0), L_XR); I("v_add_u32", v(3), s(sT0), v(3))
        for n in range(2):
            for jj in range(3):
                for rd in range(2): I("ds_read_b64_tr_b16", v(DT + 12 * n + 4 * jj + 2 * rd, 2), v(3), mods=f"offset:{rd*5120+16*jj+160*n}", tag=f"d{n}{jj}")
        I("v_and_b32", v(5), 31, v(0)); I("v_lshlrev_b32", v(5), 4, v(5)); I("v_lshl_add_u32", v(5), v(4), 10, v(5))
        I("v_mov_b32", v(6), BIG); I("v_cmp_gt_u32", "vcc", 32, v(0)); I("v_cndmask_b32", v(6), v(6), v(5), "vcc")
        I("s_lshr_b32", s(sT0), s(sWG), 1); self.mod(sT1, sT0, 6, sT2); I("s_lshr_b32", s(sT2), s(sWG), 1)
        I("s_mul_i32", s(sT2), s(sT2), 10923); I("s_lshr_b32", s(sT2), s(sT2), 16)
        I("s_cmp_ge_u32", s(sT1), 3); I("s_cselect_b32", s(sT3), 1, 0)
        I("s_mul_i32", s(sT0), s(sT3), 3); I("s_sub_u32", s(sT1), s(sT1), s(sT0))
        I("s_lshl4_add_u32", s(sT1), s(sT1), s(sT2))
        I("s_and_b32", s(sT0), s(sWG), 1); I("s_lshl1_add_u32", s(sT0), s(sT0), s(sA0)); I("s_mul_i32", s(sT0), s(sT0), 96); I("s_add_u32", s(sT0), s(sT0), s(sT1))
        I("s_mul_i32", s(sT0), s(sT0), 5120); I("s_lshl_b32", s(sT3), s(sT3), 9); I("s_add_u32", s(sT0), s(sT0), s(sT3)); I("s_add_u32", s(sT0), s(sT0), WS_WD)
        I("s_cmp_lt_u32", s(sWG), 192); I("s_cselect_b32", s(sT0), s(sT0), BIG)
        for n in range(2):
            for jj in range(3):
                a.wait_lg(f"d{n}{jj}")
                if jj == 2: I("s_add_u32", s(sT0), s(sT0), 4096)
                I("buffer_store_dwordx4", v(DT + 12 * n + 4 * jj, 4), v(6 if jj == 2 else 5), srd(WS), s(sT0), mods=f"offen offset:{2048*(jj&1)} sc1", tag="st")
            if n == 0: I("s_add_u32", s(sT0), s(sT0), 48 * 5120 - 4096)
    def y_store(self):
        if 'noY' in self.exp: return
        a = self.a; I = a.I; DT = 60
        I("s_and_b32", s(sT0), s(sWL), 1); I("s_mul_i32", s(sT0), s(sT0), 6144); I("s_add_u32", s(sT1), s(sT0), L_YS); I("v_add_u32", v(3), s(sT1), v(self.RD))
        for u in range(6): I("ds_read_b128", v(DT + 4 * u, 4), v(3), mods=f"offset:{1024*u}", tag=f"y{u}")
        I("s_mul_i32", s(sT1), s(sWG), YP); I("s_add_u32", s(sT0), s(sT0), s(sT1)); I("s_add_u32", s(sT0), s(sT0), WS_Y)
        for u in range(6):
            if u == 4: I("s_add_u32", s(sT0), s(sT0), 4096)
            if u == 5: I("s_cmp_eq_u32", s(sWL), 3); I("s_cselect_b32", s(sT0), BIG, s(sT0))
            a.wait_lg(f"y{u}")
            I("buffer_store_dwordx4", v(DT + 4 * u, 4), v(self.RD), srd(WS), s(sT0), mods=f"offen offset:{1024*(u&3)} sc1", tag="st")
    def side2(self):
        a = self.a; I = a.I; a.vm = self.dvm; a.lg = ["x"]; wp = self.wpos
        self.nonce()
        a.wait_lg0()
        jW = 1 if wp < 0 else wp + 2
        jF = max(jW, 2) + 2
        lda = [lambda k=k: I("buffer_load_dword", v(30 + k), v(24), srd(WS), s(sA2), mods=f"offen offset:{2048*k} sc1", tag="fa") for k in range(2)]
        for j in range(10):
            if j == jW: a.wait_vm("w")
            if j == 2: a.wait_vm("wd")
            if j == jF: a.wait_vm("st")
            if j == 9: self.spin(lda, [30, 31], first="fa")
            if j in (0, 3, 6, 9): self.stamp(2 + j // 3)
            I("s_barrier")
            if j == 0: self.wd_dma()
            if j == wp: self.w_dma()
            if j == 0: self.y_store()
            if j == jW: self.w_pack()
            if j == 2: self.wd_pack()
            if j == jF:
                I("s_lshl_b32", s(sT0), s(sWG), 5); I("s_add_u32", s(sT0), s(sT0), WS_FA); I("s_cmp_eq_u32", s(sWL), 2); I("s_cselect_b32", s(sT0), s(sT0), BIG)
                self.flag_store(s(sT0), 2)
            if j == 8:
                I("v_lshlrev_b32", v(24), 5, v(0)); I("s_and_b32", s(sA2), s(sWL), 1); I("s_lshl_b32", s(sA2), s(sA2), 12); I("s_add_u32", s(sA2), s(sA2), WS_FA)
                for f in lda: f()
    def loader1(self):
        a = self.a; I = a.I
        a.label("L_ld0"); a.vm = ["E"]; a.lg = []
        I("s_setprio", 2)
        I("s_cmp_ge_u32", s(sWL), 2); I("s_cselect_b32", s(sROLE), 2, 1)
        I("s_cmp_eq_u32", s(sROLE), 2); I("s_cbranch_scc1", "L_sd0")
        self.stream()
        a.label("L_sd0"); a.vm = ["E"]
        if 'notlb' not in self.exp:
            I("v_lshlrev_b32", v(2), self.tlbsh, v(0))
            I("buffer_load_dword", v(7), v(2), srd(WS), 0, mods="offen sc1", tag="tlb")
            I("buffer_load_dword", v(7), v(2), srd(OUT), 0, mods="offen sc1", tag="tlb")
            I("buffer_load_dword", v(7), v(2), srd(WD), 0, mods="offen sc1", tag="tlb")
        if self.wpos < 0: self.w_dma()
        self.dvm = a.vm
        a.label("L_cl")
        self.common_l()
        I("s_cmp_eq_u32", s(sROLE), 2); I("s_cbranch_scc1", "L_sd1")
        self.stream2()
        a.label("L_sd1")
        self.side2()
        a.label("L_lj"); a.vm = []
        I("s_lshr_b32", s(sT0), s(sWL), 1); I("s_lshl_b32", s(sT0), s(sT0), 3); I("s_and_b32", s(sT1), s(sWL), 1); I("s_add_u32", s(sT0), s(sT0), s(sT1))
        I("s_mul_i32", s(sT1), s(sNG), 48); I("s_add_u32", s(sT0), s(sT0), s(sT1)); I("s_mul_i32", s(sT4), s(sT0), 5120); I("s_add_u32", s(sT4), s(sT4), WS_WD)
        I("s_mul_i32", s(sT5), s(sWL), 5120)
        I("s_cmp_eq_u32", s(sFFT), 0)
        if 'nofft' in self.exp: I("s_branch", "L_nofft")
        I("s_cbranch_scc1", "L_nofft")
        I("v_lshrrev_b32", v(2), 2, v(0)); I("v_mul_u32_u24", v(2), YP, v(2)); I("v_lshrrev_b32", v(3), 4, v(0)); I("v_xor_b32", v(3), v(3), v(0)); I("v_and_b32", v(3), 3, v(3))
        I("v_lshl_add_u32", v(14), v(3), 4, v(2))
        I("s_mul_i32", s(sT0), s(sWL), 64 * YP); I("s_lshl_b32", s(sT1), s(sP), 6); I("s_add_u32", s(sT0), s(sT0), s(sT1)); I("s_add_u32", s(sT0), s(sT0), WS_Y)
        I("s_lshl_b32", s(sT2), s(sWL), 12); I("s_add_u32", "m0", s(sT2), L_YI)
        for u in range(4):
            if u: I("s_add_u32", s(sT0), s(sT0), 16 * YP - 1024)
            I("buffer_load_dwordx4", v(14), srd(WS), s(sT0), mods=f"offen offset:{1024*u} sc1 lds", tag="yi")
        I("s_cmp_eq_u32", s(sWG), 0); I("s_cselect_b32", s(sT0), WS_E, BIG); I("s_cmp_eq_u32", s(sWL), 0); I("s_cselect_b32", s(sT0), s(sT0), BIG)
        self.flag_store(s(sT0), 2)
        self.col_setup()
        I("s_barrier")
        self.stamp(6)
        I("s_mul_i32", s(sT0), s(sWL), 16 * YP); I("s_add_u32", s(sT0), s(sT0), s(sT1)); I("s_add_u32", s(sT0), s(sT0), WS_WP)
        I("s_add_u32", "m0", s(sT2), 5 * SLOT2)
        for u in range(4):
            if u: I("s_add_u32", s(sT0), s(sT0), 64 * YP - 1024)
            I("buffer_load_dwordx4", v(14), srd(WS), s(sT0), mods=f"offen offset:{1024*u} sc1 lds", tag="wp")
        for q in range(self.npre): self.ring_dma(q)
        self.col_fft()
        self.ring_dma(self.npre)
        a.wait_vm("z")
        self.z_arrive()
        I("s_branch", "L_g2l")
        a.label("L_nofft"); a.vm = []; a.lg = []
        I("s_barrier")
        for q in range(self.npre + 1): self.ring_dma(q)
        a.label("L_g2l")

    def ring_dma(self, q):
        if 'noring' in self.exp or ('norefill' in self.exp and q >= 6): return
        a = self.a; I = a.I; slot = (q % NSLOT2) * SLOT2
        I("s_add_u32", s(sT0), s(sSG), q); I("s_and_b32", s(sT0), s(sT0), 3); I("s_mul_i32", s(sT0), s(sT0), 10240); I("s_add_u32", s(sT0), s(sT0), s(sT4))
        if q >= 4: I("s_add_u32", s(sT0), s(sT0), (q >> 2) * 81920)
        I("s_add_u32", "m0", s(sT5), slot)
        for r in range(4): I("buffer_load_dwordx4", v(self.RD), srd(WS), s(sT0), mods=f"offen offset:{1024*r} sc1 lds", tag=f"r{q}")
        I("s_add_u32", "m0", s(sT5), slot + 4096); I("s_add_u32", s(sT0), s(sT0), 4096)
        I("buffer_load_dwordx4", v(self.RD), srd(WS), s(sT0), mods="offen sc1 lds", tag=f"r{q}")

    aY, aER, aEW, aZS, aWP = 6, 10, 11, 12, 15
    def col_setup(self):
        a = self.a; I = a.I; aY, aER, aEW, aZS = self.aY, self.aER, self.aEW, self.aZS
        I("v_and_b32", v(2), 15, v(0)); I("v_lshrrev_b32", v(3), 4, v(0)); I("v_lshrrev_b32", v(4), 2, v(2))
        I("v_lshlrev_b32", v(5), 4, v(4)); I("v_lshl_add_u32", v(5), v(2), 6, v(5))
        I("v_lshl_add_u32", v(5), v(3), 11, v(5)); I("v_add_u32", v(aY), L_YI, v(5))
        for k in range(1, 4): I("v_xor_b32", v(aY + k), 16 * k, v(aY))
        I("v_and_b32", v(5), 1, v(3)); I("v_xor_b32", v(5), v(5), v(4)); I("v_lshlrev_b32", v(5), 4, v(5)); I("v_lshl_add_u32", v(5), v(2), 6, v(5))
        I("v_lshrrev_b32", v(13), 1, v(3)); I("v_lshl_add_u32", v(5), v(13), 10, v(5)); I("s_add_u32", s(sA1), s(sT2), 5 * SLOT2)
        I("v_add_u32", v(self.aWP), s(sA1), v(5)); I("v_xor_b32", v(self.aWP + 1), 32, v(self.aWP))
        I("v_xor_b32", v(5), v(3), v(4)); I("v_lshlrev_b32", v(5), 4, v(5)); I("v_lshl_add_u32", v(5), v(2), 6, v(5)); I("v_add_u32", v(aER), L_EX, v(5))
        I("v_bfe_u32", v(4), v(2), 1, 2); I("v_lshrrev_b32", v(5), 3, v(2)); I("v_lshlrev_b32", v(5), 1, v(5)); I("v_and_b32", v(13), 1, v(2)); I("v_add_u32", v(5), v(5), v(13))
        I("v_lshl_add_u32", v(5), v(4), 2, v(5)); I("v_xor_b32", v(4), v(4), v(3)); I("v_lshlrev_b32", v(4), 4, v(4)); I("v_lshl_add_u32", v(5), v(5), 6, v(4))
        I("s_lshr_b32", s(sA2), s(sWL), 1); I("s_lshl_b32", s(sA1), s(sA2), 11)
        I("s_and_b32", s(sA2), s(sWL), 1); I("s_lshl3_add_u32", s(sA1), s(sA2), s(sA1)); I("s_add_u32", s(sA1), s(sA1), L_EX); I("v_add_u32", v(aEW), s(sA1), v(5))
        I("s_lshl_b32", s(sA1), s(sWL), 12); I("v_lshlrev_b32", v(5), 4, v(3)); I("v_lshl_add_u32", v(5), v(2), 8, v(5)); I("v_add_u32", v(aZS), s(sA1), v(5))

    def col_fft(self):
        a = self.a; I = a.I; aY, aER, aEW, aZS = self.aY, self.aER, self.aEW, self.aZS
        YF, O1, TT, BR, O2 = (52, 84), (116, 132), 148, (164, 172), (52, 84)
        M = "v_mfma_f32_16x16x32_bf16"
        a.wait_vm("yi")
        self.lds_sync(0, 2)
        self.stamp(7)
        yf = lambda c, mt, j, ri: YF[c] + 4 * ((mt * 2 + j) * 2 + ri)
        for c in range(2):
            for mt in range(2):
                for j in range(2):
                    for ri in range(2): I("ds_read_b128", v(yf(c, mt, j, ri), 4), v(aY + 2 * c + ri), mods=f"offset:{j*8192+mt*1024}", tag=f"y{c}{mt}")
        def cplx(dre, dim, Ar, Ai, C, Sp, Sm, n, data_is_A):
            for j in range(n):
                for k, (d, x1, c1) in enumerate(((dre, Ar(j), C(j)), (dim, Ai(j), C(j)), (dre, Ai(j), Sp(j)), (dim, Ar(j), Sm(j)))):
                    p, q = (x1, c1) if data_is_A else (c1, x1)
                    I(M, v(d, 4), v(p, 4), v(q, 4), 0 if (j == 0 and k < 2) else v(d, 4))
        def s1(c):
            for mt in range(2):
                a.wait_lg(f"y{c}{mt}")
                cplx(O1[c] + 8 * mt, O1[c] + 8 * mt + 4, lambda j: yf(c, mt, j, 0), lambda j: yf(c, mt, j, 1), lambda j: F64C + 4 * j, lambda j: F64S + 4 * j, lambda j: NS64 + 4 * j, 2, True)
        def s2(c):
            for mt in range(2):
                for i in range(4): self.cmul_tw(TT + 4 * mt + i, TT + 8 + 4 * mt + i, O1[c] + 8 * mt + i, O1[c] + 8 * mt + 4 + i, TW1 + 4 * mt + i, False)
            self.pack_bf(BR[c], TT, 16)
            for md in range(2):
                cplx(O2[c] + 8 * md, O2[c] + 8 * md + 4, lambda j: BR[c], lambda j: BR[c] + 4, lambda j: F32C + 4 * md, lambda j: F32S + 4 * md, lambda j: NS32 + 4 * md, 1, False)
        def wread():
            a.wait_vm("wp")
            for c in range(2):
                for md in range(2): I("ds_read_b128", v(vWP + 8 * c + 4 * md, 4), v(self.aWP + c), mods=f"offset:{2048*md}", tag="wp")
        def s3(c):
            a.wait_lg("wp")
            for k in range(8):
                md, i = k >> 2, k & 3; re, im = O2[c] + 8 * md + i, O2[c] + 8 * md + 4 + i; w = vWP + 8 * c + 4 * md + (i >> 1)
                if i & 1: I("v_and_b32", v(2), "0xffff0000", v(w)); I("v_and_b32", v(3), "0xffff0000", v(w + 2))
                else: I("v_lshlrev_b32", v(2), 16, v(w)); I("v_lshlrev_b32", v(3), 16, v(w + 2))
                I("v_mul_f32", v(TT + k), v(re), v(2)); I("v_mul_f32", v(TT + 8 + k), v(im), v(2))
                I("v_fma_f32", v(TT + k), "-" + v(im), v(3), v(TT + k)); I("v_fmac_f32", v(TT + 8 + k), v(re), v(3))
            self.pack_bf(BR[c], TT, 16)
            for nb in range(2):
                cplx(O1[c] + 8 * nb, O1[c] + 8 * nb + 4, lambda j: BR[c], lambda j: BR[c] + 4, lambda j: F32C + 4 * nb, lambda j: NS32 + 4 * nb, lambda j: F32S + 4 * nb, 1, True)
        def s3b(c):
            for nb in range(2):
                for i in range(4): self.cmul_tw(TT + 8 * nb + i, TT + 8 * nb + 4 + i, O1[c] + 8 * nb + i, O1[c] + 8 * nb + 4 + i, TW2 + 4 * nb + i, True)
            self.pack_bf(BR[c], TT, 16)
            for nb in range(2):
                for ri in range(2): I("ds_write_b64", v(aEW), v(BR[c] + 4 * nb + 2 * ri, 2), mods=f"offset:{c*8192+ri*4096+nb*1024}")
        s1(0); s1(1); s2(0); wread(); s2(1); s3(0); s3(1); s3b(0); s3b(1)
        self.lds_sync(1, 2)
        ef = lambda mt, col, ri, j: YF[mt] + 4 * ((col * 2 + ri) * 2 + j)
        for mt in range(2):
            for col in range(2):
                for ri in range(2):
                    for j in range(2): I("ds_read_b128", v(ef(mt, col, ri, j), 4), v(aER), mods=f"offset:{col*8192+ri*4096+j*2048+mt*1024}", tag=f"e{mt}{col}")
        I("s_lshl_b32", s(sA1), s(sP), 14); I("s_add_u32", s(sA1), s(sA1), WS_Z); I("s_or_b32", s(sA1), s(sA1), s(sPOK))
        for mt in range(2):
            for col in range(2):
                a.wait_lg(f"e{mt}{col}")
                cplx(O1[mt] + 8 * col, O1[mt] + 8 * col + 4, lambda j: ef(mt, col, 0, j), lambda j: ef(mt, col, 1, j), lambda j: F64C + 4 * j, lambda j: NS64 + 4 * j, lambda j: F64S + 4 * j, 2, True)
        for mt in range(2):
            for u in range(2):
                pk = TT + 8 * mt + 4 * u
                for ii in range(2):
                    for col in range(2):
                        i = 2 * u + ii
                        I("v_cvt_pk_bf16_f32", v(pk + 2 * ii + col), v(O1[mt] + 8 * col + i), v(O1[mt] + 8 * col + 4 + i))
                I("buffer_store_dwordx4", v(pk, 4), v(aZS), srd(WS), s(sA1), mods=f"offen offset:{128*mt+64*u} sc1", tag="z")
        self.stamp(8)

    def z_arrive(self):
        a = self.a; I = a.I
        I("v_mov_b32", v(2), L_CNT + 8); I("v_mov_b32", v(3), 1)
        I("s_mov_b64", "exec", 1); I("ds_add_rtn_u32", v(4), v(2), v(3)); I("s_mov_b64", "exec", -1)
        a.wait_lg0()
        I("v_readfirstlane_b32", s(sA0), v(4))
        I("s_lshl_b32", s(sA1), s(sP), 5); I("s_add_u32", s(sA1), s(sA1), WS_FZ); I("s_or_b32", s(sA1), s(sA1), s(sPOK))
        I("s_cmp_eq_u32", s(sA0), 3); I("s_cselect_b32", s(sA1), s(sA1), BIG)
        self.flag_store(s(sA1), 2)

    def gemm2_c(self):
        a = self.a; I = a.I; M = "v_mfma_f32_16x16x32_bf16"
        GA_, SA_, AF, BQ, XF, ZI = 8, 48, (88, 108), 128, 192, 204
        aH, aZ, aT, aX, aRW, aRR, aZ3, aF = 208, 210, 212, 214, 215, 216, 217, 218
        I("s_and_b32", s(sT4), s(sWV), 1); I("s_lshr_b32", s(sT5), s(sWV), 1)
        I("v_lshlrev_b32", v(2), 4, v(0)); I("v_and_b32", v(3), 15, v(0)); I("v_lshrrev_b32", v(4), 4, v(0))
        I("s_mul_i32", s(sT0), s(sT5), 49152); I("v_add_u32", v(aH), s(sT0), v(2)); I("s_sub_u32", s(sT0), 49152, s(sT0)); I("v_add_u32", v(aH + 1), s(sT0), v(2))
        I("v_lshlrev_b32", v(5), 15, v(4)); I("v_lshl_add_u32", v(5), v(3), 3, v(5))
        I("s_lshl_b32", s(sT0), s(sT5), 7); I("v_add_u32", v(aZ), s(sT0), v(5)); I("s_sub_u32", s(sT0), 128, s(sT0)); I("v_add_u32", v(aZ + 1), s(sT0), v(5))
        I("s_mul_i32", s(sT0), s(sT5), 10240); I("v_add_u32", v(aT), s(sT0), v(2)); I("v_add_u32", v(aT + 1), 3 * SLOT2, v(aT))
        I("s_mul_i32", s(sT0), s(sWV), 10240); I("v_add_u32", v(aRW), s(sT0), v(2)); I("s_xor_b32", s(sT0), s(sWV), 2); I("s_mul_i32", s(sT0), s(sT0), 10240); I("v_add_u32", v(aRR), s(sT0), v(2))
        I("s_lshl1_add_u32", s(sT0), s(sTQ), s(sT4))
        I("s_mul_i32", s(sT6), s(sT0), 2 * 49152); I("s_lshl_b32", s(sT1), s(sT5), 13); I("s_add_u32", s(sT6), s(sT6), s(sT1)); I("s_add_u32", s(sT6), s(sT6), WS_H)
        I("s_lshl_b32", s(sWB), s(sT0), 8); I("s_mul_i32", s(sT1), s(sT5), 80 * 16384); I("s_add_u32", s(sT3), s(sWB), WS_Z + 160 * 16384)
        I("s_add_u32", s(sWB), s(sWB), s(sT1)); I("s_add_u32", s(sWB), s(sWB), WS_Z)
        I("s_lshl1_add_u32", s(sT0), s(sT0), s(sT5)); I("s_mul_i32", s(sT0), s(sT0), 16 * 1280); I("s_mul_i32", s(sT1), s(sNG), 160); I("s_add_u32", s(sA3), s(sT0), s(sT1))
        I("v_mul_u32_u24", v(5), 1280, v(3)); I("v_mad_u32_u24", v(aX), v(4), 40, v(5))
        I("s_lshl_b32", s(sT0), s(sT5), 7); I("v_lshl_add_u32", v(aZ3), v(3), 3, s(sT0))
        I("v_and_b32", v(5), 31, v(0)); I("v_lshlrev_b32", v(aF), 5, v(5)); I("s_lshl_b32", s(sA2), s(sTQ), 10); I("s_add_u32", s(sA2), s(sA2), WS_FH)
        I("s_mov_b32", s(sT5), s(sTAU))
        a.wait_vm("h2"); self.flag_store(s(sT7), 2, level=2)
        I("buffer_load_dwordx4", v(XF, 4), v(aX), srd(X), s(sA3), mods="offen", tag="x")
        I("buffer_load_dwordx4", v(XF + 4, 4), v(aX), srd(X), s(sA3), mods="offen offset:16", tag="x")
        I("buffer_load_dwordx2", v(XF + 8, 2), v(aX), srd(X), s(sA3), mods="offen offset:32", tag="x")
        self.stamp(8)
        self.spin([lambda: I("buffer_load_dword", v(5), v(aF), srd(WS), s(sA2), mods="offen sc1")], [5], level=0)
        self.stamp(9)
        def bfrag(q, u, tt): return BQ + 16 * (q % 4) + 4 * (2 * u + tt)
        def bload(q):
            if 'nob' in self.exp: return
            if q < 12:
                I("s_add_u32", s(sT0), s(sSG), q); I("s_and_b32", s(sT0), s(sT0), 3); I("s_lshl_b32", s(sT0), s(sT0), 11); I("s_add_u32", s(sT0), s(sT0), s(sT6))
                if q >= 4: I("s_add_u32", s(sT0), s(sT0), (q >> 2) * 16384)
                for u in range(2):
                    for tt in range(2): I("buffer_load_dwordx4", v(bfrag(q, u, tt), 4), v(aH + tt), srd(WS), s(sT0), mods=f"offen offset:{1024*u} sc1", tag=f"b{q}_{u}")
            elif q < 17:
                if q == 12: I("buffer_load_dword", v(ZI), v(aZ3), srd(WS), s(sT3), mods="offen sc1", tag="b12_0")
                I("s_lshl_b32", s(sT0), s(sT5), 18); I("s_add_u32", s(sT0), s(sT0), s(sWB)); self.inc_mod(sT5, 5)
                for u in range(2):
                    for hp in range(2):
                        if u or hp: I("s_add_u32", s(sT0), s(sT0), 16384 if hp else 8 * 16384 - 16384)
                        for tt in range(2): I("buffer_load_dwordx2", v(bfrag(q, u, tt) + 2 * hp, 2), v(aZ + tt), srd(WS), s(sT0), mods="offen sc1", tag=f"b{q}_{u}")
        def areads(q, u):
            slot = q % NSLOT2; hi = slot // 3; off = (slot % 3) * SLOT2 + u * 5120; b = AF[u]
            return [("ds_read_b128", v(b + 4 * j, 4), v(aT + hi), f"offset:{off + 1024*j}", f"a{q}_{u}_{j}") for j in range(5)]
        def group(q, u, R, mid=None):
            acc = GA_ if q < 12 else SA_
            first = (q, u) in ((0, 0), (12, 0))
            a.wait_vm(f"b{q}_{u}")
            if (q, u) == (12, 0):
                I("v_lshlrev_b32", v(ZI), 16, v(ZI)); I("v_xor_b32", v(ZI + 1), "0x80000000", v(ZI)); I("v_mov_b32", v(ZI + 2), v(ZI)); I("v_mov_b32", v(ZI + 3), v(ZI + 1))
            k = 0
            for j in range(5):
                a.wait_lg(f"a{q}_{u}_{j}")
                for tt in range(2):
                    d = v(acc + 20 * tt + 4 * j, 4)
                    c = d if not first else (v(ZI, 4) if (q == 12 and tt == 0) else 0)
                    I(M, d, v(AF[u] + 4 * j, 4), v(bfrag(q, u, tt), 4), c)
                    if R: o = R.pop(0); I(o[0], o[1], o[2], mods=o[3], tag=o[4])
                    if k == 5 and mid: mid()
                    k += 1
        for q in range(3): bload(q)
        I("s_barrier")
        self.stamp(10)
        for q in range(17):
            R = areads(q, 0)
            if q == 0:
                for o in R: I(o[0], o[1], o[2], mods=o[3], tag=o[4])
            else:
                group(q - 1, 1, R)
            group(q, 0, areads(q, 1), mid=lambda: bload(q + 3))
            if q < 16: I("s_barrier")
            if q == 11: self.stamp(11)
        group(16, 1, [])
        self.stamp(12)
        for j in range(5):
            I("ds_write_b128", v(aRW), v(GA_ + 20 + 4 * j, 4), mods=f"offset:{1024*j}")
            I("ds_write_b128", v(aRW), v(SA_ + 20 + 4 * j, 4), mods=f"offset:{5120+1024*j}")
        a.wait_lg0(); I("s_barrier")
        PG, PS = 88, 108
        for j in range(5):
            I("ds_read_b128", v(PG + 4 * j, 4), v(aRR), mods=f"offset:{1024*j}", tag=f"p{j}")
            I("ds_read_b128", v(PS + 4 * j, 4), v(aRR), mods=f"offset:{5120+1024*j}", tag=f"p{j}")
        a.wait_vm("x")
        OP = 128; T = 140
        for j in range(5):
            a.wait_lg(f"p{j}")
            g, sp = GA_ + 4 * j, SA_ + 4 * j
            for i in range(4): I("v_add_f32", v(g + i), v(g + i), v(PG + 4 * j + i))
            for i in range(4): I("v_mul_f32", v(T + i), fl(-1.4426950408889634), v(g + i))
            for i in range(4): I("v_exp_f32", v(T + i), v(T + i))
            for i in range(4): I("v_add_f32", v(sp + i), v(sp + i), v(PS + 4 * j + i))
            for i in range(4): I("v_add_f32", v(T + i), 1.0, v(T + i))
            for i in range(4): I("v_rcp_f32", v(T + i), v(T + i))
            for i in range(4): I("v_mul_f32", v(g + i), v(g + i), v(sp + i))
            for p in range(2):
                I("v_lshlrev_b32", v(T + 4 + 2 * p), 16, v(XF + 2 * j + p)); I("v_and_b32", v(T + 5 + 2 * p), "0xffff0000", v(XF + 2 * j + p))
            for i in range(4): I("v_fma_f32", v(g + i), v(g + i), v(T + i), v(T + 4 + i))
            self.pack_bf(OP + 2 * j, g, 4)
        I("buffer_store_dwordx4", v(OP, 4), v(aX), srd(OUT), s(sA3), mods="offen")
        I("buffer_store_dwordx4", v(OP + 4, 4), v(aX), srd(OUT), s(sA3), mods="offen offset:16")
        I("buffer_store_dwordx2", v(OP + 8, 2), v(aX), srd(OUT), s(sA3), mods="offen offset:32")
        self.stamp(13)

    def t_unit(self, it, js):
        if 'not' in self.exp: return
        a = self.a; I = a.I; DL, G4, TT = 24, 29, 180; d = 60 + 24 * it + 8 * js
        if js == 0:
            I("s_lshl1_add_u32", s(sA0), s(sT7), s(sA3)); I("s_lshl_b32", s(sA0), s(sA0), 4); self.inc_mod(sT7, 5)
            I("v_cvt_f32_u32", v(30), s(sA0)); I("v_add_f32", v(30), v(30), v(G4))
        I("v_mul_f32", v(31), v(30), v(DL + js)); I("v_fract_f32", v(31), v(31))
        c, sn = self.trig(DL + js, 31, [0, 1, 2, 3], TT)
        for p in range(4): I("v_cvt_pk_bf16_f32", v(d + p), v(c + p), "-" + v(sn + p))
        for p in range(4): I("v_alignbit_b32", v(d + 4 + p), v(d + p), v(d + p), v(27))
        for p in range(4): I("v_xor_b32", v(d + 4 + p), v(28), v(d + 4 + p))
    def gemm2_l(self):
        a = self.a; I = a.I
        for q in range(self.npre + 1, 5): self.ring_dma(q)
        DL, G4 = 24, 29
        I("v_and_b32", v(2), 15, v(0)); I("v_lshrrev_b32", v(3), 2, v(2)); I("v_mul_u32_u24", v(3), 20, v(3)); I("v_and_b32", v(2), 3, v(2)); I("v_add_u32", v(3), v(2), v(3))
        I("s_mul_i32", s(sT0), s(sNG), 80); I("s_lshr_b32", s(sT1), s(sWL), 1); I("s_lshl3_add_u32", s(sT0), s(sT1), s(sT0)); I("v_add_u32", v(3), s(sT0), v(3)); I("v_cvt_f32_u32", v(3), v(3))
        for j in range(3):
            I("v_add_f32", v(4), fl(4.0 * j), v(3)); I("v_mul_f32", v(DL + j), fl(1 / 640), v(4))
        I("v_and_b32", v(4), 1, v(2)); I("v_lshlrev_b32", v(27), 4, v(4))
        I("v_mov_b32", v(28), 0); I("v_mov_b32", v(4), "0x80000000"); I("v_cmp_eq_u32", "vcc", 1, v(2)); I("v_cndmask_b32", v(28), v(28), v(4), "vcc")
        I("v_mov_b32", v(4), "0x80008000"); I("v_cmp_eq_u32", "vcc", 2, v(2)); I("v_cndmask_b32", v(28), v(28), v(4), "vcc")
        I("v_mov_b32", v(4), "0x8000"); I("v_cmp_eq_u32", "vcc", 3, v(2)); I("v_cndmask_b32", v(28), v(28), v(4), "vcc")
        I("v_lshrrev_b32", v(3), 4, v(0)); I("v_lshlrev_b32", v(3), 2, v(3)); I("v_cvt_f32_u32", v(G4), v(3))
        I("s_and_b32", s(sA3), s(sWL), 1); I("s_mov_b32", s(sT7), s(sTAU))
        I("s_mul_i32", s(sT0), s(sA3), 5120); I("s_lshl_b32", s(sT1), s(sT1), 11); I("s_add_u32", s(sT0), s(sT0), s(sT1))
        I("v_lshl_add_u32", v(32), v(0), 4, s(sT0)); I("v_add_u32", v(33), 3 * SLOT2, v(32))
        I("v_and_b32", v(2), 31, v(0)); I("v_lshlrev_b32", v(34), 5, v(2)); I("s_lshl_b32", s(sA2), s(sTQ), 10); I("s_add_u32", s(sA2), s(sA2), WS_FH)
        I("s_lshl_b32", s(sT0), s(sWL), 6); I("v_add_u32", v(2), s(sT0), v(0)); I("v_min_u32", v(2), 160, v(2)); I("v_lshlrev_b32", v(19), 5, v(2)); I("s_mov_b32", s(sT6), WS_FZ)
        self.stamp(9)
        units = [(it, js) for it in range(5) for js in range(3)]
        ldh = lambda: I("buffer_load_dword", v(35), v(34), srd(WS), s(sA2), mods="offen sc1", tag="fh")
        ldz = lambda: I("buffer_load_dword", v(35), v(19), srd(WS), s(sT6), mods="offen sc1", tag="fz")
        for q in range(17):
            if q < 12: a.wait_vm(f"r{q}")
            if q == 1: self.spin([ldh], [35], first="fh", level=1)
            if q == 5: self.spin([ldh], [35], first="fh", level=2)
            if q == 9 and 'nofft' not in self.exp: self.spin([ldz], [35], first="fz")
            a.wait_lg0()
            if q in (0, 9): self.stamp(10 if q == 0 else 11)
            I("s_barrier")
            if q in (0, 4): ldh()
            if q == 0: self.ring_dma(5)
            if 2 <= q <= 7: self.ring_dma(q + 4)
            if q == 8: ldz()
            if 8 <= q <= 12:
                it = q - 8; slot = (q + 4) % NSLOT2
                assert (it, 2) not in units
                for js in range(3):
                    for kh in range(2):
                        I("ds_write_b128", v(32 + slot // 3), v(60 + 24 * it + 8 * js + 4 * kh, 4), mods=f"offset:{(slot % 3) * SLOT2 + 1024 * js + 10240 * kh}")
            for _ in range(2):
                if units: self.t_unit(*units.pop(0))
        I("s_barrier")

    def finish(self):
        a = self.a; I = a.I
        if self.prof:
            a.label("L_prof")
            I("s_memtime", s(98, 2)); a.wait_lg0(); I("s_sub_u32", s(sPROF + 14), s(98), s(sPROF + 14)); self.stamp(15)
            I("s_lshl3_add_u32", s(sT0), s(sWG), s(sWV)); I("s_lshl_b32", s(sT0), s(sT0), 7); I("s_add_u32", s(sT0), s(sT0), WS_PROF)
            I("v_mov_b32", v(2), 0); I("s_mov_b64", "exec", 1)
            if 'dbg' in self.exp:
                I("s_cmp_lg_u32", s(sWV), 4 if 'dbgl' in self.exp else 0); I("s_cbranch_scc1", "L_end")
                I("s_not_b32", s(sPROF), s(sPROF))
                for k in range(16):
                    I("v_mov_b32", v(3), s(sPROF + k)); I("global_atomic_umax", v(2), v(3), s(20, 2), mods=f"offset:{4*k} sc1")
            else:
              for k in range(16):
                I("v_mov_b32", v(3), s(sPROF + k)); I("buffer_store_dword", v(3), v(2), srd(WS), s(sT0), mods=f"offen offset:{4*k}")
        a.label("L_end"); I("s_endpgm")

    def build(self):
        a = self.a; I = a.I
        endl = "L_prof" if self.prof else "L_end"
        if self.prof:
            for k in range(1, 16): I("s_mov_b32", s(sPROF + k), 0)
        self.prologue()
        I("s_mov_b32", s(sA3), WS_ST)
        self.row_fft(); self.gemm1(); self.gemm2_c()
        I("s_branch", endl)
        self.loader1(); self.gemm2_l()
        self.finish()
        n = a.pad_hazards()
        hdr = open("recurrent_scan__spectral_gfnet__glu_gated_geglu__prompt.s.ref").read().split("; Override launch")[0]
        txt = hdr + f"; @launch grid=(256,1,1) block=(512,1,1) lds={LDS_BYTES}\n"
        txt += f'.amdgcn_target "amdgcn-amd-amdhsa--gfx950"\n.text\n.globl {NAME}\n.p2align 8\n.type {NAME},@function\n{NAME}:\n'
        txt += a.text()
        txt += f"L_codeend:\n.set PFMAX, ((L_codeend - {NAME}) & ~127) - 128\n"
        nl = (len(a.ins) * 7 // 128 + 31) // 32 + 1
        txt = txt.replace("PFL*128", str(nl * 128)).replace("(1<<PFL)-1", str((1 << nl) - 1))
        txt += f""".section .rodata,"a"
.p2align 6
.amdhsa_kernel {NAME}
  .amdhsa_next_free_vgpr 256
  .amdhsa_next_free_sgpr 102
  .amdhsa_accum_offset 256
  .amdhsa_group_segment_fixed_size 0
  .amdhsa_kernarg_size 80
  .amdhsa_user_sgpr_count 2
  .amdhsa_user_sgpr_kernarg_segment_ptr 1
  .amdhsa_system_sgpr_workgroup_id_x 1
.end_amdhsa_kernel
"""
        return txt, n

if __name__ == "__main__":
    import argparse
    ap = argparse.ArgumentParser(); ap.add_argument("-o", default="k.s"); ap.add_argument("--prof", action="store_true"); ap.add_argument("--wpos", type=int, default=-1); ap.add_argument("--exp", default=""); ap.add_argument("--npre", type=int, default=1)
    args = ap.parse_args()
    txt, n = G(prof=args.prof, wpos=args.wpos, exp=args.exp.split(','), npre=args.npre).build()
    open(args.o, "w").write(txt)
    print("nops", n, "lines", txt.count("\n"))
```

```python
import numpy as np
S, D, F = 2048, 640, 1536
def bf16_round(x):
    x = np.ascontiguousarray(x, dtype=np.float32)
    u = x.view(np.uint32).astype(np.uint64)
    u = (u + 0x7FFF + ((u >> 16) & 1)) >> 16
    return u.astype(np.uint16)
def bf16_to_f32(u):
    return (np.asarray(u).astype(np.uint32) << 16).view(np.float32)
def rb(x): return bf16_to_f32(bf16_round(x))

import os
PAD = int(os.environ.get('PAD', '1'))
HP = 49152 + 1152 * PAD
ZP = 16384 + 384 * PAD
YP = 11264 + 128 * PAD
WS_E   = 0
WS_FA  = 4096
WS_FZ  = 16384
WS_ST  = 65536
WS_FH  = 1 << 17
WS_Y   = 1 << 18
WS_WP  = WS_Y + 256 * YP
WS_Z   = WS_WP + 256 * YP
WS_H   = WS_Z + 161 * ZP
WS_WD  = WS_H + 128 * HP
WS_PROF = WS_WD + 1536 * 640 * 2
WS_CG = WS_PROF + 256 * 8 * 256
WS_END = WS_CG + 16 * 2 * 10 * 512
SC = 2.0 / (S * D)

def stats(x):
    x64 = x.astype(np.float64)
    m = rb(x64.mean(1)); var = rb(x64.var(1))
    sd = rb(np.sqrt(rb(var + np.float32(1e-5))))
    return m, sd

def expected(x, wr, wi, wg, wu, wd):
    m, sd = stats(x)
    r = 1.0 / sd.astype(np.float64)
    xn = (x.astype(np.float64) - m[:, None]) * r[:, None]
    Y = np.fft.rfft(xn, axis=1) * SC
    Y[:, 0] *= 0.5; Y[:, 320] *= 0.5
    W = wr.astype(np.float64) + 1j * wi
    Z = np.fft.ifft(np.fft.fft(Y, axis=0) * W, axis=0) * S
    g = xn @ wg; u = xn @ wu
    h = 0.5 * g * (1 + np.tanh(0.7978845608028654 * (g + 0.044715 * g ** 3))) * u
    k = np.arange(320)[:, None]; d = np.arange(640)[None, :]
    th = 2 * np.pi * k * d / 640
    sp = Z[:, :320].real @ np.cos(th) - Z[:, :320].imag @ np.sin(th) + Z[:, 320].real[:, None] * ((-1.0) ** np.arange(640))[None, :]
    o = rb(h).astype(np.float64) @ wd
    gg = o / (1 + np.exp(-o))
    out = x + sp * gg
    return dict(m=m, sd=sd, Y=Y, Z=Z, h=h, s=sp, o=o, out=out)

def y_rows(y):
    b = y & 31; g = (y >> 5) & 3; j = y >> 7
    e = np.arange(8)
    return 32 * (32 * j + 16 * (e >> 2) + 4 * g + (e & 3)) + b

def decode_Y(ws):
    Y = np.zeros((S, 321), np.complex128)
    for y in range(256):
        a = bf16_to_f32(ws[WS_Y + y * YP: WS_Y + y * YP + 321 * 32].view(np.uint16)).reshape(321, 2, 8)
        Y[y_rows(y), :] = (a[:, 0, :] + 1j * a[:, 1, :]).T
    return Y
def decode_Wp(ws):
    wr = np.zeros((S, 321), np.float32); wi = np.zeros((S, 321), np.float32)
    for w in range(256):
        c = w & 63; Q = w >> 6
        a = bf16_to_f32(ws[WS_WP + w * YP: WS_WP + w * YP + 321 * 32].view(np.uint16)).reshape(321, 2, 2, 4).transpose(0, 1, 3, 2).reshape(321, 8, 2)
        rows = c + 64 * (8 * Q + np.arange(8))
        wr[rows, :] = a[:, :, 0].T; wi[rows, :] = a[:, :, 1].T
    return wr, wi
def decode_h(ws):
    a = bf16_to_f32(ws[WS_H: WS_H + 128 * HP].reshape(128, HP)[:, :49152].copy().view(np.uint16)).reshape(128, 48, 4, 16, 8)
    h = np.zeros((S, F), np.float32)
    e = np.arange(8)
    for st in range(48):
        for g in range(4):
            f = 96 * (st & 15) + 48 * (g >> 1) + 16 * (st >> 4) + 8 * (e >> 2) + 4 * (g & 1) + (e & 3)
            h[:, f] = a[:, st, g].reshape(S, 8)
    return h
def decode_Z(ws):
    a = bf16_to_f32(ws[WS_Z: WS_Z + 161 * ZP].reshape(161, ZP)[:, :16384].copy().view(np.uint16)).reshape(161, S, 2, 2)
    Z = (a[..., 0] + 1j * a[..., 1]).transpose(1, 0, 2).reshape(S, 322)
    return Z[:, :321]
def decode_stats(ws):
    a = ws[WS_ST: WS_ST + 2048 * 8].view(np.uint32).reshape(2048, 2)
    return bf16_to_f32(a[:, 0] & 0xffff), bf16_to_f32(a[:, 0] >> 16), a[:, 1]
```

```python
import struct, sys
from asmlib import *
from model import *

NAME = "recurrent_scan__spectral_gfnet__glu_gated_geglu__prompt_kernel"
def fl(x): return "0x%08x" % struct.unpack("<I", struct.pack("<f", x))[0]

SLOT1 = 41024; W1OFF = 16384; UPOFF = 12288 + 32
L_XR = 123072
L_YS = 135360
L_WRAW = 147648
L_WDR = 2 * SLOT1
L_WRL = 2 * SLOT1 + 10240
L_WRW = 2 * SLOT1 + 22528
L_YI = 123072
L_EX = 139456
L_CS = 158144
L_CNT = 161216
L_PC = L_CNT + 48; L_PL = L_CNT + 64
LDS_BYTES = 161344
SLOT2 = 20480; R2 = 0
def slot2(q): return (4, 5, 0, 1, 2, 3, 6)[q % 7]
L_GX = 0
BIG = 0x7fff0000

sWG, sWV = 2, 3
X, WS, W1, WR, WI, WD, OUT = 24, 28, 32, 36, 40, 44, 48
sXCD, sI, sMT, sFS, sCH, sTQ, sNG, sP, sNONCE, sWL = 52, 53, 54, 55, 56, 57, 58, 59, 60, 61
sT0, sT1, sT2, sT3, sT4, sT5, sT6, sT7 = 62, 63, 64, 65, 66, 67, 68, 69
sPOK, sSG, sTAU, sLIM = 70, 71, 72, 73
sA0, sA1, sA2, sA3 = 74, 75, 76, 77
sROLE = 78
sWB = 79
sFFT = 100
sPROF = 80
srd = lambda r: s(r, 4)

F64C, F64S, F32C, F32S, TW1, TW2 = 208, 216, 224, 232, 240, 248
NS64, NS32 = 192, 200
vWP = 36
vE = 1

class G:
    def __init__(self, prof=False, stop=99, wpos=-1, exp=(), npre=2):
        self.npre = npre; self.tlbsh = 19; self.xper = 4; self.tper = 2; self.qz = 9; self.zq = 1; self.lgat = (0, 1, 2, 3, 4); self.fsh = 7; self.slp = 8; self.jf = 2; self.jp = 7
        self.exp = set(exp)
        self.a = Asm(); self.prof = prof; self.stop = stop; self.wpos = wpos; self.nlab = 0
    def lab(self, p): self.nlab += 1; return f"L_{p}{self.nlab}"
    def stamp(self, k, mode=None):
        if not self.prof: return
        cur = 'pg2' if 'pg2' in self.exp else ('pg1' if 'pg1' in self.exp else None)
        if mode != cur and k != 15: return
        a = self.a
        a.I("s_memtime" if 'cyc' in self.exp else "s_memrealtime", s(98, 2)); a.wait_lg0(); a.I("s_mov_b32", s(sPROF + k), s(98))

    def trig(self, delta, base, koffs, tmp):
        a = self.a; n = len(koffs); T = []
        for e, k in enumerate(koffs):
            if k == 0: T.append(base)
            else:
                a.I("v_fmamk_f32", v(tmp + e), v(delta), fl(float(k)), v(base)); T.append(tmp + e)
        for e in range(n): a.I("v_cos_f32", v(tmp + n + e), v(T[e]))
        for e in range(n): a.I("v_sin_f32", v(tmp + 2 * n + e), v(T[e]))
        return tmp + n, tmp + 2 * n
    def pack_bf(self, dst, src, n, neg=False):
        sg = "-" if neg else ""
        for p in range(n // 2): self.a.I("v_cvt_pk_bf16_f32", v(dst + p), sg + v(src + 2 * p), sg + v(src + 2 * p + 1))
    def cmul_tw(self, dr, di, r, i, tw, inverse):
        a = self.a
        a.I("v_fma_mix_f32", v(dr), v(r), v(tw), "0", mods="op_sel_hi:[0,1,0]")
        a.I("v_fma_mix_f32", v(di), v(i), v(tw), "0", mods="op_sel_hi:[0,1,0]")
        a.I("v_fma_mix_f32", v(dr), ("-" if inverse else "") + v(i), v(tw), v(dr), mods="op_sel:[0,1,0] op_sel_hi:[0,1,0]")
        a.I("v_fma_mix_f32", v(di), ("" if inverse else "-") + v(r), v(tw), v(di), mods="op_sel:[0,1,0] op_sel_hi:[0,1,0]")
    def mod(self, dst, src, m, tmp):
        a = self.a
        a.I("s_mul_i32", s(tmp), s(src), (65536 + m - 1) // m); a.I("s_lshr_b32", s(tmp), s(tmp), 16)
        a.I("s_mul_i32", s(tmp), s(tmp), m); a.I("s_sub_u32", s(dst), s(src), s(tmp))
    def inc_mod(self, r, m):
        a = self.a
        a.I("s_add_u32", s(r), s(r), 1); a.I("s_cmp_eq_u32", s(r), m); a.I("s_cselect_b32", s(r), 0, s(r))
    def spin(self, loads, regs_, first=None, level=None, keep=False):
        a = self.a; L = self.lab("poll"); Dn = self.lab("pdone"); C = self.lab("pchk")
        a.I("s_mov_b32", s(sLIM), 20000)
        kq = []
        if first:
            a.wait_vm(first); kq = list(a.vm); a.I("s_branch", C)
        a.label(L)
        for ld in loads: ld()
        a.wait_vm0(); a.vm = kq
        a.label(C)
        if level is None:
            a.I("v_cmp_eq_u32", "vcc", s(sNONCE), v(regs_[0]))
            for r in regs_[1:]:
                a.I("v_cmp_eq_u32", s(sA0, 2), s(sNONCE), v(r)); a.I("s_and_b64", "vcc", "vcc", s(sA0, 2))
        else:
            a.I("s_add_u32", s(sA0), s(sNONCE), level); a.I("v_subrev_u32", v(regs_[0]), s(sA0), v(regs_[0]))
            a.I("v_cmp_ge_u32", "vcc", 2 - level, v(regs_[0]))
        a.I("s_cmp_eq_u64", "vcc", "exec"); a.I("s_cbranch_scc1", Dn)
        a.I("s_sub_u32", s(sLIM), s(sLIM), 1); a.I("s_cmp_eq_u32", s(sLIM), 0); a.I("s_cbranch_scc1", Dn)
        a.I("s_sleep", self.slp); a.I("s_branch", L)
        a.label(Dn)
    def lds_arrive(self, k, t0):
        a = self.a; I = a.I
        I("v_mov_b32", v(t0), L_CNT + 4 * k); I("v_mov_b32", v(t0 + 1), 1)
        I("s_mov_b64", "exec", 1); I("ds_add_u32", v(t0), v(t0 + 1)); I("s_mov_b64", "exec", -1)
    def lds_wait(self, k, t0, n=4):
        a = self.a; I = a.I; L = self.lab("ls"); Dn = self.lab("lsd")
        I("v_mov_b32", v(t0), L_CNT + 4 * k)
        I("s_mov_b32", s(sLIM), 200000)
        a.label(L)
        I("ds_read_b32", v(t0 + 1), v(t0)); a.wait_lg0()
        I("v_readfirstlane_b32", s(sA0), v(t0 + 1)); I("s_cmp_ge_u32", s(sA0), n); I("s_cbranch_scc1", Dn)
        I("s_sub_u32", s(sLIM), s(sLIM), 1); I("s_cmp_lg_u32", s(sLIM), 0); I("s_cbranch_scc1", L)
        a.label(Dn)
    def prog_min(self, t):
        I = self.a.I
        I("v_min3_u32", v(t), v(t), v(t + 1), v(t + 2)); I("v_min_u32", v(t), v(t), v(t + 3)); I("v_readfirstlane_b32", s(sA0), v(t))
    def prog_wait(self, va, t, n):
        a = self.a; I = a.I; L = self.lab("pw"); Dn = self.lab("pwd")
        I("s_mov_b32", s(sLIM), 200000)
        a.label(L)
        I("ds_read_b128", v(t, 4), v(va)); a.wait_lg0()
        self.prog_min(t); I("s_cmp_ge_u32", s(sA0), n); I("s_cbranch_scc1", Dn)
        I("s_sub_u32", s(sLIM), s(sLIM), 1); I("s_cmp_lg_u32", s(sLIM), 0); I("s_cbranch_scc1", L)
        a.label(Dn)
    def prog_add(self, va, vone):
        I = self.a.I
        I("s_mov_b64", "exec", 1); I("ds_add_u32", v(va), v(vone)); I("s_mov_b64", "exec", -1)
    def lds_sync(self, k, t0, n=4):
        self.lds_arrive(k, t0); self.lds_wait(k, t0, n)
    def flag_store(self, soff, tmpv, level=0):
        a = self.a
        a.I("v_mov_b32", v(tmpv), s(sNONCE)); a.I("v_mov_b32", v(tmpv + 1), 0)
        if level: a.I("v_add_u32", v(tmpv), level, v(tmpv))
        a.I("s_mov_b64", "exec", 1)
        a.I("buffer_store_dword", v(tmpv), v(tmpv + 1), srd(WS), soff, mods="offen sc1", tag="flag")
        a.I("s_mov_b64", "exec", -1)

    def prologue(self):
        a = self.a; I = a.I
        I("s_cmp_ge_u32", s(sWG), 256); I("s_cbranch_scc1", "L_end")
        I("s_load_dwordx16", s(4, 16), s(0, 2), 0); I("s_load_dwordx4", s(20, 4), s(0, 2), 64)
        if self.prof: I("s_memtime" if 'cyc' in self.exp else "s_memrealtime", s(98, 2))
        I("v_lshrrev_b32", v(1), 6, v(0)); I("v_and_b32", v(0), 63, v(0)); I("v_readfirstlane_b32", s(sWV), v(1))
        if 'nopf' not in self.exp:
            I("s_getpc_b64", s(sT0, 2)); I("s_lshr_b32", s(sT2), s(sWG), 3); I("s_mul_i32", s(sT2), s(sT2), "PFL*128")
            I("v_lshl_add_u32", v(4), v(0), 7, s(sT2)); I("v_min_u32", v(4), "PFMAX", v(4)); I("v_mov_b32", v(5), s(sT1))
            I("v_add_co_u32", v(4), "vcc", s(sT0), v(4)); I("v_addc_co_u32", v(5), "vcc", 0, v(5), "vcc")
            I("s_cmp_lg_u32", s(sWV), 7); I("s_cbranch_scc1", "L_nopf")
            I("s_mov_b64", "exec", "(1<<PFL)-1")
            I("global_load_dword", v(6), v(4, 2), "off"); a.vm.pop()
            I("s_mov_b64", "exec", -1)
            a.label("L_nopf")
        I("s_and_b32", s(sXCD), s(sWG), 7); I("s_lshr_b32", s(sI), s(sWG), 3)
        I("s_and_b32", s(sT0), s(sXCD), 1); I("s_lshl_b32", s(sT0), s(sT0), 3); I("s_and_b32", s(sT1), s(sI), 7); I("s_add_u32", s(sMT), s(sT0), s(sT1))
        I("s_lshr_b32", s(sT0), s(sXCD), 1); I("s_lshl_b32", s(sT0), s(sT0), 2); I("s_lshr_b32", s(sT1), s(sI), 3); I("s_add_u32", s(sFS), s(sT0), s(sT1))
        I("s_add_u32", s(sT0), s(sMT), s(sFS)); self.mod(sCH, sT0, 10, sT1)
        I("s_and_b32", s(sT0), s(sXCD), 1); I("s_xor_b32", s(sT0), s(sT0), 1); I("s_lshr_b32", s(sT1), s(sXCD), 1); I("s_lshl2_add_u32", s(sT1), s(sT0), s(sT1))
        if 'selfq' in self.exp: I("s_mov_b32", s(sT1), s(sXCD))
        I("s_and_b32", s(sT0), s(sI), 3); I("s_lshl2_add_u32", s(sTQ), s(sT1), s(sT0)); I("s_lshr_b32", s(sNG), s(sI), 2)
        I("s_add_u32", s(sT0), s(sT0), s(sNG))
        if 'rotx' in self.exp: I("s_add_u32", s(sT0), s(sT0), s(sXCD))
        if 'rot0' in self.exp: I("s_mov_b32", s(sT0), 0)
        I("s_and_b32", s(sSG), s(sT0), 3)
        self.mod(sTAU, sNG, 5, sT1)
        self.mod(sT0, sI, 20, sT1); I("s_mul_i32", s(sP), s(sXCD), 20); I("s_add_u32", s(sP), s(sP), s(sT0))
        I("s_cmp_lt_u32", s(sI), 20); I("s_cselect_b32", s(sPOK), 0, BIG)
        I("s_cmp_eq_u32", s(sWG), 160); I("s_cselect_b32", s(sP), 160, s(sP)); I("s_cselect_b32", s(sPOK), 0, s(sPOK))
        I("s_and_b32", s(sWL), s(sWV), 3)
        I("s_cmp_eq_u32", s(sPOK), 0); I("s_cselect_b32", s(sFFT), 1, 0)
        a.wait_lg0()
        if self.prof:
            I("s_mov_b32", s(sPROF), s(98)); I("s_memtime", s(98, 2)); a.wait_lg0(); I("s_mov_b32", s(sPROF + 14), s(98))
        for r, p, n in ((X, 4, S * D * 2), (WS, 22, WS_END), (WR, 6, S * 642), (WI, 8, S * 642), (WD, 16, F * D * 2), (OUT, 18, S * D * 2)):
            I("s_mov_b32", s(r), s(p)); I("s_mov_b32", s(r + 1), s(p + 1)); I("s_mov_b32", s(r + 2), n); I("s_mov_b32", s(r + 3), "0x20000")
        I("s_bitcmp1_b32", s(sWV), 0)
        I("s_cselect_b32", s(W1), s(14), s(12)); I("s_cselect_b32", s(W1 + 1), s(15), s(13)); I("s_mov_b32", s(W1 + 2), D * F * 2); I("s_mov_b32", s(W1 + 3), "0x20000")
        I("v_mov_b32", v(2), 0)
        I("buffer_load_dword", v(vE), v(2), srd(WS), 0, mods="offen sc1", tag="E")
        I("s_cmp_ge_u32", s(sWV), 4); I("s_cselect_b32", s(sROLE), 1, 0)
        I("s_cmp_eq_u32", s(sROLE), 1); I("s_cbranch_scc1", "L_ld0")
        if 'noprio' not in self.exp: I("s_setprio", 1)
        I("s_lshr_b32", s(sT0), s(sWG), 7); I("s_lshl_b32", s(sT0), s(sT0), 5)
        I("s_lshr_b32", s(sT1), s(sWV), 1); I("s_lshl4_add_u32", s(sT0), s(sT1), s(sT0))
        I("s_bfe_u32", s(sT1), s(sWG), 5 | (2 << 16)); I("s_lshl2_add_u32", s(sT0), s(sT1), s(sT0))
        I("s_and_b32", s(sT1), s(sWV), 1); I("s_lshl1_add_u32", s(sT0), s(sT1), s(sT0))
        I("s_lshl_b32", s(sT0), s(sT0), 5); I("s_and_b32", s(sT1), s(sWG), 31); I("s_add_u32", s(sT6), s(sT0), s(sT1))
        I("s_mul_i32", s(sT0), s(sT6), 1280)
        I("s_mul_i32", s(sT7), s(sWV), 3072); I("s_add_u32", s(sT7), s(sT7), L_XR)
        I("s_mov_b32", "m0", s(sT7))
        I("v_lshlrev_b32", v(2), 4, v(0))
        I("v_add_u32", v(3), 39680, v(2)); I("v_cmp_gt_u32", "vcc", 16, v(0)); I("v_cndmask_b32", v(4), v(3), v(2), "vcc")
        I("v_mov_b32", v(5), BIG); I("v_cmp_gt_u32", "vcc", 32, v(0)); I("v_cndmask_b32", v(5), v(5), v(3), "vcc")
        I("buffer_load_dwordx4", v(2), srd(X), s(sT0), mods="offen lds", tag="xr")
        I("buffer_load_dwordx4", v(4), srd(X), s(sT0), mods="offen offset:1024 lds", tag="xr")
        I("buffer_load_dwordx4", v(5), srd(X), s(sT0), mods="offen offset:2048 lds", tag="xr")
        self.cvm = a.vm

    def consts(self):
        a = self.a; I = a.I
        I("v_and_b32", v(60), 15, v(0)); I("v_lshrrev_b32", v(61), 4, v(0))
        I("v_cvt_f32_u32", v(62), v(60)); I("v_lshlrev_b32", v(61), 2, v(61)); I("v_cvt_f32_u32", v(63), v(61))
        I("s_lshl_b32", s(sT0), s(sWL), 4); I("v_cvt_f32_u32", v(64), s(sT0))
        I("v_add_f32", v(65), v(62), v(64))
        I("v_mul_f32", v(66), fl(1 / 64), v(65)); I("v_mul_f32", v(67), v(63), v(66))
        for j in range(2):
            c, sn = self.trig(66, 67, [32 * j + 16 * (e >> 2) + (e & 3) for e in range(8)], 70)
            self.pack_bf(F64C + 4 * j, c, 8); self.pack_bf(F64S + 4 * j, sn, 8)
        I("v_mul_f32", v(66), fl(1 / 2048), v(65)); I("v_mul_f32", v(67), v(63), v(66))
        c, sn = self.trig(66, 67, [16 * (e >> 2) + (e & 3) for e in range(8)], 70)
        for e in range(8): I("v_cvt_pk_f16_f32", v(TW1 + e), v(c + e), v(sn + e))
        I("v_add_f32", v(64), v(64), v(63))
        for md in range(2):
            if md: I("v_add_f32", v(62), fl(16.0), v(62))
            I("v_mul_f32", v(66), fl(1 / 32), v(62)); I("v_mul_f32", v(67), v(63), v(66))
            c, sn = self.trig(66, 67, [16 * (e >> 2) + (e & 3) for e in range(8)], 70)
            self.pack_bf(F32C + 4 * md, c, 8); self.pack_bf(F32S + 4 * md, sn, 8)
            I("v_mul_f32", v(66), fl(1 / 2048), v(62)); I("v_mul_f32", v(67), v(64), v(66))
            c, sn = self.trig(66, 67, [0, 1, 2, 3], 70)
            for e in range(4): I("v_cvt_pk_f16_f32", v(TW2 + 4 * md + e), v(c + e), v(sn + e))
        for k in range(8): I("v_xor_b32", v(NS64 + k), "0x80008000", v(F64S + k)); I("v_xor_b32", v(NS32 + k), "0x80008000", v(F32S + k))

    def nonce(self):
        a = self.a; I = a.I
        a.wait_vm("E")
        I("v_readfirstlane_b32", s(sNONCE), v(vE))
        I("s_mul_i32", s(sNONCE), s(sNONCE), "0x9e3779b1"); I("s_add_u32", s(sNONCE), s(sNONCE), "0x7f4a7c15")

    def row_fft(self):
        a = self.a; I = a.I; a.vm = self.cvm
        FC, FS, TW, G0, G1, G2 = 8, 16, 24, 36, 40, 44
        I("v_and_b32", v(60), 31, v(0)); I("v_lshrrev_b32", v(61), 5, v(0))
        I("v_cvt_f32_u32", v(62), v(60)); I("v_cvt_f32_u32", v(63), v(61))
        I("v_mul_f32", v(66), fl(1 / 32), v(62)); I("v_mul_f32", v(67), fl(8.0), v(63)); I("v_mul_f32", v(67), v(67), v(66))
        for jj in range(2):
            c, sn = self.trig(66, 67, [16 * jj + e for e in range(8)], 70)
            self.pack_bf(FC + 4 * jj, c, 8); self.pack_bf(FS + 4 * jj, sn, 8, neg=True)
        I("v_mul_f32", v(63), 4.0, v(63))
        I("v_mul_f32", v(66), fl(1 / 640), v(62)); I("v_mul_f32", v(67), v(63), v(66))
        c, sn = self.trig(66, 67, [8 * (e >> 2) + (e & 3) for e in range(12)], 70)
        for e in range(12): I("v_cvt_pk_f16_f32", v(TW + e), v(c + e), v(sn + e))
        I("v_cmp_gt_u32", "vcc", 32, v(0))
        for e in range(8, 12): I("v_cndmask_b32", v(TW + e), 0, v(TW + e), "vcc")
        I("v_lshrrev_b32", v(64), 1, v(60)); I("v_cvt_f32_u32", v(64), v(64)); I("v_and_b32", v(65), 1, v(60)); I("v_cvt_f32_u32", v(65), v(65))
        I("v_mul_f32", v(66), fl(1 / 20), v(64)); I("v_mul_f32", v(67), v(63), v(66)); I("v_fmac_f32", v(67), fl(0.25), v(65))
        c, sn = self.trig(66, 67, [8 * (e >> 2) + (e & 3) for e in range(12)], 70)
        self.pack_bf(G0, c, 8); self.pack_bf(G1, sn, 8); self.pack_bf(G2, c + 8, 4); self.pack_bf(G2 + 2, sn + 8, 4)
        aT, aS, aY, fA, fB, e0 = 48, 49, 50, 51, 52, 53
        I("v_and_b32", v(64), 15, v(0)); I("v_lshrrev_b32", v(65), 2, v(64)); I("v_lshl_add_u32", v(65), v(61), 3, v(65))
        I("v_mul_u32_u24", v(65), 40, v(65)); I("v_and_b32", v(64), 3, v(64)); I("v_lshl_add_u32", v(65), v(64), 3, v(65))
        I("v_and_b32", v(64), 16, v(0)); I("v_lshl_add_u32", v(65), v(64), 1, v(65)); I("v_add_u32", v(aT), s(sT7), v(65))
        I("v_mul_u32_u24", v(64), 1280, v(61)); I("v_mad_u32_u24", v(64), v(60), 40, v(64)); I("v_add_u32", v(aS), s(sT7), v(64))
        I("s_lshl_b32", s(sT0), s(sWV), 2); I("s_add_u32", s(sT0), s(sT0), L_YS)
        I("v_lshlrev_b32", v(64), 5, v(60)); I("v_lshl_add_u32", v(64), v(61), 11, v(64)); I("v_add_u32", v(aY), s(sT0), v(64))
        I("v_cmp_eq_u32", "vcc", 0, v(0)); I("v_cndmask_b32", v(fA), 1.0, 0.5, "vcc"); I("v_cndmask_b32", v(e0), 0, 1.0, "vcc")
        I("v_cmp_eq_u32", "vcc", 32, v(0)); I("v_cndmask_b32", v(fB), 1.0, 0.5, "vcc")
        I("v_lshl_add_u32", v(54), v(61), 5, s(sT6)); I("v_lshlrev_b32", v(54), 3, v(54))
        self.gemm1_setup()
        self.nonce()
        a.wait_vm("xr")
        self.stamp(1)
        SD, AF = 60, 72
        for u in range(5): I("ds_read_b64", v(SD + 2 * u, 2), v(aS), mods=f"offset:{8*u}", tag="sd")
        for r in range(2):
            for jj in range(2):
                for rd in range(2):
                    I("ds_read_b64_tr_b16", v(AF + 8 * r + 4 * jj + 2 * rd, 2), v(aT), mods=f"offset:{1280*r+640*jj+160*rd}", tag=f"af{r}")
        A1 = 112
        def st1(r):
            for ri, Fm in ((0, FC), (1, FS)):
                d = v(A1 + 32 * r + 16 * ri, 16)
                I("v_mfma_f32_32x32x16_bf16", d, v(AF + 8 * r, 4), v(Fm, 4), 0)
                I("v_mfma_f32_32x32x16_bf16", d, v(AF + 8 * r + 4, 4), v(Fm + 4, 4), d)
        a.wait_lg("af0"); st1(0); a.wait_lg("af1"); st1(1)
        s0, s1, q0, q1, t0, t1 = 88, 89, 90, 91, 92, 93
        for u in range(10):
            I("v_lshlrev_b32", v(t0), 16, v(SD + u)); I("v_and_b32", v(t1), "0xffff0000", v(SD + u))
            if u == 0:
                I("v_mov_b32", v(s0), v(t0)); I("v_mov_b32", v(s1), v(t1)); I("v_mul_f32", v(q0), v(t0), v(t0)); I("v_mul_f32", v(q1), v(t1), v(t1))
            else:
                I("v_add_f32", v(s0), v(s0), v(t0)); I("v_add_f32", v(s1), v(s1), v(t1)); I("v_fmac_f32", v(q0), v(t0), v(t0)); I("v_fmac_f32", v(q1), v(t1), v(t1))
        I("v_add_f32", v(s0), v(s0), v(s1)); I("v_add_f32", v(q0), v(q0), v(q1))
        for sh in (1, 2, 4, 8):
            for r_ in (s0, q0): I("v_add_f32_dpp", v(r_), v(r_), v(r_), mods=f"row_shr:{sh} row_mask:0xf bank_mask:0xf bound_ctrl:1")
        for r_ in (s0, q0): I("v_add_f32_dpp", v(r_), v(r_), v(r_), mods="row_bcast:15 row_mask:0xa bank_mask:0xf")
        I("v_mul_f32", v(s0), fl(1 / 640), v(s0)); I("v_mul_f32", v(q0), fl(1 / 640), v(q0))
        I("v_fma_f32", v(q0), "-" + v(s0), v(s0), v(q0)); I("v_max_f32", v(q0), 0, v(q0))
        I("v_cvt_pk_bf16_f32", v(t0), v(s0), v(q0))
        I("v_and_b32", v(t1), "0xffff0000", v(t0)); I("v_add_f32", v(t1), fl(1e-5), v(t1))
        I("v_cvt_pk_bf16_f32", v(t1), v(t1), v(t1)); I("v_and_b32", v(t1), "0xffff0000", v(t1))
        I("v_sqrt_f32", v(t1), v(t1)); I("v_cvt_pk_bf16_f32", v(t1), v(t1), v(t1)); I("v_and_b32", v(t1), "0xffff0000", v(t1))
        I("v_rcp_f32", v(q1), v(t1)); I("v_and_b32", v(94), "0xffff", v(t0)); I("v_or_b32", v(94), v(94), v(t1)); I("v_mov_b32", v(95), s(sNONCE))
        I("v_mul_f32", v(q1), fl(SC), v(q1)); I("v_lshlrev_b32", v(s1), 16, v(t0)); I("v_mul_f32", v(s1), fl(-640.0), v(s1))
        I("s_mov_b32", "exec_lo", "0x80000000"); I("s_mov_b32", "exec_hi", "0x80000000")
        I("buffer_store_dwordx2", v(94, 2), v(54), srd(WS), s(sA3), mods="offen sc1", tag="gr")
        I("s_mov_b64", "exec", -1)
        I("v_readlane_b32", s(sT0), v(q1), 31); I("v_readlane_b32", s(sT1), v(q1), 63)
        I("v_readlane_b32", s(sT2), v(s1), 31); I("v_readlane_b32", s(sT3), v(s1), 63)
        B2 = 60; A2 = 176; TR, TI = 88, 100
        for r in range(2):
            re, im = A1 + 32 * r, A1 + 32 * r + 16
            for e in range(12): self.cmul_tw(TR + e, TI + e, re + e, im + e, TW + e, False)
            b = B2 + 12 * r
            self.pack_bf(b, TR, 8); self.pack_bf(b + 4, TI, 8); self.pack_bf(b + 8, TR + 8, 4); self.pack_bf(b + 10, TI + 8, 4)
            d = v(A2 + 16 * r, 16)
            I("v_mfma_f32_32x32x16_bf16", d, v(G0, 4), v(b, 4), 0)
            I("v_mfma_f32_32x32x16_bf16", d, v(G1, 4), v(b + 4, 4), d)
            I("v_mfma_f32_32x32x16_bf16", d, v(G2, 4), v(b + 8, 4), d)
        for r in range(2):
            o = A2 + 16 * r
            I("v_fma_f32", v(o), v(e0), s(sT2 + r), v(o))
            I("v_mul_f32", v(o), v(o), v(fA)); I("v_mul_f32", v(o + 8), v(o + 8), v(fB))
            for e in range(12): I("v_mul_f32", v(o + e), s(sT0 + r), v(o + e))
        for e in range(12):
            I("v_cvt_pk_bf16_f32", v(88 + e), v(A2 + e), v(A2 + 16 + e))
        for e in range(12):
            I("ds_write_b32", v(aY), v(88 + e), mods=f"offset:{(e >> 2) * 4096 + ((e & 3) >> 1) * 1024 + (e & 1) * 16}", tag="ys")

    XB, WB, CSW, CSR, GA, SEL, HA, XA, WE, GR = 208, 212, 214, 215, 216, 220, 224, 226, 230, 232
    def gemm1_setup(self):
        a = self.a; I = a.I
        XB, WB, CSW, CSR, GA, SEL, HA = self.XB, self.WB, self.CSW, self.CSR, self.GA, self.SEL, self.HA
        I("s_and_b32", s(sT4), s(sWV), 1); I("s_lshr_b32", s(sT5), s(sWV), 1)
        I("v_and_b32", v(2), 31, v(0)); I("v_lshrrev_b32", v(3), 5, v(0)); I("v_bfe_u32", v(4), v(0), 1, 3)
        I("s_lshl_b32", s(sT0), s(sT4), 13); I("v_lshl_add_u32", v(5), v(2), 7, s(sT0))
        I("s_lshl_b32", s(sT2), s(sT4), 2)
        for sp in range(4):
            I("s_xor_b32", s(sT1), s(sT2), 2 * sp)
            I("v_add_u32", v(6), s(sT1), v(3)); I("v_xor_b32", v(6), v(6), v(4)); I("v_lshl_add_u32", v(XB + sp), v(6), 4, v(5))
        I("v_and_b32", v(6), 15, v(0)); I("v_lshrrev_b32", v(7), 2, v(6)); I("v_lshl_add_u32", v(7), v(3), 3, v(7)); I("v_mul_u32_u24", v(7), 192, v(7))
        I("v_and_b32", v(6), 3, v(6)); I("v_lshl_add_u32", v(7), v(6), 3, v(7))
        I("v_bfe_u32", v(6), v(0), 4, 1); I("v_mul_u32_u24", v(6), UPOFF, v(6)); I("v_add_u32", v(7), v(7), v(6))
        I("s_mul_i32", s(sT0), s(sT5), 96); I("s_add_u32", s(sT0), s(sT0), W1OFF); I("s_mul_i32", s(sT1), s(sT4), 6144)
        I("s_add_u32", s(sT2), s(sT0), s(sT1)); I("s_sub_u32", s(sT3), s(sT0), s(sT1))
        I("v_add_u32", v(WB), s(sT2), v(7)); I("v_add_u32", v(WB + 1), s(sT3), v(7))
        I("s_mul_i32", s(sT0), s(sWV), 768); I("s_add_u32", s(sT0), s(sT0), L_CS); I("v_lshl_add_u32", v(CSW), v(0), 2, s(sT0))
        I("s_xor_b32", s(sT0), s(sWV), 1); I("s_mul_i32", s(sT0), s(sT0), 768); I("s_add_u32", s(sT0), s(sT0), L_CS); I("v_lshl_add_u32", v(CSR), v(0), 2, s(sT0))
        I("s_lshl1_add_u32", s(sT0), s(sMT), s(sT4)); I("s_lshl_b32", s(sT0), s(sT0), 9); I("v_lshl_add_u32", v(GA), v(2), 3, s(sT0))
        I("v_cmp_eq_u32", "vcc", 0, v(2)); I("v_cmp_eq_u32", s(sT0, 2), 20, v(2)); I("s_or_b64", "vcc", "vcc", s(sT0, 2))
        I("v_mov_b32", v(6), "0x3f803f80")
        for k in range(4): I("v_cndmask_b32", v(SEL + k), 0, v(6), "vcc")
        I("v_bfe_u32", v(6), v(0), 4, 1); I("v_mul_u32_u24", v(6), HP, v(6)); I("v_lshl_add_u32", v(6), v(3), 8, v(6))
        I("v_and_b32", v(7), 15, v(0)); I("v_lshl_add_u32", v(HA), v(7), 4, v(6)); I("v_add_u32", v(HA + 1), 2 * HP, v(HA))

    def gemm1(self):
        a = self.a; I = a.I
        XB, WB, CSW, CSR, GA, SEL, HA, XA, WE, GR = self.XB, self.WB, self.CSW, self.CSR, self.GA, self.SEL, self.HA, self.XA, self.WE, self.GR
        CS, BUF, ACC = 60, (72, 92), 112
        def reads(sp, b, xa, we):
            R = [("ds_read_b128", v(b, 4), v(xa + sp), ""), ("ds_read_b128", v(b + 4, 4), v(xa + sp), "offset:4096")]
            for ft in range(3):
                for rd in range(2):
                    R.append(("ds_read_b64_tr_b16", v(b + 8 + 4 * ft + 2 * rd, 2), v(we + (sp >> 1)), f"offset:{sp*3072 + rd*768 + ft*32}"))
            return R
        def group(b, R, cs=False, gaps=None, zero=False, cszero=False):
            k = 0
            for ft in range(3):
                for tt in range(2):
                    d = v(ACC + 32 * ft + 16 * tt, 16)
                    if 'nomfma' not in self.exp: I("v_mfma_f32_32x32x16_bf16", d, v(b + 8 + 4 * ft, 4), v(b + 4 * tt, 4), 0 if zero else d)
                    for _ in range(2):
                        if R: o = R.pop(0); I(o[0], o[1], o[2], mods=o[3])
                    if cs and tt == 0 and 'nocs' not in self.exp:
                        I("v_mfma_f32_16x16x32_bf16", v(CS + 4 * ft, 4), v(SEL, 4), v(b + 8 + 4 * ft, 4), 0 if cszero else v(CS + 4 * ft, 4))
                    if gaps and k in gaps: gaps[k]()
                    k += 1
        def tail_gaps():
            def g0():
                I("s_add_u32", s(sT1), s(sT1), SLOT1); I("s_cmp_eq_u32", s(sT1), 3 * SLOT1); I("s_cselect_b32", s(sT1), 0, s(sT1))
            def g1():
                for ft in range(3): I("ds_write_b32", v(CSW), v(CS + 4 * ft), mods=f"offset:{256*ft}")
            def g4():
                for k in range(4): I("v_add_u32", v(XA + k), s(sT1), v(XB + k))
                I("v_add_u32", v(WE), s(sT1), v(WB)); I("v_add_u32", v(WE + 1), s(sT1), v(WB + 1))
            return {0: g0, 1: g1, 4: g4}
        a.wait_lg0()
        I("s_mov_b32", s(sT0), 1); I("s_mov_b32", s(sT1), 0)
        self.stamp(2); self.stamp(1, 'pg1')
        I("s_barrier")
        self.stamp(3)
        for o in reads(0, BUF[0], XB, WB): I(o[0], o[1], o[2], mods=o[3])
        a.wait_lg0()
        group(BUF[0], reads(1, BUF[1], XB, WB), cs=True, zero=True, cszero=True); a.wait_lg0()
        group(BUF[1], reads(2, BUF[0], XB, WB), cs=True); a.wait_lg0()
        group(BUF[0], reads(3, BUF[1], XB, WB), gaps=tail_gaps()); a.wait_lg0()
        self.stamp(2, 'pg1')
        I("s_barrier")
        if 'roll' not in self.exp:
            for j in range(1, 10):
                sl = (j % 3) * SLOT1
                def g4(j=j):
                    nx = ((j + 1) % 3) * SLOT1
                    for k in range(4): I("v_add_u32", v(XA + k), nx, v(XB + k))
                    I("v_add_u32", v(WE), nx, v(WB)); I("v_add_u32", v(WE + 1), nx, v(WB + 1))
                def gl():
                    for tt in range(2): I("buffer_load_dwordx2", v(GR + 2 * tt, 2), v(GA), srd(WS), s(sA3), mods=f"offen offset:{256*tt} sc1", tag="gl")
                group(BUF[1], reads(0, BUF[0], XA, WE), gaps={4: gl} if j == 6 else None); a.wait_lg0()
                group(BUF[0], reads(1, BUF[1], XA, WE), cs=True); a.wait_lg0()
                group(BUF[1], reads(2, BUF[0], XA, WE), cs=True); a.wait_lg0()
                tg = {4: g4} if j < 9 else {1: tail_gaps()[1]}
                group(BUF[0], reads(3, BUF[1], XA, WE), gaps=tg); a.wait_lg0()
                self.stamp(j + 2, 'pg1')
                I("s_barrier")
        else:
            a.label("L_g1")
            def gl():
                I("s_cmp_lg_u32", s(sT0), 6); I("s_cbranch_scc1", "L_g1n")
                for tt in range(2): I("buffer_load_dwordx2", v(GR + 2 * tt, 2), v(GA), srd(WS), s(sA3), mods=f"offen offset:{256*tt} sc1", tag="gl")
                a.label("L_g1n")
            group(BUF[1], reads(0, BUF[0], XA, WE), gaps={4: gl}); a.wait_lg0()
            group(BUF[0], reads(1, BUF[1], XA, WE), cs=True); a.wait_lg0()
            group(BUF[1], reads(2, BUF[0], XA, WE), cs=True); a.wait_lg0()
            tg = tail_gaps()
            def g2(): I("s_add_u32", s(sT0), s(sT0), 1); I("s_cmp_lt_u32", s(sT0), 10)
            tg[2] = g2
            group(BUF[0], reads(3, BUF[1], XA, WE), gaps=tg); a.wait_lg0()
            I("s_barrier")
            I("s_cbranch_scc1", "L_g1")
        self.stamp(4)
        for ft in range(3): I("ds_read_b32", v(20 + ft), v(CSR), mods=f"offset:{256*ft}", tag="cs")
        group(BUF[1], [])
        self.spin([lambda: I("buffer_load_dwordx2", v(GR, 2), v(GA), srd(WS), s(sA3), mods="offen sc1"),
                   lambda: I("buffer_load_dwordx2", v(GR + 2, 2), v(GA), srd(WS), s(sA3), mods="offen offset:256 sc1")], [GR + 1, GR + 3], first="gl")
        a.wait_lg0()
        AC, BC = 72, 84
        I("s_mov_b32", s(sT0), "0x01000100")
        for tt in range(2):
            d = BC + 4 * tt
            I("v_perm_b32", v(d), v(GR + 2 * tt), v(GR + 2 * tt), s(sT0)); I("v_xor_b32", v(d), "0x80008000", v(d))
            for k in range(1, 4): I("v_mov_b32", v(d + k), v(d))
        for ft in range(3):
            c = 20 + ft; d = AC + 4 * ft
            I("v_add_f32", v(c), v(c), v(CS + 4 * ft))
            I("v_cvt_pk_bf16_f32", v(24), v(c), v(c)); I("v_and_b32", v(25), "0xffff0000", v(24)); I("v_sub_f32", v(c), v(c), v(25))
            I("v_cvt_pk_bf16_f32", v(d), v(25), v(c)); I("v_and_b32", v(25), "0xffff0000", v(d)); I("v_sub_f32", v(c), v(c), v(25))
            I("v_cvt_pk_bf16_f32", v(d + 1), v(c), 0); I("v_mov_b32", v(d + 2), 0); I("v_mov_b32", v(d + 3), 0)
            for tt in range(2):
                dd = v(ACC + 32 * ft + 16 * tt, 16)
                I("v_mfma_f32_32x32x16_bf16", dd, v(AC + 4 * ft, 4), v(BC + 4 * tt, 4), dd)
        K0 = -2 * 0.7978845608028654 * 1.4426950408889634; K1 = K0 * 0.044715
        KC = 60
        for tt in range(2):
            k = KC + 6 * tt
            I("v_and_b32", v(24), "0xffff0000", v(GR + 2 * tt)); I("v_rcp_f32", v(25), v(24)); I("v_mul_f32", v(k + 4), v(24), v(24))
            I("v_mul_f32", v(k), fl(K0), v(25)); I("v_mul_f32", v(26), v(25), v(25)); I("v_mul_f32", v(26), v(26), v(25)); I("v_mul_f32", v(k + 2), fl(K1), v(26))
        I("s_lshl1_add_u32", s(sT0), s(sMT), s(sT4)); I("s_mul_i32", s(sT2), s(sT0), 4 * HP); I("s_lshl1_add_u32", s(sT1), s(sFS), s(sT5))
        I("s_lshl_b32", s(sT3), s(sT1), 9); I("s_add_u32", s(sT2), s(sT2), s(sT3)); I("s_add_u32", s(sT2), s(sT2), WS_H)
        I("s_lshl_b32", s(sT0), s(sT0), 5); I("s_add_u32", s(sT0), s(sT0), s(sT1)); I("s_lshl_b32", s(sT0), s(sT0), self.fsh); I("s_add_u32", s(sT7), s(sT0), WS_FH)
        n = 0
        T, Z_, E_, V_ = 92, 100, 2, 10
        for ft in range(3):
            if ft: I("s_add_u32", s(sT2), s(sT2), 16384)
            for tt in range(2):
                g = ACC + 32 * ft + 16 * tt; u = g + 8; k = KC + 6 * tt; H = 72 + 4 * (n & 1); n += 1
                if 'noepi' in self.exp:
                    I("buffer_store_dwordx4", v(H, 4), v(HA + tt), srd(WS), s(sT2), mods="offen sc1", tag=f"h{ft}"); continue
                for p in range(4): I("v_pk_mul_f32", v(T + 2 * p, 2), v(g + 2 * p, 2), v(g + 2 * p, 2))
                for p in range(4): I("v_pk_fma_f32", v(T + 2 * p, 2), v(T + 2 * p, 2), v(k + 2, 2), v(k, 2), mods="op_sel_hi:[1,0,0]")
                for p in range(4): I("v_pk_mul_f32", v(Z_ + 2 * p, 2), v(g + 2 * p, 2), v(T + 2 * p, 2))
                for p in range(8): I("v_exp_f32", v(E_ + p), v(Z_ + p))
                for p in range(4): I("v_pk_mul_f32", v(V_ + 2 * p, 2), v(g + 2 * p, 2), v(u + 2 * p, 2))
                for p in range(4): I("v_pk_fma_f32", v(T + 2 * p, 2), v(E_ + 2 * p, 2), v(k + 4, 2), v(k + 4, 2), mods="op_sel_hi:[1,0,0]")
                for p in range(8): I("v_rcp_f32", v(Z_ + p), v(T + p))
                for p in range(4): I("v_pk_mul_f32", v(V_ + 2 * p, 2), v(V_ + 2 * p, 2), v(Z_ + 2 * p, 2))
                self.pack_bf(H, V_, 8)
                I("buffer_store_dwordx4", v(H, 4), v(HA + tt), srd(WS), s(sT2), mods="offen" if 'hplain' in self.exp else "offen sc1", tag=f"h{ft}")
            if ft and 'stage' in self.exp:
                a.wait_vm(f"h{ft-1}"); self.flag_store(s(sT7), 18, level=ft - 1)
        self.stamp(5)

    XD, WDM, RD = 8, 12, 18
    def chunk_a(self, j):
        a = self.a; I = a.I; slot = (j % 3) * SLOT1
        I("s_lshl_b32", s(sT0), s(sCH), 7); I("s_add_u32", s(sT0), s(sT0), s(sT4))
        I("s_add_u32", "m0", s(sT6), slot)
        I("s_mul_i32", s(sWB), s(sCH), 64 * 3072); I("s_add_u32", s(sWB), s(sWB), s(sT5))
        for r in range(4): I("buffer_load_dwordx4", v(self.XD + r), srd(X), s(sT0), mods=f"offen offset:{1024*r} lds", tag=f"c{j}")
        I("s_add_u32", "m0", s(sT6), slot + 4096); I("s_add_u32", s(sT0), s(sT0), 32 * 1280)
        for r in range(4): I("buffer_load_dwordx4", v(self.XD + r), srd(X), s(sT0), mods=f"offen offset:{1024*r} lds", tag=f"c{j}")
        I("s_add_u32", "m0", s(sT7), slot)
        self.inc_mod(sCH, 10)
        for r in range(4): I("buffer_load_dwordx4", v(self.WDM + r), srd(W1), s(sWB), mods=f"offen offset:{1024*r} lds", tag=f"c{j}")
    def chunk_b(self, j):
        a = self.a; I = a.I; slot = (j % 3) * SLOT1
        I("s_add_u32", "m0", s(sT7), slot + 4096)
        for r in range(2): I("buffer_load_dwordx4", v(self.WDM + 4 + r), srd(W1), s(sWB), mods=f"offen offset:{1024*r} lds", tag=f"c{j}")
        I("s_add_u32", "m0", s(sT7), slot + 6144); I("s_add_u32", s(sWB), s(sWB), 32 * 3072)
        for r in range(4): I("buffer_load_dwordx4", v(self.WDM + r), srd(W1), s(sWB), mods=f"offen offset:{1024*r} lds", tag=f"c{j}")
        I("s_add_u32", "m0", s(sT7), slot + 10240)
        for r in range(2): I("buffer_load_dwordx4", v(self.WDM + 4 + r), srd(W1), s(sWB), mods=f"offen offset:{1024*r} lds", tag=f"c{j}")
    def common_l(self):
        a = self.a; I = a.I
        I("s_setprio", 0)
        self.consts()
        I("v_lshlrev_b32", v(self.RD), 4, v(0))
        I("v_lshlrev_b32", v(2), 2, v(0)); I("v_add_u32", v(2), L_CNT, v(2)); I("v_mov_b32", v(3), 0)
        I("s_mov_b64", "exec", "0xff0ff"); I("ds_write_b32", v(2), v(3)); I("s_mov_b64", "exec", -1)
    def stream(self):
        a = self.a; I = a.I
        I("v_lshrrev_b32", v(2), 3, v(0)); I("v_mul_u32_u24", v(2), 1280, v(2)); I("v_lshrrev_b32", v(3), 4, v(0)); I("v_and_b32", v(4), 7, v(0))
        for r in range(4):
            I("v_add_u32", v(5), 4 * (r & 1), v(3)); I("v_xor_b32", v(5), v(5), v(4)); I("v_lshl_add_u32", v(5), v(5), 4, v(2))
            I("v_add_u32", v(self.XD + r), 9216 * r, v(5))
        I("s_mov_b32", s(sT2), 21846)
        for jj in range(6):
            I("v_add_u32", v(2), 64 * jj, v(0))
            I("v_mul_u32_u24", v(3), s(sT2), v(2)); I("v_lshrrev_b32", v(3), 18, v(3))
            I("v_mul_u32_u24", v(3), 3072 - 192, v(3)); I("v_lshl_add_u32", v(3), v(2), 4, v(3))
            I("v_subrev_u32", v(self.WDM + jj), 1024 * (jj & 3), v(3))
        I("s_lshl1_add_u32", s(sT4), s(sMT), s(sWL)); I("s_mul_i32", s(sT4), s(sT4), 64 * 1280)
        I("s_mul_i32", s(sT5), s(sFS), 192)
        I("s_lshl_b32", s(sT6), s(sWL), 13)
        I("s_mul_i32", s(sT7), s(sWL), UPOFF); I("s_add_u32", s(sT7), s(sT7), W1OFF)
        self.chunk_a(0); self.chunk_b(0)
        I("s_branch", "L_cl"); self.svm = a.vm
    def stream2(self):
        a = self.a; I = a.I; a.vm = self.svm; a.lg = ["x"]
        early = False
        self.chunk_a(1)
        if early: self.chunk_b(1); self.chunk_a(2)
        self.nonce()
        a.wait_lg0()
        for j in range(10):
            a.wait_vm(f"c{j}")
            if j in (0, 3, 6, 9): self.stamp(2 + j // 3)
            self.stamp(j + 1, 'pg1')
            I("s_barrier")
            if j == 0 and early: self.chunk_b(2); continue
            if j == 0: self.chunk_b(1)
            if j + 2 <= 9: self.chunk_a(j + 2); self.chunk_b(j + 2)
        I("s_branch", "L_lj")
    def w_dma(self):
        if 'noW' in self.exp: return
        a = self.a; I = a.I
        I("s_mov_b32", s(sT2), 2731); I("s_mov_b32", s(sT3), 64 * 642 - 384)
        for i in range(3):
            I("v_add_u32", v(2), 64 * i, v(0)); I("v_mul_u32_u24", v(3), s(sT2), v(2)); I("v_lshrrev_b32", v(3), 16, v(3))
            I("v_mad_u32_u24", v(8 + i), v(3), s(sT3), v(self.RD))
        I("s_and_b32", s(sT0), s(sWG), 63); I("s_lshr_b32", s(sT1), s(sWG), 6); I("s_lshl_b32", s(sT1), s(sT1), 9); I("s_add_u32", s(sT0), s(sT0), s(sT1)); I("s_mul_i32", s(sT0), s(sT0), 642)
        I("s_and_b32", s(sT0), s(sT0), -4); I("s_and_b32", s(sT1), s(sWL), 1); I("s_mul_i32", s(sT2), s(sT1), 384); I("s_add_u32", s(sT0), s(sT0), s(sT2))
        I("s_mul_i32", s(sT1), s(sT1), 6144)
        for ar in range(2):
            I("s_add_u32", "m0", s(sT1), L_WRW + 3072 * ar)
            for i in range(3): I("buffer_load_dwordx4", v(8 + i), srd((WR, WI)[ar]), s(sT0), mods=f"offen offset:{1024*i} lds", tag="w")
    def w_pack(self):
        if 'noW' in self.exp: return
        a = self.a; I = a.I; DT = 100
        I("v_bfe_u32", v(2), v(0), 4, 1); I("v_bfe_u32", v(3), v(0), 2, 2); I("v_lshl_add_u32", v(3), v(2), 2, v(3)); I("v_mul_u32_u24", v(3), 384, v(3))
        I("v_and_b32", v(4), 3, v(0)); I("v_lshl_add_u32", v(3), v(4), 3, v(3)); I("v_lshrrev_b32", v(4), 5, v(0)); I("v_lshl_add_u32", v(3), v(4), 5, v(3))
        I("s_and_b32", s(sT0), s(sWL), 1); I("s_mul_i32", s(sT1), s(sT0), 6144); I("s_add_u32", s(sT1), s(sT1), L_WRW); I("v_add_u32", v(3), s(sT1), v(3))
        a.wait_vm("w")
        for t in range(6):
            for ar in range(2): I("ds_read_b64_tr_b16", v(DT + 4 * t + 2 * ar, 2), v(3), mods=f"offset:{ar*3072+64*t}", tag=f"t{t}")
        I("v_and_b32", v(5), 15, v(0)); I("v_lshl_add_u32", v(5), v(4), 4, v(5)); I("v_lshlrev_b32", v(5), 5, v(5)); I("v_lshl_add_u32", v(5), v(2), 4, v(5))
        I("s_mul_i32", s(sT0), s(sT0), 6144); I("s_add_u32", s(sT1), s(sT0), L_WRL); I("v_add_u32", v(5), s(sT1), v(5)); I("v_add_u32", v(6), s(sT1), v(self.RD))
        for t in range(6):
            a.wait_lg(f"t{t}"); I("ds_write_b128", v(5), v(DT + 4 * t, 4), mods=f"offset:{1024*t}")
        for t in range(6): I("ds_read_b128", v(DT + 24 + 4 * t, 4), v(6), mods=f"offset:{1024*t}", tag=f"u{t}")
        I("s_mul_i32", s(sT1), s(sWG), YP); I("s_add_u32", s(sT0), s(sT0), s(sT1)); I("s_and_b32", s(sT1), s(sWG), 1); I("s_lshl_b32", s(sT1), s(sT1), 5)
        I("s_sub_u32", s(sT0), s(sT0), s(sT1)); I("s_add_u32", s(sT0), s(sT0), WS_WP)
        I("s_cmp_eq_u32", s(sWL), 3); I("s_cselect_b32", s(sT2), 8, 64); I("s_cselect_b32", s(sT3), 0, 64)
        I("v_mov_b32", v(4), BIG); I("v_cmp_gt_u32", "vcc", s(sT2), v(0)); I("v_cndmask_b32", v(2), v(4), v(self.RD), "vcc")
        I("v_cmp_gt_u32", "vcc", s(sT3), v(0)); I("v_cndmask_b32", v(3), v(4), v(self.RD), "vcc")
        for t in range(6):
            if t == 4: I("s_add_u32", s(sT0), s(sT0), 4096)
            a.wait_lg(f"u{t}")
            I("buffer_store_dwordx4", v(DT + 24 + 4 * t, 4), v({4: 2, 5: 3}.get(t, self.RD)), srd(WS), s(sT0), mods=f"offen offset:{1024*(t&3)} sc1", tag="st")
    def wd_dma(self):
        if 'nowd' in self.exp: return
        a = self.a; I = a.I
        for i in range(5):
            I("v_add_u32", v(3), 64 * i, v(0)); I("v_mul_u32_u24", v(3), 3277, v(3)); I("v_lshrrev_b32", v(3), 16, v(3))
            I("v_mul_u32_u24", v(3), 960, v(3)); I("v_add_u32", v(8 + i), v(3), v(self.RD))
        I("v_add_u32", v(12), 4096, v(12))
        I("s_and_b32", s(sT2), s(sWL), 1); I("s_lshr_b32", s(sT0), s(sWG), 1); I("s_mul_i32", s(sT0), s(sT0), 16 * 1280)
        I("s_and_b32", s(sT1), s(sWG), 1); I("s_lshl1_add_u32", s(sT1), s(sT1), s(sT2)); I("s_mul_i32", s(sT1), s(sT1), 320); I("s_add_u32", s(sT0), s(sT0), s(sT1))
        I("s_mul_i32", s(sT1), s(sT2), 5120); I("s_add_u32", "m0", s(sT1), L_WDR)
        for i in range(5):
            if i == 4: I("s_add_u32", "m0", s(sT1), L_WDR + 4096)
            I("buffer_load_dwordx4", v(8 + i), srd(WD), s(sT0), mods=f"offen offset:{1024*(i&3)} lds", tag="wd")
    def wd_pack(self):
        if 'nowd' in self.exp: return
        a = self.a; I = a.I; DT = 148
        I("v_bfe_u32", v(2), v(0), 4, 1); I("v_bfe_u32", v(3), v(0), 2, 2); I("v_lshl_add_u32", v(3), v(2), 2, v(3)); I("v_mul_u32_u24", v(3), 320, v(3))
        I("v_and_b32", v(4), 3, v(0)); I("v_mad_u32_u24", v(3), v(4), 40, v(3)); I("v_lshrrev_b32", v(4), 5, v(0)); I("v_lshl_add_u32", v(3), v(4), 3, v(3))
        I("s_and_b32", s(sA0), s(sWL), 1); I("s_mul_i32", s(sT0), s(sA0), 5120); I("s_add_u32", s(sT0), s(sT0), L_WDR); I("v_add_u32", v(3), s(sT0), v(3))
        a.wait_vm("wd")
        for n in range(2):
            for jj in range(3):
                for rd in range(2): I("ds_read_b64_tr_b16", v(DT + 12 * n + 4 * jj + 2 * rd, 2), v(3), mods=f"offset:{rd*2560+16*jj+160*n}", tag=f"d{n}{jj}")
        I("v_and_b32", v(5), 31, v(0)); I("v_lshlrev_b32", v(5), 4, v(5)); I("v_lshl_add_u32", v(5), v(4), 10, v(5))
        I("v_mov_b32", v(6), BIG); I("v_cmp_gt_u32", "vcc", 32, v(0)); I("v_cndmask_b32", v(6), v(6), v(5), "vcc")
        I("s_lshr_b32", s(sT0), s(sWG), 1); self.mod(sT1, sT0, 6, sT2); I("s_lshr_b32", s(sT2), s(sWG), 1)
        I("s_mul_i32", s(sT2), s(sT2), 10923); I("s_lshr_b32", s(sT2), s(sT2), 16)
        I("s_cmp_ge_u32", s(sT1), 3); I("s_cselect_b32", s(sT3), 1, 0)
        I("s_mul_i32", s(sT0), s(sT3), 3); I("s_sub_u32", s(sT1), s(sT1), s(sT0))
        I("s_lshl4_add_u32", s(sT1), s(sT1), s(sT2))
        I("s_and_b32", s(sT0), s(sWG), 1); I("s_lshl1_add_u32", s(sT0), s(sT0), s(sA0)); I("s_mul_i32", s(sT0), s(sT0), 96); I("s_add_u32", s(sT0), s(sT0), s(sT1))
        I("s_mul_i32", s(sT0), s(sT0), 5120); I("s_lshl_b32", s(sT3), s(sT3), 9); I("s_add_u32", s(sT0), s(sT0), s(sT3)); I("s_add_u32", s(sT0), s(sT0), WS_WD)
        I("s_cmp_lt_u32", s(sWG), 192); I("s_cselect_b32", s(sT0), s(sT0), BIG)
        for n in range(2):
            for jj in range(3):
                a.wait_lg(f"d{n}{jj}")
                if jj == 2: I("s_add_u32", s(sT0), s(sT0), 4096)
                I("buffer_store_dwordx4", v(DT + 12 * n + 4 * jj, 4), v(6 if jj == 2 else 5), srd(WS), s(sT0), mods=f"offen offset:{2048*(jj&1)} sc1", tag="st")
            if n == 0: I("s_add_u32", s(sT0), s(sT0), 48 * 5120 - 4096)
    def y_store(self):
        if 'noY' in self.exp: return
        a = self.a; I = a.I; DT = 60
        I("s_and_b32", s(sT0), s(sWL), 1); I("s_mul_i32", s(sT0), s(sT0), 6144); I("s_add_u32", s(sT1), s(sT0), L_YS); I("v_add_u32", v(3), s(sT1), v(self.RD))
        for u in range(6): I("ds_read_b128", v(DT + 4 * u, 4), v(3), mods=f"offset:{1024*u}", tag=f"y{u}")
        I("s_mul_i32", s(sT1), s(sWG), YP); I("s_add_u32", s(sT0), s(sT0), s(sT1)); I("s_add_u32", s(sT0), s(sT0), WS_Y)
        for u in range(6):
            if u == 4: I("s_add_u32", s(sT0), s(sT0), 4096)
            if u == 5: I("s_cmp_eq_u32", s(sWL), 3); I("s_cselect_b32", s(sT0), BIG, s(sT0))
            a.wait_lg(f"y{u}")
            I("buffer_store_dwordx4", v(DT + 4 * u, 4), v(self.RD), srd(WS), s(sT0), mods=f"offen offset:{1024*(u&3)} sc1", tag="st")
    def yi_dma(self):
        a = self.a; I = a.I
        I("v_lshrrev_b32", v(2), 2, v(0)); I("v_mul_u32_u24", v(2), YP, v(2)); I("v_lshrrev_b32", v(3), 4, v(0)); I("v_xor_b32", v(3), v(3), v(0)); I("v_and_b32", v(3), 3, v(3))
        I("v_lshl_add_u32", v(14), v(3), 4, v(2))
        I("s_and_b32", s(sT3), s(sWL), 1); I("s_lshl_b32", s(sT1), s(sP), 6)
        I("s_mul_i32", s(sT0), s(sT3), 128 * YP); I("s_add_u32", s(sT0), s(sT0), s(sT1)); I("s_add_u32", s(sT0), s(sT0), WS_Y)
        I("s_lshl_b32", s(sT2), s(sT3), 13)
        for u in range(8):
            if u & 3 == 0: I("s_add_u32", "m0", s(sT2), L_YI + 1024 * u)
            if u: I("s_add_u32", s(sT0), s(sT0), 16 * YP - 1024 + (4096 if u == 4 else 0))
            I("buffer_load_dwordx4", v(14), srd(WS), s(sT0), mods=f"offen offset:{1024*(u&3)} sc1 lds", tag="yi")
    def wp_dma(self):
        a = self.a; I = a.I
        for h in range(2):
            I("s_lshl1_add_u32", s(sT0), s(sT3), h); I("s_mul_i32", s(sT0), s(sT0), 16 * YP); I("s_add_u32", s(sT0), s(sT0), s(sT1)); I("s_add_u32", s(sT0), s(sT0), WS_WP)
            I("s_add_u32", "m0", s(sT2), R2 + 3 * SLOT2 + 4096 * h)
            for u in range(4):
                if u: I("s_add_u32", s(sT0), s(sT0), 64 * YP - 1024)
                I("buffer_load_dwordx4", v(14), srd(WS), s(sT0), mods=f"offen offset:{1024*u} sc1 lds", tag="yi")
    def side2(self):
        a = self.a; I = a.I; a.vm = self.dvm; a.lg = ["x"]
        self.nonce()
        self.w_pack(); self.wd_pack()
        a.wait_lg0()
        jF = self.jf; jP = self.jp
        lda = [lambda k=k: I("buffer_load_dword", v(30 + k), v(24), srd(WS), s(sA2), mods=f"offen offset:{2048*k} sc1", tag="fa") for k in range(2)]
        for j in range(10):
            if j == jF: a.wait_vm("st")
            if j == jP + 1: self.spin(lda, [30, 31], first="fa")
            if j in (0, 3, 6, 9): self.stamp(2 + j // 3)
            self.stamp(j + 1, 'pg1')
            I("s_barrier")
            if j == 0: self.y_store()
            if j == jF:
                I("s_lshl_b32", s(sT0), s(sWG), 5); I("s_add_u32", s(sT0), s(sT0), WS_FA); I("s_cmp_eq_u32", s(sWL), 2); I("s_cselect_b32", s(sT0), s(sT0), BIG)
                self.flag_store(s(sT0), 2)
            if j == jP:
                I("v_lshlrev_b32", v(24), 5, v(0)); I("s_and_b32", s(sA2), s(sWL), 1); I("s_lshl_b32", s(sA2), s(sA2), 12); I("s_add_u32", s(sA2), s(sA2), WS_FA)
                for f in lda: f()
            if j >= 8:
                L = self.lab("noyi")
                I("s_cmp_eq_u32", s(sFFT), 0); I("s_cbranch_scc1", L)
                if j == 8:
                    self.yi_dma()
                    I("s_cmp_eq_u32", s(sWG), 0); I("s_cselect_b32", s(sT0), WS_E, BIG); I("s_cmp_eq_u32", s(sWL), 2); I("s_cselect_b32", s(sT0), s(sT0), BIG)
                    self.flag_store(s(sT0), 2)
                else:
                    self.wp_dma()
                a.label(L)
    def loader1(self):
        a = self.a; I = a.I
        a.label("L_ld0"); a.vm = ["E"]; a.lg = []
        I("s_setprio", 2)
        I("s_cmp_ge_u32", s(sWL), 2); I("s_cselect_b32", s(sROLE), 2, 1)
        I("s_cmp_eq_u32", s(sROLE), 2); I("s_cbranch_scc1", "L_sd0")
        self.stream()
        a.label("L_sd0"); a.vm = ["E"]
        if 'notlb' not in self.exp:
            I("v_lshlrev_b32", v(2), self.tlbsh, v(0))
            I("buffer_load_dword", v(7), v(2), srd(WS), 0, mods="offen sc1", tag="tlb")
            I("buffer_load_dword", v(7), v(2), srd(OUT), 0, mods="offen sc1", tag="tlb")
            I("buffer_load_dword", v(7), v(2), srd(WD), 0, mods="offen sc1", tag="tlb")
        I("v_lshlrev_b32", v(self.RD), 4, v(0))
        self.w_dma(); self.wd_dma()
        self.dvm = a.vm
        a.label("L_cl")
        self.common_l()
        I("s_cmp_eq_u32", s(sROLE), 2); I("s_cbranch_scc1", "L_sd1")
        self.stream2()
        a.label("L_sd1")
        self.side2()
        a.label("L_lj"); a.vm = []
        I("s_lshr_b32", s(sT0), s(sWL), 1); I("s_lshl_b32", s(sT0), s(sT0), 3); I("s_and_b32", s(sT1), s(sWL), 1); I("s_add_u32", s(sT0), s(sT0), s(sT1))
        I("s_mul_i32", s(sT1), s(sNG), 48); I("s_add_u32", s(sT0), s(sT0), s(sT1)); I("s_mul_i32", s(sT4), s(sT0), 5120); I("s_add_u32", s(sT4), s(sT4), 0 if 'ringraw' in self.exp else WS_WD)
        I("s_mul_i32", s(sT5), s(sWL), 5120)
        self.t_setup()
        a.vm = ["yi"]
        I("s_cmp_eq_u32", s(sFFT), 0)
        if 'nofft' in self.exp: I("s_branch", "L_nofft")
        I("s_cbranch_scc1", "L_nofft")
        self.col_setup()
        I("s_barrier")
        self.stamp(6)
        self.ring_dma(0); self.ring_dma(1)
        self.col_fft()
        self.lds_wait(6, 2)
        self.ring_dma(5); self.ring_dma(6)
        a.wait_vm("z"); self.z_arrive()
        I("s_branch", "L_g2l")
        a.label("L_nofft"); a.vm = []; a.lg = []
        I("s_barrier")
        self.ring_dma(0); self.ring_dma(1)
        a.wait_vm("r1"); self.lds_arrive(5, 2)
        self.ring_dma(5); self.ring_dma(6)
        a.label("L_g2l")

    def ring_dma(self, q, sB=sT4, sL=sT5, vA=18):
        if 'noring' in self.exp or ('norefill' in self.exp and q >= 6): return
        a = self.a; I = a.I; slot = R2 + slot2(q) * SLOT2
        R_ = WD if 'ringraw' in self.exp else WS; sc = '' if 'ringplain' in self.exp else 'sc1 '
        I("s_add_u32", s(sT0), s(sSG), q); I("s_and_b32", s(sT0), s(sT0), 3); I("s_mul_i32", s(sT0), s(sT0), 10240); I("s_add_u32", s(sT0), s(sT0), s(sB))
        if q >= 4: I("s_add_u32", s(sT0), s(sT0), (q >> 2) * 81920)
        I("s_add_u32", "m0", s(sL), slot)
        for r in range(4): I("buffer_load_dwordx4", v(vA), srd(R_), s(sT0), mods=f"offen offset:{1024*r} {sc}lds", tag=f"r{q}")
        I("s_add_u32", "m0", s(sL), slot + 4096); I("s_add_u32", s(sT0), s(sT0), 4096)
        I("buffer_load_dwordx4", v(vA), srd(R_), s(sT0), mods=f"offen {sc}lds", tag=f"r{q}")

    aY, aER, aEW, aZS, aWP = 6, 10, 11, 12, 15
    def col_setup(self):
        a = self.a; I = a.I; aY, aER, aEW, aZS = self.aY, self.aER, self.aEW, self.aZS
        I("v_and_b32", v(2), 15, v(0)); I("v_lshrrev_b32", v(3), 4, v(0)); I("v_lshrrev_b32", v(4), 2, v(2))
        I("v_lshlrev_b32", v(5), 4, v(4)); I("v_lshl_add_u32", v(5), v(2), 6, v(5))
        I("v_lshl_add_u32", v(5), v(3), 11, v(5)); I("v_add_u32", v(aY), L_YI, v(5))
        for k in range(1, 4): I("v_xor_b32", v(aY + k), 16 * k, v(aY))
        I("v_and_b32", v(5), 1, v(3)); I("v_xor_b32", v(5), v(5), v(4)); I("v_lshlrev_b32", v(5), 4, v(5)); I("v_lshl_add_u32", v(5), v(2), 6, v(5))
        I("v_lshrrev_b32", v(13), 1, v(3)); I("v_lshl_add_u32", v(5), v(13), 10, v(5)); I("s_lshl_b32", s(sA1), s(sWL), 12); I("s_add_u32", s(sA1), s(sA1), R2 + 3 * SLOT2)
        I("v_add_u32", v(self.aWP), s(sA1), v(5)); I("v_xor_b32", v(self.aWP + 1), 32, v(self.aWP))
        I("v_xor_b32", v(5), v(3), v(4)); I("v_lshlrev_b32", v(5), 4, v(5)); I("v_lshl_add_u32", v(5), v(2), 6, v(5)); I("v_add_u32", v(aER), L_EX, v(5))
        I("v_bfe_u32", v(4), v(2), 1, 2); I("v_lshrrev_b32", v(5), 3, v(2)); I("v_lshlrev_b32", v(5), 1, v(5)); I("v_and_b32", v(13), 1, v(2)); I("v_add_u32", v(5), v(5), v(13))
        I("v_lshl_add_u32", v(5), v(4), 2, v(5)); I("v_xor_b32", v(4), v(4), v(3)); I("v_lshlrev_b32", v(4), 4, v(4)); I("v_lshl_add_u32", v(5), v(5), 6, v(4))
        I("s_lshr_b32", s(sA2), s(sWL), 1); I("s_lshl_b32", s(sA1), s(sA2), 11)
        I("s_and_b32", s(sA2), s(sWL), 1); I("s_lshl3_add_u32", s(sA1), s(sA2), s(sA1)); I("s_add_u32", s(sA1), s(sA1), L_EX); I("v_add_u32", v(aEW), s(sA1), v(5))
        I("s_lshl_b32", s(sA1), s(sWL), 12); I("v_lshlrev_b32", v(5), 4, v(3)); I("v_lshl_add_u32", v(5), v(2), 8, v(5)); I("v_add_u32", v(aZS), s(sA1), v(5))

    def col_fft(self):
        a = self.a; I = a.I; aY, aER, aEW, aZS = self.aY, self.aER, self.aEW, self.aZS
        YF, O1, TT, BR, O2 = (52, 84), (116, 132), 148, (164, 172), (52, 84)
        M = "v_mfma_f32_16x16x32_bf16"
        a.wait_vm("yi")
        self.lds_sync(0, 2)
        self.stamp(7)
        yf = lambda c, mt, j, ri: YF[c] + 4 * ((mt * 2 + j) * 2 + ri)
        for c in range(2):
            for mt in range(2):
                for j in range(2):
                    for ri in range(2): I("ds_read_b128", v(yf(c, mt, j, ri), 4), v(aY + 2 * c + ri), mods=f"offset:{j*8192+mt*1024}", tag=f"y{c}{mt}")
        def cplx(dre, dim, Ar, Ai, C, Sp, Sm, n, data_is_A):
            for j in range(n):
                for k, (d, x1, c1) in enumerate(((dre, Ar(j), C(j)), (dim, Ai(j), C(j)), (dre, Ai(j), Sp(j)), (dim, Ar(j), Sm(j)))):
                    p, q = (x1, c1) if data_is_A else (c1, x1)
                    I(M, v(d, 4), v(p, 4), v(q, 4), 0 if (j == 0 and k < 2) else v(d, 4))
        def s1(c):
            for mt in range(2):
                a.wait_lg(f"y{c}{mt}")
                cplx(O1[c] + 8 * mt, O1[c] + 8 * mt + 4, lambda j: yf(c, mt, j, 0), lambda j: yf(c, mt, j, 1), lambda j: F64C + 4 * j, lambda j: F64S + 4 * j, lambda j: NS64 + 4 * j, 2, True)
        def s2(c):
            for mt in range(2):
                for i in range(4): self.cmul_tw(TT + 4 * mt + i, TT + 8 + 4 * mt + i, O1[c] + 8 * mt + i, O1[c] + 8 * mt + 4 + i, TW1 + 4 * mt + i, False)
            self.pack_bf(BR[c], TT, 16)
            for md in range(2):
                cplx(O2[c] + 8 * md, O2[c] + 8 * md + 4, lambda j: BR[c], lambda j: BR[c] + 4, lambda j: F32C + 4 * md, lambda j: F32S + 4 * md, lambda j: NS32 + 4 * md, 1, False)
        def wread():
            for c in range(2):
                for md in range(2): I("ds_read_b128", v(vWP + 8 * c + 4 * md, 4), v(self.aWP + c), mods=f"offset:{2048*md}", tag="wp")
        def s3(c):
            a.wait_lg("wp")
            for k in range(8):
                md, i = k >> 2, k & 3; re, im = O2[c] + 8 * md + i, O2[c] + 8 * md + 4 + i; w = vWP + 8 * c + 4 * md + (i >> 1)
                if i & 1: I("v_and_b32", v(2), "0xffff0000", v(w)); I("v_and_b32", v(3), "0xffff0000", v(w + 2))
                else: I("v_lshlrev_b32", v(2), 16, v(w)); I("v_lshlrev_b32", v(3), 16, v(w + 2))
                I("v_mul_f32", v(TT + k), v(re), v(2)); I("v_mul_f32", v(TT + 8 + k), v(im), v(2))
                I("v_fma_f32", v(TT + k), "-" + v(im), v(3), v(TT + k)); I("v_fmac_f32", v(TT + 8 + k), v(re), v(3))
            self.pack_bf(BR[c], TT, 16)
            for nb in range(2):
                cplx(O1[c] + 8 * nb, O1[c] + 8 * nb + 4, lambda j: BR[c], lambda j: BR[c] + 4, lambda j: F32C + 4 * nb, lambda j: NS32 + 4 * nb, lambda j: F32S + 4 * nb, 1, True)
        def s3b(c):
            for nb in range(2):
                for i in range(4): self.cmul_tw(TT + 8 * nb + i, TT + 8 * nb + 4 + i, O1[c] + 8 * nb + i, O1[c] + 8 * nb + 4 + i, TW2 + 4 * nb + i, True)
            self.pack_bf(BR[c], TT, 16)
            for nb in range(2):
                for ri in range(2): I("ds_write_b64", v(aEW), v(BR[c] + 4 * nb + 2 * ri, 2), mods=f"offset:{c*8192+ri*4096+nb*1024}")
        s1(0); wread(); s1(1); self.stamp(1); s2(0); a.wait_vm('r1'); self.lds_arrive(5, 2); s2(1); s3(0); s3(1); s3b(0); s3b(1)
        self.lds_sync(1, 2)
        ef = lambda mt, col, ri, j: YF[mt] + 4 * ((col * 2 + ri) * 2 + j)
        for mt in range(2):
            for col in range(2):
                for ri in range(2):
                    for j in range(2): I("ds_read_b128", v(ef(mt, col, ri, j), 4), v(aER), mods=f"offset:{col*8192+ri*4096+j*2048+mt*1024}", tag=f"e{mt}{col}")
        I("s_mul_i32", s(sA1), s(sP), ZP); I("s_add_u32", s(sA1), s(sA1), WS_Z); I("s_or_b32", s(sA1), s(sA1), s(sPOK))
        for mt in range(2):
            for col in range(2):
                a.wait_lg(f"e{mt}{col}")
                cplx(O1[mt] + 8 * col, O1[mt] + 8 * col + 4, lambda j: ef(mt, col, 0, j), lambda j: ef(mt, col, 1, j), lambda j: F64C + 4 * j, lambda j: NS64 + 4 * j, lambda j: F64S + 4 * j, 2, True)
        self.lds_arrive(6, 2)
        for mt in range(2):
            for u in range(2):
                pk = TT + 8 * mt + 4 * u
                for ii in range(2):
                    for col in range(2):
                        i = 2 * u + ii
                        I("v_cvt_pk_bf16_f32", v(pk + 2 * ii + col), v(O1[mt] + 8 * col + i), v(O1[mt] + 8 * col + 4 + i))
                I("buffer_store_dwordx4", v(pk, 4), v(aZS), srd(WS), s(sA1), mods=f"offen offset:{128*mt+64*u} sc1", tag="z")
        self.stamp(8)

    def z_arrive(self):
        a = self.a; I = a.I
        I("v_mov_b32", v(2), L_CNT + 8); I("v_mov_b32", v(3), 1)
        I("s_mov_b64", "exec", 1); I("ds_add_rtn_u32", v(4), v(2), v(3)); I("s_mov_b64", "exec", -1)
        a.wait_lg0()
        I("v_readfirstlane_b32", s(sA0), v(4))
        I("s_lshl_b32", s(sA1), s(sP), 5); I("s_add_u32", s(sA1), s(sA1), WS_FZ); I("s_or_b32", s(sA1), s(sA1), s(sPOK))
        I("s_cmp_eq_u32", s(sA0), 3); I("s_cselect_b32", s(sA1), s(sA1), BIG)
        self.flag_store(s(sA1), 2)

    def gemm2_c(self):
        a = self.a; I = a.I; M = "v_mfma_f32_16x16x32_bf16"
        GA_, SA_, AF, BQ, XF = 8, 48, (88, 108), 128, 192
        aH, aT, aX, aRW, aRR, aZ3, aF, aS, aL = 208, 210, 213, 214, 215, 216, 217, 218, 220
        I("s_and_b32", s(sT4), s(sWV), 1); I("s_lshr_b32", s(sT5), s(sWV), 1)
        I("v_lshlrev_b32", v(aL), 4, v(0)); I("v_and_b32", v(3), 15, v(0)); I("v_lshrrev_b32", v(4), 4, v(0))
        I("s_mul_i32", s(sT0), s(sT5), HP); I("v_add_u32", v(aH), s(sT0), v(aL)); I("s_sub_u32", s(sT0), HP, s(sT0)); I("v_add_u32", v(aH + 1), s(sT0), v(aL))
        I("s_mul_i32", s(sT0), s(sT5), 10240); I("v_add_u32", v(aT), s(sT0), v(aL)); I("v_add_u32", v(aT + 1), 3 * SLOT2, v(aT)); I("v_add_u32", v(aT + 2), 6 * SLOT2, v(aT))
        I("v_add_u32", v(5), L_GX, v(aL)); I("s_mul_i32", s(sT0), s(sWV), 5120); I("v_add_u32", v(aRW), s(sT0), v(5)); I("s_xor_b32", s(sT0), s(sWV), 2); I("s_mul_i32", s(sT0), s(sT0), 5120); I("v_add_u32", v(aRR), s(sT0), v(5))
        I("s_mul_i32", s(sT0), s(sT4), 10240); I("s_lshl_b32", s(sT1), s(sT5), 7); I("s_add_u32", s(sT0), s(sT0), s(sT1)); I("s_add_u32", s(sT0), s(sT0), 3 * SLOT2)
        I("v_and_b32", v(5), 1, v(3)); I("v_mul_u32_u24", v(5), 5120, v(5)); I("v_lshl_add_u32", v(5), v(4), 8, v(5)); I("v_lshrrev_b32", v(6), 1, v(3)); I("v_lshl_add_u32", v(5), v(6), 4, v(5))
        I("v_add_u32", v(aS), s(sT0), v(5)); I("v_add_u32", v(aS + 1), 2 * SLOT2, v(aS))
        I("s_lshl1_add_u32", s(sT0), s(sTQ), s(sT4))
        I("s_mul_i32", s(sT6), s(sT0), 2 * HP); I("s_lshl_b32", s(sT1), s(sT5), 13); I("s_add_u32", s(sT6), s(sT6), s(sT1)); I("s_add_u32", s(sT6), s(sT6), WS_H)
        I("s_lshl1_add_u32", s(sT0), s(sT0), s(sT5)); I("s_lshl_b32", s(sT3), s(sT0), 7); I("s_add_u32", s(sT3), s(sT3), WS_Z + 160 * ZP)
        I("s_mul_i32", s(sT0), s(sT0), 16 * 1280); I("s_mul_i32", s(sT1), s(sNG), 160); I("s_add_u32", s(sA3), s(sT0), s(sT1))
        I("v_mul_u32_u24", v(5), 1280, v(3)); I("v_mad_u32_u24", v(aX), v(4), 40, v(5))
        I("v_lshlrev_b32", v(aZ3), 3, v(3))
        I("v_and_b32", v(5), 31, v(0)); I("v_lshlrev_b32", v(aF), self.fsh, v(5)); I("s_lshl_b32", s(sA2), s(sTQ), 5 + self.fsh); I("s_add_u32", s(sA2), s(sA2), WS_FH)
        I("s_lshr_b32", s(sT0), s(sWV), 1); I("s_lshl_b32", s(sT0), s(sT0), 3); I("s_and_b32", s(sT1), s(sWV), 1); I("s_add_u32", s(sT0), s(sT0), s(sT1))
        I("s_mul_i32", s(sT1), s(sNG), 48); I("s_add_u32", s(sT0), s(sT0), s(sT1)); I("s_mul_i32", s(sT4), s(sT0), 5120); I("s_add_u32", s(sT4), s(sT4), WS_WD)
        I("s_mul_i32", s(sT5), s(sWV), 5120)
        self.ring_dma(2, vA=aL)
        a.wait_vm("h2"); self.flag_store(s(sT7), 2, level=2)
        self.ring_dma(3, vA=aL); self.ring_dma(4, vA=aL)
        if 'wt' in self.exp:
            I("s_and_b32", s(sT0), s(sTQ), 3); I("s_lshl2_add_u32", s(sT0), s(sT0), s(sWV)); I("s_mul_i32", s(sT0), s(sT0), 80 * 128)
            I("s_mul_i32", s(sT1), s(sNG), 48 * 5120); I("s_add_u32", s(sT0), s(sT0), s(sT1)); I("s_add_u32", s(sT0), s(sT0), WS_WD + 16 * 5120)
            I("v_lshlrev_b32", v(5), 7, v(0))
            I("buffer_load_dword", v(6), v(5), srd(WS), s(sT0), mods="offen sc1", tag="t")
            I("s_add_u32", s(sT0), s(sT0), 64 * 128); I("s_mov_b64", "exec", "0xffff")
            I("buffer_load_dword", v(6), v(5), srd(WS), s(sT0), mods="offen sc1", tag="t")
            I("s_mov_b64", "exec", -1)
        I("buffer_load_dwordx4", v(XF, 4), v(aX), srd(X), s(sA3), mods="offen", tag="x")
        I("buffer_load_dwordx4", v(XF + 4, 4), v(aX), srd(X), s(sA3), mods="offen offset:16", tag="x")
        I("buffer_load_dwordx2", v(XF + 8, 2), v(aX), srd(X), s(sA3), mods="offen offset:32", tag="x")
        I("s_lshr_b32", s(sT0), s(sNG), 1); I("s_lshl2_add_u32", s(sT0), s(sTQ), s(sT0)); I("s_mul_i32", s(sT5), s(sT0), HP)
        I("s_and_b32", s(sT0), s(sNG), 1); I("s_lshl2_add_u32", s(sT0), s(sT0), s(sWV)); I("s_mul_i32", s(sT0), s(sT0), 48 * 128); I("s_add_u32", s(sT5), s(sT5), s(sT0)); I("s_add_u32", s(sT5), s(sT5), WS_H)
        I("v_lshlrev_b32", v(7), 7, v(0)); I("v_mov_b32", v(221), L_PL); I("s_lshl2_add_u32", s(sT0), s(sWV), L_PC); I("v_mov_b32", v(222), s(sT0)); I("v_mov_b32", v(223), 1); I("v_mov_b32", v(228), L_PC)
        a.wait_vm("r4"); self.lds_arrive(5, 2)
        self.stamp(8)
        self.spin([lambda: I("buffer_load_dword", v(5), v(aF), srd(WS), s(sA2), mods="offen sc1")], [5], level=2)
        self.stamp(9)
        def bfrag(q, u, tt): return BQ + 16 * (q % 4) + 4 * (2 * u + tt)
        def bload(q):
            out = []
            if 'nob' in self.exp or q >= 12: return out
            def pre():
                I("s_add_u32", s(sT0), s(sSG), q); I("s_and_b32", s(sT0), s(sT0), 3); I("s_lshl_b32", s(sT0), s(sT0), 11); I("s_add_u32", s(sT0), s(sT0), s(sT6))
                if q >= 4: I("s_add_u32", s(sT0), s(sT0), (q >> 2) * 16384)
            for u in range(2):
                for tt in range(2):
                    def f(u=u, tt=tt):
                        if u == 0 and tt == 0: pre()
                        I("buffer_load_dwordx4", v(bfrag(q, u, tt), 4), v(aH + tt), srd(WS), s(sT0), mods=f"offen offset:{1024*u} sc1", tag=f"b{q}_{u}")
                    out.append(f)
            return out
        def areads(q, u):
            slot = slot2(q); hi = slot // 3; off = (slot % 3) * SLOT2 + u * 5120; b = AF[u]
            return [("ds_read_b128", v(b + 4 * j, 4), v(aT + hi), f"offset:{off + 1024*j}", f"a{q}_{u}_{j}") for j in range(5)]
        def group(q, u, R, B=(), pre=None, post=None):
            B = list(B); pos = (5, 8) if B else ()
            a.wait_vm(f"b{q}_{u}")
            k = 0
            for j in range(5):
                if j in self.lgat: a.wait_lg([f"a{q}_{u}_{jj}" for jj in range(j, min([x for x in self.lgat if x > j] + [5]))])
                for tt in range(2):
                    d = v(GA_ + 20 * tt + 4 * j, 4)
                    I(M, d, v(AF[u] + 4 * j, 4), v(bfrag(q, u, tt), 4), 0 if (q, u) == (0, 0) else d)
                    if k == 0 and pre: pre()
                    if R: o = R.pop(0); I(o[0], o[1], o[2], mods=o[3], tag=o[4])
                    if k in pos: B.pop(0)()
                    if k == 6 and post: post()
                    if k == 9 and u == 1 and q <= 9:
                        self.prog_add(222, 223)
                    k += 1
        for f in bload(0): f()
        if 'ht' in self.exp:
            I("s_mov_b32", "exec_hi", "0xffff")
            I("buffer_load_dword", v(6), v(7), srd(WS), s(sT5), mods="offen sc1", tag="t")
            I("s_mov_b32", "exec_hi", -1)
        for q in (1, 2):
            for f in bload(q): f()
        self.lds_wait(5, 2, 8)
        self.stamp(10); self.stamp(1, 'pg2')
        pend = []
        def peek(): I("ds_read_b128", v(224, 4), v(221), tag="cl")
        def check(q):
            def f():
                L = self.lab("ck"); Dn = self.lab("ckd"); sv = None
                a.wait_lg("cl")
                self.prog_min(224); I("s_cmp_ge_u32", s(sA0), q - 4); I("s_cbranch_scc1", Dn)
                sv = list(a.lg); self.prog_wait(221, 224, q - 4); a.lg = sv
                a.label(Dn)
            return f
        for q in range(12):
            R = areads(q, 0)
            if q == 0:
                for o in R: I(o[0], o[1], o[2], mods=o[3], tag=o[4])
            else:
                group(q - 1, 1, R, pend, pre=check(q) if q >= 5 else None)
            B = bload(q + 3); pend = B[2:]
            group(q, 0, areads(q, 1), B[:2], post=peek if 4 <= q <= 10 else None)
            self.stamp(q + 2, 'pg2')
        group(11, 1, [])
        self.stamp(11)
        self.prog_wait(228, 224, 10)
        for j in range(5): I("ds_write_b128", v(aRW), v(GA_ + 20 + 4 * j, 4), mods=f"offset:{1024*j}")
        XU, PG, T = 48, 88, 108
        for k in range(10): I("v_lshlrev_b32", v(XU + 2 * k), 16, v(XF + k)); I("v_and_b32", v(XU + 2 * k + 1), "0xffff0000", v(XF + k))
        a.wait_lg0()
        self.lds_sync(3, 2)
        for j in range(5): I("ds_read_b128", v(PG + 4 * j, 4), v(aRR), mods=f"offset:{1024*j}", tag=f"g{j}")
        for j in range(5):
            a.wait_lg(f"g{j}"); g = GA_ + 4 * j
            for p in range(2): I("v_pk_add_f32", v(g + 2 * p, 2), v(g + 2 * p, 2), v(PG + 4 * j + 2 * p, 2))
            for i in range(4): I("v_mul_f32", v(T + i), fl(-1.4426950408889634), v(g + i))
            for i in range(4): I("v_exp_f32", v(T + i), v(T + i))
            for i in range(4): I("v_add_f32", v(T + i), 1.0, v(T + i))
            for i in range(4): I("v_rcp_f32", v(T + i), v(T + i))
            for p in range(2): I("v_pk_mul_f32", v(g + 2 * p, 2), v(g + 2 * p, 2), v(T + 2 * p, 2))
        self.stamp(12)
        I("s_barrier")
        PS = 128
        for j in range(5):
            for w in range(4): I("ds_read_b128", v(PS + 16 * j + 4 * w, 4), v(aS + (w >> 1)), mods=f"offset:{(w&1)*SLOT2+1024*j}", tag=f"p{j}")
        OP = 72
        for j in range(5):
            a.wait_lg(f"p{j}")
            g, b = GA_ + 4 * j, PS + 16 * j
            for p in range(2): I("v_pk_add_f32", v(b + 2 * p, 2), v(b + 2 * p, 2), v(b + 4 + 2 * p, 2))
            for p in range(2): I("v_pk_add_f32", v(b + 8 + 2 * p, 2), v(b + 8 + 2 * p, 2), v(b + 12 + 2 * p, 2))
            for p in range(2): I("v_pk_add_f32", v(b + 2 * p, 2), v(b + 2 * p, 2), v(b + 8 + 2 * p, 2))
            for p in range(2): I("v_pk_fma_f32", v(g + 2 * p, 2), v(g + 2 * p, 2), v(b + 2 * p, 2), v(XU + 4 * j + 2 * p, 2))
            self.pack_bf(OP + 2 * j, g, 4)
            if j == 1: I("buffer_store_dwordx4", v(OP, 4), v(aX), srd(OUT), s(sA3), mods="offen")
            if j == 3: I("buffer_store_dwordx4", v(OP + 4, 4), v(aX), srd(OUT), s(sA3), mods="offen offset:16")
        I("buffer_store_dwordx2", v(OP + 8, 2), v(aX), srd(OUT), s(sA3), mods="offen offset:32")
        self.stamp(13)

    DL, G4, RSH, RMK, aFH, aFZ, aZL, aSW = 20, 25, 26, 27, 28, 29, 30, 31
    TB, SA, ZB = 156, 76, 32
    def ldh(self): self.a.I("buffer_load_dword", v(16), v(self.aFH), srd(WS), s(sT6), mods="offen sc1", tag="fh")
    def t_setup(self):
        a = self.a; I = a.I
        I("v_and_b32", v(4), 15, v(0)); I("v_lshrrev_b32", v(3), 2, v(4)); I("v_mul_u32_u24", v(3), 20, v(3)); I("v_and_b32", v(2), 3, v(4)); I("v_add_u32", v(3), v(2), v(3))
        I("s_mul_i32", s(sT0), s(sNG), 80); I("v_add_u32", v(3), s(sT0), v(3)); I("v_cvt_f32_u32", v(3), v(3))
        for j in range(5):
            I("v_add_f32", v(5), fl(4.0 * j), v(3)); I("v_mul_f32", v(self.DL + j), fl(1 / 640), v(5))
        I("v_and_b32", v(5), 1, v(2)); I("v_lshlrev_b32", v(self.RSH), 4, v(5))
        I("v_mov_b32", v(self.RMK), 0)
        for k, mk in ((1, "0x80000000"), (2, "0x80008000"), (3, "0x8000")):
            I("v_mov_b32", v(5), mk); I("v_cmp_eq_u32", "vcc", k, v(2)); I("v_cndmask_b32", v(self.RMK), v(self.RMK), v(5), "vcc")
        I("v_lshrrev_b32", v(3), 4, v(0)); I("v_lshlrev_b32", v(5), 2, v(3)); I("v_cvt_f32_u32", v(self.G4), v(5))
        I("v_mul_u32_u24", v(3), 2 * ZP, v(3)); I("v_lshl_add_u32", v(self.aZL), v(4), 4, v(3))
        I("s_mul_i32", s(sT0), s(sWL), SLOT2); I("s_add_u32", s(sT0), s(sT0), 3 * SLOT2); I("v_lshl_add_u32", v(self.aSW), v(0), 4, s(sT0))
        I("v_and_b32", v(2), 31, v(0)); I("v_lshlrev_b32", v(self.aFH), self.fsh, v(2)); I("s_lshl_b32", s(sT6), s(sTQ), 5 + self.fsh); I("s_add_u32", s(sT6), s(sT6), WS_FH)
        I("s_and_b32", s(sT0), s(sNG), 1); I("s_lshl2_add_u32", s(sCH), s(sT0), s(sWL)); I("s_xor_b32", s(sTAU), s(sCH), 4)
        I("s_and_b32", s(sT0), s(sWL), 1); I("s_lshr_b32", s(sT7), s(sWL), 1); I("s_mul_i32", s(sT7), s(sT7), 10); I("s_add_u32", s(sT7), s(sT7), s(sT0)); I("s_add_u32", s(sT7), s(sT7), 8)
        I("v_lshrrev_b32", v(2), 3, v(0)); I("v_mov_b32", v(3), 20)
        for n, (r, off) in enumerate(((sCH, 0), (sCH, 10), (sTAU, 0), (sTAU, 10), (sT7, 0))):
            I("s_add_u32", s(sT0), s(r), off); I("v_mov_b32", v(5), s(sT0)); I("v_cmp_eq_u32", "vcc", n, v(2)); I("v_cndmask_b32", v(3), v(3), v(5), "vcc")
        I("v_and_b32", v(2), 7, v(0)); I("v_lshl_add_u32", v(2), v(3), 3, v(2)); I("v_min_u32", v(2), 160, v(2)); I("v_lshlrev_b32", v(self.aFZ), 5, v(2))
    def t_unit(self, n, j):
        if 'not' in self.exp: return
        a = self.a; I = a.I; TT = 32; d = self.TB + 40 * n + 4 * j
        if j == 0:
            I("s_lshl_b32", s(sA0), s((sCH, sTAU, sT7)[n]), 4); I("v_cvt_f32_u32", v(17), s(sA0)); I("v_add_f32", v(17), v(17), v(self.G4))
        I("v_mul_f32", v(19), v(17), v(self.DL + j)); I("v_fract_f32", v(19), v(19))
        c, sn = self.trig(self.DL + j, 19, [0, 1, 2, 3], TT)
        for p in range(4): I("v_cvt_pk_bf16_f32", v(d + p), v(c + p), "-" + v(sn + p))
        if n < 2:
            for p in range(4): I("v_alignbit_b32", v(d + 20 + p), v(d + p), v(d + p), v(self.RSH))
            for p in range(4): I("v_xor_b32", v(d + 20 + p), v(self.RMK), v(d + 20 + p))
    def gemm2_l(self):
        a = self.a; I = a.I; M = "v_mfma_f32_16x16x32_bf16"
        units = [(n, j) for n in range(3) for j in range(5)]
        ldz = lambda: I("buffer_load_dword", v(15), v(self.aFZ), srd(WS), s(sA2), mods="offen sc1", tag="fz")
        I("s_mov_b32", s(sA2), WS_FZ)
        I("s_lshl_b32", s(sWB), s(sTQ), 9); I("s_add_u32", s(sWB), s(sWB), WS_Z)
        zb = lambda n, tt: (32, 48)[n % 3] + 4 * tt if (n % 3) < 2 else (64, 68, 4, 8)[tt]
        def zload(n):
            src = (sCH, sCH, sTAU, sTAU, sT7)[n]
            I("s_mul_i32", s(sT0), s(src), 8 * ZP); I("s_add_u32", s(sT0), s(sT0), s(sWB))
            if n in (1, 3): I("s_add_u32", s(sT0), s(sT0), 80 * ZP)
            I("s_add_u32", s(sT1), s(sT0), ZP)
            for T in range(2):
                for hp in range(2): I("buffer_load_dwordx4", v(zb(n, 2 * T + hp), 4), v(self.aZL), srd(WS), s(sT0 + hp), mods=f"offen offset:{256*T} sc1", tag=f"z{n}_{T}")
        I("s_lshl2_add_u32", s(sT0), s(sWL), L_PL); I("v_mov_b32", v(12), s(sT0)); I("v_mov_b32", v(13), 1); I("v_mov_b32", v(28), L_PC)
        for q in range(5, 12):
            for _ in range(self.tper):
                if units: self.t_unit(*units.pop(0))
            if q == 10: ldz()
            a.wait_vm(f"r{q}"); self.prog_add(12, 13)
            self.stamp(q - 3, 'pg2')
            if q + 2 <= 11:
                self.prog_wait(28, 4, q - 4); self.ring_dma(q + 2)
        while units: self.t_unit(*units.pop(0))
        self.stamp(11)
        if 'nofft' not in self.exp: self.spin([ldz], [15], first="fz")
        self.stamp(9)
        I("s_lshl_b32", s(sT0), s(sTQ), 9); I("s_add_u32", s(sT0), s(sT0), WS_Z + 160 * ZP); I("s_cmp_eq_u32", s(sWL), 0); I("s_cselect_b32", s(sT0), s(sT0), BIG)
        I("v_and_b32", v(2), 15, v(0)); I("v_lshlrev_b32", v(2), 4, v(2))
        ZN = 20
        for T in range(2): I("buffer_load_dwordx4", v(ZN + 4 * T, 4), v(2), srd(WS), s(sT0), mods=f"offen offset:{256*T} sc1", tag="zn")
        zload(0); zload(1); zload(2)
        def mm(n, tt):
            if tt & 1 == 0:
                a.wait_vm(f"z{n}_{tt >> 1}")
                for k in range(2): I("v_swap_b32", v(zb(n, tt) + 2 + k), v(zb(n, tt + 1) + k))
            for j in range(5):
                d = v(self.SA + 20 * tt + 4 * j, 4)
                if n == 0 and j == 0:
                    zi = 12 + 4 * (tt & 1)
                    I("v_lshlrev_b32", v(zi), 16, v(ZN + 2 * tt)); I("v_xor_b32", v(zi + 1), "0x80000000", v(zi)); I("v_mov_b32", v(zi + 2), v(zi)); I("v_mov_b32", v(zi + 3), v(zi + 1))
                I(M, d, v(self.TB + 20 * n + 4 * j, 4), v(zb(n, tt), 4), v(12 + 4 * (tt & 1), 4) if n == 0 else d)
        for n in range(3):
            for tt in range(4): mm(n, tt)
            if n < 2: zload(n + 3)
        self.prog_wait(28, 12, 9)
        def wr(tt):
            for j in range(5): I("ds_write_b128", v(self.aSW), v(self.SA + 20 * tt + 4 * j, 4), mods=f"offset:{5120*tt+1024*j}")
        for tt in range(4):
            mm(3, tt); mm(4, tt)
            if tt: wr(tt - 1)
        self.stamp(12)
        wr(3)
        a.wait_lg0()
        self.stamp(13)
        I("s_barrier")

    def finish(self):
        a = self.a; I = a.I
        if self.prof:
            a.label("L_prof")
            I("s_memtime", s(98, 2)); a.wait_lg0(); I("s_sub_u32", s(sPROF + 14), s(98), s(sPROF + 14)); self.stamp(15)
            I("s_lshl3_add_u32", s(sT0), s(sWG), s(sWV)); I("s_lshl_b32", s(sT0), s(sT0), 7); I("s_add_u32", s(sT0), s(sT0), WS_PROF)
            I("v_mov_b32", v(2), 0); I("s_mov_b64", "exec", 1)
            if 'dbg' in self.exp:
                I("s_cmp_lg_u32", s(sWV), 4 if 'dbgl' in self.exp else 0); I("s_cbranch_scc1", "L_end")
                I("s_not_b32", s(sPROF), s(sPROF))
                for k in range(16):
                    I("v_mov_b32", v(3), s(sPROF + k)); I("global_atomic_umax", v(2), v(3), s(20, 2), mods=f"offset:{4*k} sc1")
            else:
              for k in range(16):
                I("v_mov_b32", v(3), s(sPROF + k)); I("buffer_store_dword", v(3), v(2), srd(WS), s(sT0), mods=f"offen offset:{4*k}")
        a.label("L_end"); I("s_endpgm")

    def build(self):
        a = self.a; I = a.I
        endl = "L_prof" if self.prof else "L_end"
        if self.prof:
            for k in range(1, 16): I("s_mov_b32", s(sPROF + k), 0)
        self.prologue()
        I("s_mov_b32", s(sA3), WS_ST)
        self.row_fft(); self.gemm1(); self.gemm2_c()
        I("s_branch", endl)
        self.loader1(); self.gemm2_l()
        self.finish()
        n = a.pad_hazards()
        hdr = open("recurrent_scan__spectral_gfnet__glu_gated_geglu__prompt.s.ref").read().split("; Override launch")[0]
        txt = hdr + f"; @launch grid=(256,1,1) block=(512,1,1) lds={LDS_BYTES}\n"
        txt += f'.amdgcn_target "amdgcn-amd-amdhsa--gfx950"\n.text\n.globl {NAME}\n.p2align 8\n.type {NAME},@function\n{NAME}:\n'
        txt += a.text()
        txt += f"L_codeend:\n.set PFMAX, ((L_codeend - {NAME}) & ~127) - 128\n"
        nl = (len(a.ins) * 7 // 128 + 31) // 32 + 1
        txt = txt.replace("PFL*128", str(nl * 128)).replace("(1<<PFL)-1", str((1 << nl) - 1))
        txt += f""".section .rodata,"a"
.p2align 6
.amdhsa_kernel {NAME}
  .amdhsa_next_free_vgpr 256
  .amdhsa_next_free_sgpr 102
  .amdhsa_accum_offset 256
  .amdhsa_group_segment_fixed_size 0
  .amdhsa_kernarg_size 80
  .amdhsa_user_sgpr_count 2
  .amdhsa_user_sgpr_kernarg_segment_ptr 1
  .amdhsa_system_sgpr_workgroup_id_x 1
.end_amdhsa_kernel
"""
        return txt, n

if __name__ == "__main__":
    import argparse
    ap = argparse.ArgumentParser(); ap.add_argument("-o", default="k.s"); ap.add_argument("--prof", action="store_true"); ap.add_argument("--wpos", type=int, default=-1); ap.add_argument("--exp", default=""); ap.add_argument("--set", default=""); ap.add_argument("--npre", type=int, default=2)
    args = ap.parse_args()
    g = G(prof=args.prof, wpos=args.wpos, exp=args.exp.split(','), npre=args.npre)
    for kv in filter(None, args.set.split(',')): setattr(g, kv.split('=')[0], int(kv.split('=')[1]))
    txt, n = g.build()
    open(args.o, "w").write(txt)
    print("nops", n, "lines", txt.count("\n"))
```

```python
import struct, sys
from asmlib import *
from model import *

NAME = "recurrent_scan__spectral_gfnet__glu_gated_geglu__prompt_kernel"
def fl(x): return "0x%08x" % struct.unpack("<I", struct.pack("<f", x))[0]

SLOT1 = 41024; W1OFF = 16384; UPOFF = 12288 + 32
L_XR = 123072
L_YS = 135360
L_WRAW = 147648
L_WDR = 123072
L_WRL = 147648
L_WRW = 147648
L_YI = 123072
L_EX = 139456
L_CS = 160512
L_CNT = 163584
L_PC = L_CNT + 48; L_PL = L_CNT + 64
LDS_BYTES = 163840
SLOT2 = 20480; R2 = 0
def slot2(q): return (4, 5, 0, 1, 2, 3, 6)[q % 7]
L_GX = 0
BIG = 0x7fff0000

sWG, sWV = 2, 3
X, WS, W1, WR, WI, WD, OUT = 24, 28, 32, 36, 40, 44, 48
sXCD, sI, sMT, sFS, sCH, sTQ, sNG, sP, sNONCE, sWL = 52, 53, 54, 55, 56, 57, 58, 59, 60, 61
sT0, sT1, sT2, sT3, sT4, sT5, sT6, sT7 = 62, 63, 64, 65, 66, 67, 68, 69
sPOK, sSG, sTAU, sLIM = 70, 71, 72, 73
sA0, sA1, sA2, sA3 = 74, 75, 76, 77
sROLE = 78
sWB = 79
sFFT = 100
sPROF = 80
srd = lambda r: s(r, 4)

F64C, F64S, F32C, F32S, TW1, TW2 = 208, 216, 224, 232, 240, 248
NS64, NS32 = 192, 200
vWP = 36
vE = 1

class G:
    def __init__(self, prof=False, stop=99, wpos=-1, exp=(), npre=2):
        self.npre = npre; self.tlbsh = 19; self.xper = 4; self.tper = 2; self.t1 = 4; self.nc = 0; self.sprio = 1; self.jai = 5; self.jac = 7; self.zfirst = 1; self.early56 = 1; self.t0 = 1; self.wdlate = 1; self.wpj = 9; self.nl = 2; self.rp0 = 0; self.rot4 = 1; self.ntouch = 0; self.qz = 9; self.zq = 1; self.lgat = (0, 1, 2, 3, 4); self.fsh = 7; self.slp = 8; self.jf = 3; self.wj = 0; self.wdj = 1; self.wdmj = -1; self.wddj = 0; self.ysj = 0; self.jp = 6
        self.exp = set(exp)
        self.a = Asm(); self.prof = prof; self.stop = stop; self.wpos = wpos; self.nlab = 0
    def lab(self, p): self.nlab += 1; return f"L_{p}{self.nlab}"
    def stamp(self, k, mode=None):
        if not self.prof: return
        cur = ([m for m in ('pg1', 'pg2', 'pg3') if m in self.exp] + [None])[0]
        if mode != cur and k != 15: return
        a = self.a
        a.I("s_memtime" if 'cyc' in self.exp else "s_memrealtime", s(98, 2)); a.wait_lg0(); a.I("s_mov_b32", s(sPROF + k), s(98))

    def trig(self, delta, base, koffs, tmp):
        a = self.a; n = len(koffs); T = []
        for e, k in enumerate(koffs):
            if k == 0: T.append(base)
            else:
                a.I("v_fmamk_f32", v(tmp + e), v(delta), fl(float(k)), v(base)); T.append(tmp + e)
        for e in range(n): a.I("v_cos_f32", v(tmp + n + e), v(T[e]))
        for e in range(n): a.I("v_sin_f32", v(tmp + 2 * n + e), v(T[e]))
        return tmp + n, tmp + 2 * n
    def pack_bf(self, dst, src, n, neg=False):
        sg = "-" if neg else ""
        for p in range(n // 2): self.a.I("v_cvt_pk_bf16_f32", v(dst + p), sg + v(src + 2 * p), sg + v(src + 2 * p + 1))
    def cmul_tw(self, dr, di, r, i, tw, inverse):
        a = self.a
        a.I("v_fma_mix_f32", v(dr), v(r), v(tw), "0", mods="op_sel_hi:[0,1,0]")
        a.I("v_fma_mix_f32", v(di), v(i), v(tw), "0", mods="op_sel_hi:[0,1,0]")
        a.I("v_fma_mix_f32", v(dr), ("-" if inverse else "") + v(i), v(tw), v(dr), mods="op_sel:[0,1,0] op_sel_hi:[0,1,0]")
        a.I("v_fma_mix_f32", v(di), ("" if inverse else "-") + v(r), v(tw), v(di), mods="op_sel:[0,1,0] op_sel_hi:[0,1,0]")
    def mod(self, dst, src, m, tmp):
        a = self.a
        a.I("s_mul_i32", s(tmp), s(src), (65536 + m - 1) // m); a.I("s_lshr_b32", s(tmp), s(tmp), 16)
        a.I("s_mul_i32", s(tmp), s(tmp), m); a.I("s_sub_u32", s(dst), s(src), s(tmp))
    def stage_off(self, q, unit):
        I = self.a.I
        if self.rot4:
            I("s_add_u32", s(sT0), s(sSG), q); I("s_and_b32", s(sT0), s(sT0), 3)
            if q >= 4: I("s_add_u32", s(sT0), s(sT0), 8 * (q >> 2))
            I("s_mul_i32", s(sT0), s(sT0), 2 * unit); return
        I("s_add_u32", s(sT0), s(sSG), q); I("s_sub_u32", s(sT1), s(sT0), 12); I("s_cselect_b32", s(sT0), s(sT0), s(sT1))
        I("s_and_b32", s(sT1), s(sT0), 12); I("s_add_u32", s(sT0), s(sT0), s(sT1)); I("s_mul_i32", s(sT0), s(sT0), 2 * unit)
    def inc_mod(self, r, m):
        a = self.a
        a.I("s_add_u32", s(r), s(r), 1); a.I("s_cmp_eq_u32", s(r), m); a.I("s_cselect_b32", s(r), 0, s(r))
    def spin(self, loads, regs_, first=None, level=None, pre=None):
        a = self.a; L = self.lab("poll"); Dn = self.lab("pdone"); C = self.lab("pchk")
        a.I("s_mov_b32", s(sLIM), 20000)
        kq = []
        if first:
            a.wait_vm(first); kq = list(a.vm); a.I("s_branch", C)
        a.label(L)
        for ld in loads: ld()
        a.wait_vm0(); a.vm = kq
        a.label(C)
        if pre: pre()
        if level is None:
            a.I("v_cmp_eq_u32", "vcc", s(sNONCE), v(regs_[0]))
            for r in regs_[1:]:
                a.I("v_cmp_eq_u32", s(sA0, 2), s(sNONCE), v(r)); a.I("s_and_b64", "vcc", "vcc", s(sA0, 2))
        else:
            a.I("s_add_u32", s(sA0), s(sNONCE), level); a.I("v_subrev_u32", v(regs_[0]), s(sA0), v(regs_[0]))
            a.I("v_cmp_ge_u32", "vcc", 2 - level, v(regs_[0]))
        a.I("s_cmp_eq_u64", "vcc", "exec"); a.I("s_cbranch_scc1", Dn)
        a.I("s_sub_u32", s(sLIM), s(sLIM), 1); a.I("s_cmp_eq_u32", s(sLIM), 0); a.I("s_cbranch_scc1", Dn)
        a.I("s_sleep", self.slp); a.I("s_branch", L)
        a.label(Dn)
    def lds_arrive(self, k, t0):
        a = self.a; I = a.I
        I("v_mov_b32", v(t0), L_CNT + 4 * k); I("v_mov_b32", v(t0 + 1), 1)
        I("s_mov_b64", "exec", 1); I("ds_add_u32", v(t0), v(t0 + 1)); I("s_mov_b64", "exec", -1)
    def lds_wait(self, k, t0, n=4):
        a = self.a; I = a.I; L = self.lab("ls"); Dn = self.lab("lsd")
        I("v_mov_b32", v(t0), L_CNT + 4 * k)
        I("s_mov_b32", s(sLIM), 200000)
        a.label(L)
        I("ds_read_b32", v(t0 + 1), v(t0)); a.wait_lg0()
        I("v_readfirstlane_b32", s(sA0), v(t0 + 1)); I("s_cmp_ge_u32", s(sA0), n); I("s_cbranch_scc1", Dn)
        I("s_sub_u32", s(sLIM), s(sLIM), 1); I("s_cmp_lg_u32", s(sLIM), 0); I("s_cbranch_scc1", L)
        a.label(Dn)
    def prog_min(self, t):
        I = self.a.I
        I("v_min3_u32", v(t), v(t), v(t + 1), v(t + 2)); I("v_min_u32", v(t), v(t), v(t + 3)); I("v_readfirstlane_b32", s(sA0), v(t))
    def prog_wait(self, va, t, n):
        a = self.a; I = a.I; L = self.lab("pw"); Dn = self.lab("pwd")
        I("s_mov_b32", s(sLIM), 200000)
        a.label(L)
        I("ds_read_b128", v(t, 4), v(va)); a.wait_lg0()
        self.prog_min(t); I("s_cmp_ge_u32", s(sA0), n); I("s_cbranch_scc1", Dn)
        I("s_sub_u32", s(sLIM), s(sLIM), 1); I("s_cmp_lg_u32", s(sLIM), 0); I("s_cbranch_scc1", L)
        a.label(Dn)
    def prog_add(self, va, vone):
        I = self.a.I
        I("s_mov_b64", "exec", 1); I("ds_add_u32", v(va), v(vone)); I("s_mov_b64", "exec", -1)
    def lds_sync(self, k, t0, n=4):
        self.lds_arrive(k, t0); self.lds_wait(k, t0, n)
    def flag_store(self, soff, tmpv, level=0):
        a = self.a
        a.I("v_mov_b32", v(tmpv), s(sNONCE)); a.I("v_mov_b32", v(tmpv + 1), 0)
        if level: a.I("v_add_u32", v(tmpv), level, v(tmpv))
        a.I("s_mov_b64", "exec", 1)
        a.I("buffer_store_dword", v(tmpv), v(tmpv + 1), srd(WS), soff, mods="offen sc1", tag="flag")
        a.I("s_mov_b64", "exec", -1)

    def prologue(self):
        a = self.a; I = a.I
        I("s_cmp_ge_u32", s(sWG), 256); I("s_cbranch_scc1", "L_end")
        I("s_load_dwordx16", s(4, 16), s(0, 2), 0); I("s_load_dwordx4", s(20, 4), s(0, 2), 64)
        if self.prof: I("s_memtime" if 'cyc' in self.exp else "s_memrealtime", s(98, 2))
        I("v_lshrrev_b32", v(1), 6, v(0)); I("v_and_b32", v(0), 63, v(0)); I("v_readfirstlane_b32", s(sWV), v(1))
        if 'nopf' not in self.exp:
            I("s_getpc_b64", s(sT0, 2)); I("s_lshr_b32", s(sT2), s(sWG), 3); I("s_mul_i32", s(sT2), s(sT2), "PFL*128")
            I("v_lshl_add_u32", v(4), v(0), 7, s(sT2)); I("v_min_u32", v(4), "PFMAX", v(4)); I("v_mov_b32", v(5), s(sT1))
            I("v_add_co_u32", v(4), "vcc", s(sT0), v(4)); I("v_addc_co_u32", v(5), "vcc", 0, v(5), "vcc")
            I("s_cmp_lg_u32", s(sWV), 7); I("s_cbranch_scc1", "L_nopf")
            I("s_mov_b64", "exec", "(1<<PFL)-1")
            I("global_load_dword", v(6), v(4, 2), "off"); a.vm.pop()
            I("s_mov_b64", "exec", -1)
            a.label("L_nopf")
        I("s_and_b32", s(sXCD), s(sWG), 7); I("s_lshr_b32", s(sI), s(sWG), 3)
        I("s_and_b32", s(sT0), s(sXCD), 1); I("s_lshl_b32", s(sT0), s(sT0), 3); I("s_and_b32", s(sT1), s(sI), 7); I("s_add_u32", s(sMT), s(sT0), s(sT1))
        I("s_lshr_b32", s(sT0), s(sXCD), 1); I("s_lshl_b32", s(sT0), s(sT0), 2); I("s_lshr_b32", s(sT1), s(sI), 3); I("s_add_u32", s(sFS), s(sT0), s(sT1))
        I("s_add_u32", s(sT0), s(sMT), s(sFS)); self.mod(sCH, sT0, 10, sT1)
        I("s_and_b32", s(sT0), s(sXCD), 1); I("s_xor_b32", s(sT0), s(sT0), 1); I("s_lshr_b32", s(sT1), s(sXCD), 1); I("s_lshl2_add_u32", s(sT1), s(sT0), s(sT1))
        if 'selfq' in self.exp: I("s_mov_b32", s(sT1), s(sXCD))
        I("s_and_b32", s(sT0), s(sI), 3); I("s_lshl2_add_u32", s(sTQ), s(sT1), s(sT0)); I("s_lshr_b32", s(sNG), s(sI), 2)
        I("s_mul_i32", s(sT0), s(sT0), 3); I("s_mul_i32", s(sT1), s(sNG), 3); I("s_lshr_b32", s(sT1), s(sT1), 1); I("s_add_u32", s(sT0), s(sT0), s(sT1))
        self.mod(sSG, sT0, 12, sT1)
        if self.rot4: I("s_and_b32", s(sT0), s(sI), 3); I("s_add_u32", s(sT0), s(sT0), s(sNG)); I("s_and_b32", s(sSG), s(sT0), 3)
        self.mod(sT0, sI, 20, sT1); I("s_mul_i32", s(sP), s(sXCD), 20); I("s_add_u32", s(sP), s(sP), s(sT0))
        I("s_cmp_lt_u32", s(sI), 20); I("s_cselect_b32", s(sPOK), 0, BIG)
        I("s_cmp_eq_u32", s(sWG), 160); I("s_cselect_b32", s(sP), 160, s(sP)); I("s_cselect_b32", s(sPOK), 0, s(sPOK))
        I("s_and_b32", s(sWL), s(sWV), 3)
        I("s_cmp_eq_u32", s(sPOK), 0); I("s_cselect_b32", s(sFFT), 1, 0)
        a.wait_lg0()
        if self.prof:
            I("s_mov_b32", s(sPROF), s(98)); I("s_memtime", s(98, 2)); a.wait_lg0(); I("s_mov_b32", s(sPROF + 14), s(98))
        for r, p, n in ((X, 4, S * D * 2), (WS, 22, WS_END), (WR, 6, S * 642), (WI, 8, S * 642), (WD, 16, F * D * 2), (OUT, 18, S * D * 2)):
            I("s_mov_b32", s(r), s(p)); I("s_mov_b32", s(r + 1), s(p + 1)); I("s_mov_b32", s(r + 2), n); I("s_mov_b32", s(r + 3), "0x20000")
        I("s_bitcmp1_b32", s(sWV), 0)
        I("s_cselect_b32", s(W1), s(14), s(12)); I("s_cselect_b32", s(W1 + 1), s(15), s(13)); I("s_mov_b32", s(W1 + 2), D * F * 2); I("s_mov_b32", s(W1 + 3), "0x20000")
        I("v_mov_b32", v(2), 0)
        I("buffer_load_dword", v(vE), v(2), srd(WS), 0, mods="offen sc1", tag="E")
        I("s_cmp_ge_u32", s(sWV), 4); I("s_cselect_b32", s(sROLE), 1, 0)
        I("s_cmp_eq_u32", s(sROLE), 1); I("s_cbranch_scc1", "L_ld0")
        if 'noprio' not in self.exp: I("s_setprio", 1)
        I("s_lshr_b32", s(sT0), s(sWG), 7); I("s_lshl_b32", s(sT0), s(sT0), 5)
        I("s_lshr_b32", s(sT1), s(sWV), 1); I("s_lshl4_add_u32", s(sT0), s(sT1), s(sT0))
        I("s_bfe_u32", s(sT1), s(sWG), 5 | (2 << 16)); I("s_lshl2_add_u32", s(sT0), s(sT1), s(sT0))
        I("s_and_b32", s(sT1), s(sWV), 1); I("s_lshl1_add_u32", s(sT0), s(sT1), s(sT0))
        I("s_lshl_b32", s(sT0), s(sT0), 5); I("s_and_b32", s(sT1), s(sWG), 31); I("s_add_u32", s(sT6), s(sT0), s(sT1))
        I("s_mul_i32", s(sT0), s(sT6), 1280)
        I("s_mul_i32", s(sT7), s(sWV), 3072); I("s_add_u32", s(sT7), s(sT7), L_XR)
        I("s_mov_b32", "m0", s(sT7))
        I("v_lshlrev_b32", v(2), 4, v(0))
        I("v_add_u32", v(3), 39680, v(2)); I("v_cmp_gt_u32", "vcc", 16, v(0)); I("v_cndmask_b32", v(4), v(3), v(2), "vcc")
        I("v_mov_b32", v(5), BIG); I("v_cmp_gt_u32", "vcc", 32, v(0)); I("v_cndmask_b32", v(5), v(5), v(3), "vcc")
        I("buffer_load_dwordx4", v(2), srd(X), s(sT0), mods="offen lds", tag="xr")
        I("buffer_load_dwordx4", v(4), srd(X), s(sT0), mods="offen offset:1024 lds", tag="xr")
        I("buffer_load_dwordx4", v(5), srd(X), s(sT0), mods="offen offset:2048 lds", tag="xr")
        self.cvm = a.vm

    def consts(self):
        a = self.a; I = a.I
        I("v_and_b32", v(60), 15, v(0)); I("v_lshrrev_b32", v(61), 4, v(0))
        I("v_cvt_f32_u32", v(62), v(60)); I("v_lshlrev_b32", v(61), 2, v(61)); I("v_cvt_f32_u32", v(63), v(61))
        I("s_lshl_b32", s(sT0), s(sWL), 4); I("v_cvt_f32_u32", v(64), s(sT0))
        I("v_add_f32", v(65), v(62), v(64))
        I("v_mul_f32", v(66), fl(1 / 64), v(65)); I("v_mul_f32", v(67), v(63), v(66))
        for j in range(2):
            c, sn = self.trig(66, 67, [32 * j + 16 * (e >> 2) + (e & 3) for e in range(8)], 70)
            self.pack_bf(F64C + 4 * j, c, 8); self.pack_bf(F64S + 4 * j, sn, 8)
        I("v_mul_f32", v(66), fl(1 / 2048), v(65)); I("v_mul_f32", v(67), v(63), v(66))
        c, sn = self.trig(66, 67, [16 * (e >> 2) + (e & 3) for e in range(8)], 70)
        for e in range(8): I("v_cvt_pk_f16_f32", v(TW1 + e), v(c + e), v(sn + e))
        I("v_add_f32", v(64), v(64), v(63))
        for md in range(2):
            if md: I("v_add_f32", v(62), fl(16.0), v(62))
            I("v_mul_f32", v(66), fl(1 / 32), v(62)); I("v_mul_f32", v(67), v(63), v(66))
            c, sn = self.trig(66, 67, [16 * (e >> 2) + (e & 3) for e in range(8)], 70)
            self.pack_bf(F32C + 4 * md, c, 8); self.pack_bf(F32S + 4 * md, sn, 8)
            I("v_mul_f32", v(66), fl(1 / 2048), v(62)); I("v_mul_f32", v(67), v(64), v(66))
            c, sn = self.trig(66, 67, [0, 1, 2, 3], 70)
            for e in range(4): I("v_cvt_pk_f16_f32", v(TW2 + 4 * md + e), v(c + e), v(sn + e))
        for k in range(8): I("v_xor_b32", v(NS64 + k), "0x80008000", v(F64S + k)); I("v_xor_b32", v(NS32 + k), "0x80008000", v(F32S + k))

    def nonce(self):
        a = self.a; I = a.I
        a.wait_vm("E")
        I("v_readfirstlane_b32", s(sNONCE), v(vE))
        I("s_mul_i32", s(sNONCE), s(sNONCE), "0x9e3779b1"); I("s_add_u32", s(sNONCE), s(sNONCE), "0x7f4a7c15")

    def row_fft(self):
        a = self.a; I = a.I; a.vm = self.cvm
        FC, FS, TW, G0, G1, G2 = 8, 16, 24, 36, 40, 44
        I("v_and_b32", v(60), 31, v(0)); I("v_lshrrev_b32", v(61), 5, v(0))
        I("v_cvt_f32_u32", v(62), v(60)); I("v_cvt_f32_u32", v(63), v(61))
        I("v_mul_f32", v(66), fl(1 / 32), v(62)); I("v_mul_f32", v(67), fl(8.0), v(63)); I("v_mul_f32", v(67), v(67), v(66))
        for jj in range(2):
            c, sn = self.trig(66, 67, [16 * jj + e for e in range(8)], 70)
            self.pack_bf(FC + 4 * jj, c, 8); self.pack_bf(FS + 4 * jj, sn, 8, neg=True)
        I("v_mul_f32", v(63), 4.0, v(63))
        I("v_mul_f32", v(66), fl(1 / 640), v(62)); I("v_mul_f32", v(67), v(63), v(66))
        c, sn = self.trig(66, 67, [8 * (e >> 2) + (e & 3) for e in range(12)], 70)
        for e in range(12): I("v_cvt_pk_f16_f32", v(TW + e), v(c + e), v(sn + e))
        I("v_cmp_gt_u32", "vcc", 32, v(0))
        for e in range(8, 12): I("v_cndmask_b32", v(TW + e), 0, v(TW + e), "vcc")
        I("v_lshrrev_b32", v(64), 1, v(60)); I("v_cvt_f32_u32", v(64), v(64)); I("v_and_b32", v(65), 1, v(60)); I("v_cvt_f32_u32", v(65), v(65))
        I("v_mul_f32", v(66), fl(1 / 20), v(64)); I("v_mul_f32", v(67), v(63), v(66)); I("v_fmac_f32", v(67), fl(0.25), v(65))
        c, sn = self.trig(66, 67, [8 * (e >> 2) + (e & 3) for e in range(12)], 70)
        self.pack_bf(G0, c, 8); self.pack_bf(G1, sn, 8); self.pack_bf(G2, c + 8, 4); self.pack_bf(G2 + 2, sn + 8, 4)
        aT, aS, aY, fA, fB, e0 = 48, 49, 50, 51, 52, 53
        I("v_and_b32", v(64), 15, v(0)); I("v_lshrrev_b32", v(65), 2, v(64)); I("v_lshl_add_u32", v(65), v(61), 3, v(65))
        I("v_mul_u32_u24", v(65), 40, v(65)); I("v_and_b32", v(64), 3, v(64)); I("v_lshl_add_u32", v(65), v(64), 3, v(65))
        I("v_and_b32", v(64), 16, v(0)); I("v_lshl_add_u32", v(65), v(64), 1, v(65)); I("v_add_u32", v(aT), s(sT7), v(65))
        I("v_mul_u32_u24", v(64), 1280, v(61)); I("v_mad_u32_u24", v(64), v(60), 40, v(64)); I("v_add_u32", v(aS), s(sT7), v(64))
        I("s_lshl_b32", s(sT0), s(sWV), 2); I("s_add_u32", s(sT0), s(sT0), L_YS)
        I("v_lshlrev_b32", v(64), 5, v(60)); I("v_lshl_add_u32", v(64), v(61), 11, v(64)); I("v_add_u32", v(aY), s(sT0), v(64))
        I("v_cmp_eq_u32", "vcc", 0, v(0)); I("v_cndmask_b32", v(fA), 1.0, 0.5, "vcc"); I("v_cndmask_b32", v(e0), 0, 1.0, "vcc")
        I("v_cmp_eq_u32", "vcc", 32, v(0)); I("v_cndmask_b32", v(fB), 1.0, 0.5, "vcc")
        I("v_lshl_add_u32", v(54), v(61), 5, s(sT6)); I("v_lshlrev_b32", v(54), 3, v(54))
        self.gemm1_setup()
        self.nonce()
        a.wait_vm("xr")
        self.stamp(1)
        SD, AF = 60, 72
        for u in range(5): I("ds_read_b64", v(SD + 2 * u, 2), v(aS), mods=f"offset:{8*u}", tag="sd")
        for r in range(2):
            for jj in range(2):
                for rd in range(2):
                    I("ds_read_b64_tr_b16", v(AF + 8 * r + 4 * jj + 2 * rd, 2), v(aT), mods=f"offset:{1280*r+640*jj+160*rd}", tag=f"af{r}")
        A1 = 112
        def st1(r):
            for ri, Fm in ((0, FC), (1, FS)):
                d = v(A1 + 32 * r + 16 * ri, 16)
                I("v_mfma_f32_32x32x16_bf16", d, v(AF + 8 * r, 4), v(Fm, 4), 0)
                I("v_mfma_f32_32x32x16_bf16", d, v(AF + 8 * r + 4, 4), v(Fm + 4, 4), d)
        a.wait_lg("af0"); st1(0); a.wait_lg("af1"); st1(1)
        s0, s1, q0, q1, t0, t1 = 88, 89, 90, 91, 92, 93
        for u in range(10):
            I("v_lshlrev_b32", v(t0), 16, v(SD + u)); I("v_and_b32", v(t1), "0xffff0000", v(SD + u))
            if u == 0:
                I("v_mov_b32", v(s0), v(t0)); I("v_mov_b32", v(s1), v(t1)); I("v_mul_f32", v(q0), v(t0), v(t0)); I("v_mul_f32", v(q1), v(t1), v(t1))
            else:
                I("v_add_f32", v(s0), v(s0), v(t0)); I("v_add_f32", v(s1), v(s1), v(t1)); I("v_fmac_f32", v(q0), v(t0), v(t0)); I("v_fmac_f32", v(q1), v(t1), v(t1))
        I("v_add_f32", v(s0), v(s0), v(s1)); I("v_add_f32", v(q0), v(q0), v(q1))
        for sh in (1, 2, 4, 8):
            for r_ in (s0, q0): I("v_add_f32_dpp", v(r_), v(r_), v(r_), mods=f"row_shr:{sh} row_mask:0xf bank_mask:0xf bound_ctrl:1")
        for r_ in (s0, q0): I("v_add_f32_dpp", v(r_), v(r_), v(r_), mods="row_bcast:15 row_mask:0xa bank_mask:0xf")
        I("v_mul_f32", v(s0), fl(1 / 640), v(s0)); I("v_mul_f32", v(q0), fl(1 / 640), v(q0))
        I("v_fma_f32", v(q0), "-" + v(s0), v(s0), v(q0)); I("v_max_f32", v(q0), 0, v(q0))
        I("v_cvt_pk_bf16_f32", v(t0), v(s0), v(q0))
        I("v_and_b32", v(t1), "0xffff0000", v(t0)); I("v_add_f32", v(t1), fl(1e-5), v(t1))
        I("v_cvt_pk_bf16_f32", v(t1), v(t1), v(t1)); I("v_and_b32", v(t1), "0xffff0000", v(t1))
        I("v_sqrt_f32", v(t1), v(t1)); I("v_cvt_pk_bf16_f32", v(t1), v(t1), v(t1)); I("v_and_b32", v(t1), "0xffff0000", v(t1))
        I("v_rcp_f32", v(q1), v(t1)); I("v_and_b32", v(94), "0xffff", v(t0)); I("v_or_b32", v(94), v(94), v(t1)); I("v_mov_b32", v(95), s(sNONCE))
        I("v_mul_f32", v(q1), fl(SC), v(q1)); I("v_lshlrev_b32", v(s1), 16, v(t0)); I("v_mul_f32", v(s1), fl(-640.0), v(s1))
        I("s_mov_b32", "exec_lo", "0x80000000"); I("s_mov_b32", "exec_hi", "0x80000000")
        I("buffer_store_dwordx2", v(94, 2), v(54), srd(WS), s(sA3), mods="offen sc1", tag="gr")
        I("s_mov_b64", "exec", -1)
        I("v_readlane_b32", s(sT0), v(q1), 31); I("v_readlane_b32", s(sT1), v(q1), 63)
        I("v_readlane_b32", s(sT2), v(s1), 31); I("v_readlane_b32", s(sT3), v(s1), 63)
        B2 = 60; A2 = 176; TR, TI = 88, 100
        for r in range(2):
            re, im = A1 + 32 * r, A1 + 32 * r + 16
            for e in range(12): self.cmul_tw(TR + e, TI + e, re + e, im + e, TW + e, False)
            b = B2 + 12 * r
            self.pack_bf(b, TR, 8); self.pack_bf(b + 4, TI, 8); self.pack_bf(b + 8, TR + 8, 4); self.pack_bf(b + 10, TI + 8, 4)
            d = v(A2 + 16 * r, 16)
            I("v_mfma_f32_32x32x16_bf16", d, v(G0, 4), v(b, 4), 0)
            I("v_mfma_f32_32x32x16_bf16", d, v(G1, 4), v(b + 4, 4), d)
            I("v_mfma_f32_32x32x16_bf16", d, v(G2, 4), v(b + 8, 4), d)
        for r in range(2):
            o = A2 + 16 * r
            I("v_fma_f32", v(o), v(e0), s(sT2 + r), v(o))
            I("v_mul_f32", v(o), v(o), v(fA)); I("v_mul_f32", v(o + 8), v(o + 8), v(fB))
            for e in range(12): I("v_mul_f32", v(o + e), s(sT0 + r), v(o + e))
        for e in range(12):
            I("v_cvt_pk_bf16_f32", v(88 + e), v(A2 + e), v(A2 + 16 + e))
        for e in range(12):
            I("ds_write_b32", v(aY), v(88 + e), mods=f"offset:{(e >> 2) * 4096 + ((e & 3) >> 1) * 1024 + (e & 1) * 16}", tag="ys")

    XB, WB, CSW, CSR, GA, SEL, HA, XA, WE, GR = 208, 212, 214, 215, 216, 220, 224, 226, 230, 232
    def gemm1_setup(self):
        a = self.a; I = a.I
        XB, WB, CSW, CSR, GA, SEL, HA = self.XB, self.WB, self.CSW, self.CSR, self.GA, self.SEL, self.HA
        I("s_and_b32", s(sT4), s(sWV), 1); I("s_lshr_b32", s(sT5), s(sWV), 1)
        I("v_and_b32", v(2), 31, v(0)); I("v_lshrrev_b32", v(3), 5, v(0)); I("v_bfe_u32", v(4), v(0), 1, 3)
        I("s_lshl_b32", s(sT0), s(sT4), 13); I("v_lshl_add_u32", v(5), v(2), 7, s(sT0))
        I("s_lshl_b32", s(sT2), s(sT4), 2)
        for sp in range(4):
            I("s_xor_b32", s(sT1), s(sT2), 2 * sp)
            I("v_add_u32", v(6), s(sT1), v(3)); I("v_xor_b32", v(6), v(6), v(4)); I("v_lshl_add_u32", v(XB + sp), v(6), 4, v(5))
        I("v_and_b32", v(6), 15, v(0)); I("v_lshrrev_b32", v(7), 2, v(6)); I("v_lshl_add_u32", v(7), v(3), 3, v(7)); I("v_mul_u32_u24", v(7), 192, v(7))
        I("v_and_b32", v(6), 3, v(6)); I("v_lshl_add_u32", v(7), v(6), 3, v(7))
        I("v_bfe_u32", v(6), v(0), 4, 1); I("v_mul_u32_u24", v(6), UPOFF, v(6)); I("v_add_u32", v(7), v(7), v(6))
        I("s_mul_i32", s(sT0), s(sT5), 96); I("s_add_u32", s(sT0), s(sT0), W1OFF); I("s_mul_i32", s(sT1), s(sT4), 6144)
        I("s_add_u32", s(sT2), s(sT0), s(sT1)); I("s_sub_u32", s(sT3), s(sT0), s(sT1))
        I("v_add_u32", v(WB), s(sT2), v(7)); I("v_add_u32", v(WB + 1), s(sT3), v(7))
        I("s_mul_i32", s(sT0), s(sWV), 768); I("s_add_u32", s(sT0), s(sT0), L_CS); I("v_lshl_add_u32", v(CSW), v(0), 2, s(sT0))
        I("s_mul_i32", s(sT0), s(sT5), 768); I("s_add_u32", s(sT0), s(sT0), L_CS); I("v_lshl_add_u32", v(CSR), v(2), 3, s(sT0))
        I("s_lshl_b32", s(sT0), s(sT4), 8); I("s_add_u32", s(sT0), s(sT0), L_CS + 1536); I("v_lshl_add_u32", v(GA), v(2), 2, s(sT0))
        I("v_cmp_eq_u32", "vcc", 0, v(2)); I("v_cmp_eq_u32", s(sT0, 2), 20, v(2)); I("s_or_b64", "vcc", "vcc", s(sT0, 2))
        I("v_mov_b32", v(6), "0x3f803f80")
        for k in range(4): I("v_cndmask_b32", v(SEL + k), 0, v(6), "vcc")
        I("v_bfe_u32", v(6), v(0), 4, 1); I("v_mul_u32_u24", v(6), HP, v(6)); I("v_lshl_add_u32", v(6), v(3), 8, v(6))
        I("v_and_b32", v(7), 15, v(0)); I("v_lshl_add_u32", v(HA), v(7), 4, v(6)); I("v_add_u32", v(HA + 1), 2 * HP, v(HA))

    def gemm1(self):
        a = self.a; I = a.I
        XB, WB, CSW, CSR, GA, SEL, HA, XA, WE, GR = self.XB, self.WB, self.CSW, self.CSR, self.GA, self.SEL, self.HA, self.XA, self.WE, self.GR
        CS, BUF, ACC = 60, (72, 92), 112
        def reads(sp, b, xa, we):
            R = [("ds_read_b128", v(b, 4), v(xa + sp), ""), ("ds_read_b128", v(b + 4, 4), v(xa + sp), "offset:4096")]
            for ft in range(3):
                for rd in range(2):
                    R.append(("ds_read_b64_tr_b16", v(b + 8 + 4 * ft + 2 * rd, 2), v(we + (sp >> 1)), f"offset:{sp*3072 + rd*768 + ft*32}"))
            return R
        def group(b, R, cs=False, gaps=None, zero=False, cszero=False):
            k = 0
            for ft in range(3):
                for tt in range(2):
                    d = v(ACC + 32 * ft + 16 * tt, 16)
                    if 'm16' in self.exp:
                        for hh in range(2):
                            dd = v(ACC + 32 * ft + 16 * tt + 4 * hh + 8 * (b == BUF[1]), 4)
                            I("v_mfma_f32_16x16x32_bf16", dd, v(b + 8 + 4 * ft, 4), v(b + 4 * tt, 4), 0 if zero else dd)
                    elif 'nomfma' not in self.exp: I("v_mfma_f32_32x32x16_bf16", d, v(b + 8 + 4 * ft, 4), v(b + 4 * tt, 4), 0 if zero else d)
                    for _ in range(2):
                        if R: o = R.pop(0); I(o[0], o[1], o[2], mods=o[3])
                    if cs and tt == 0 and 'nocs' not in self.exp:
                        I("v_mfma_f32_16x16x32_bf16", v(CS + 4 * ft, 4), v(SEL, 4), v(b + 8 + 4 * ft, 4), 0 if cszero else v(CS + 4 * ft, 4))
                    if gaps and k in gaps: gaps[k]()
                    k += 1
        def tail_gaps():
            def g0():
                I("s_add_u32", s(sT1), s(sT1), SLOT1); I("s_cmp_eq_u32", s(sT1), 3 * SLOT1); I("s_cselect_b32", s(sT1), 0, s(sT1))
            def g1():
                for ft in range(3): I("ds_write_b32", v(CSW), v(CS + 4 * ft), mods=f"offset:{256*ft}")
            def g4():
                for k in range(4): I("v_add_u32", v(XA + k), s(sT1), v(XB + k))
                I("v_add_u32", v(WE), s(sT1), v(WB)); I("v_add_u32", v(WE + 1), s(sT1), v(WB + 1))
            return {0: g0, 1: g1, 4: g4}
        a.wait_lg0()
        I("s_mov_b32", s(sT0), 1); I("s_mov_b32", s(sT1), 0)
        self.stamp(2); self.stamp(1, 'pg1')
        I("s_barrier")
        self.stamp(3)
        for o in reads(0, BUF[0], XB, WB): I(o[0], o[1], o[2], mods=o[3])
        a.wait_lg0()
        group(BUF[0], reads(1, BUF[1], XB, WB), cs=True, zero=True, cszero=True); a.wait_lg0()
        group(BUF[1], reads(2, BUF[0], XB, WB), cs=True); a.wait_lg0()
        group(BUF[0], reads(3, BUF[1], XB, WB), gaps=tail_gaps()); a.wait_lg0()
        self.stamp(2, 'pg1')
        I("s_barrier")
        AC, BC, GR, KC = 8, 20, 28, 60
        K0 = -2 * 0.7978845608028654 * 1.4426950408889634; K1 = K0 * 0.044715
        def aux_read():
            for ft in range(3): I("ds_read_b64", v(AC + 4 * ft, 2), v(CSR), mods=f"offset:{256*ft}")
            for tt in range(2): I("ds_read_b32", v(GR + tt), v(GA), mods=f"offset:{128*tt}")
        X = []
        for ft in range(3): X += [lambda r=AC + 4 * ft + k: I("v_mov_b32", v(r), 0) for k in (2, 3)]
        X += [lambda: I("s_mov_b32", s(sT0), "0x01000100"), lambda: I("v_cmp_gt_u32", "vcc", 32, v(0))]
        for tt in range(2):
            d = BC + 4 * tt; k = KC + 6 * tt; g = GR + tt
            X += [lambda d=d, g=g: I("v_perm_b32", v(d), v(g), v(g), s(sT0)), lambda d=d: I("v_xor_b32", v(d), "0x80008000", v(d)),
                  lambda d=d: I("v_cndmask_b32", v(d), 0, v(d), "vcc"), lambda d=d: I("v_mov_b32", v(d + 1), v(d)),
                  lambda d=d: I("v_mov_b32", v(d + 2), 0), lambda d=d: I("v_mov_b32", v(d + 3), 0),
                  lambda g=g: I("v_and_b32", v(30), "0xffff0000", v(g)), lambda: I("v_rcp_f32", v(31), v(30)), lambda k=k: I("v_mul_f32", v(k + 4), v(30), v(30)),
                  lambda k=k: I("v_mul_f32", v(k), fl(K0), v(31)), lambda: I("v_mul_f32", v(32), v(31), v(31)), lambda: I("v_mul_f32", v(32), v(32), v(31)),
                  lambda k=k: I("v_mul_f32", v(k + 2), fl(K1), v(32))]
        def xs(n):
            def f():
                for _ in range(n):
                    if X: X.pop(0)()
            return f
        def scal():
            I("s_lshl1_add_u32", s(sT0), s(sMT), s(sT4)); I("s_mul_i32", s(sT2), s(sT0), 4 * HP); I("s_lshl1_add_u32", s(sT1), s(sFS), s(sT5))
            I("s_lshl_b32", s(sT3), s(sT1), 9); I("s_add_u32", s(sT2), s(sT2), s(sT3)); I("s_add_u32", s(sT2), s(sT2), WS_H)
            I("s_lshl_b32", s(sT0), s(sT0), 5); I("s_add_u32", s(sT0), s(sT0), s(sT1)); I("s_lshl_b32", s(sT0), s(sT0), self.fsh); I("s_add_u32", s(sT7), s(sT0), WS_FH)
        def corr():
            assert not X
            for ft in range(3):
                for tt in range(2):
                    dd = v(ACC + 32 * ft + 16 * tt, 16)
                    I("v_mfma_f32_32x32x16_bf16", dd, v(AC + 4 * ft, 4), v(BC + 4 * tt, 4), dd)
        ja = self.jac
        for j in range(1, 10):
            def g4(j=j):
                nx = ((j + 1) % 3) * SLOT1
                for k in range(4): I("v_add_u32", v(XA + k), nx, v(XB + k))
                I("v_add_u32", v(WE), nx, v(WB)); I("v_add_u32", v(WE + 1), nx, v(WB + 1))
            xg = {k: xs(3) for k in range(6)} if j == ja else None
            group(BUF[1], reads(0, BUF[0], XA, WE), gaps={4: aux_read} if j == ja else ({5: scal} if j == 2 else None)); a.wait_lg0()
            group(BUF[0], reads(1, BUF[1], XA, WE), gaps=xg); a.wait_lg0()
            group(BUF[1], reads(2, BUF[0], XA, WE), gaps=xg); a.wait_lg0()
            group(BUF[0], reads(3, BUF[1], XA, WE), gaps={4: g4} if j < 9 else None)
            if j == ja and j < 9: corr()
            a.wait_lg0()
            self.stamp(j + 2, 'pg1')
            I("s_barrier")
        self.stamp(4)
        if ja == 9: corr()
        group(BUF[1], [])
        n = 0
        self.ring_setup(sWV); I("v_lshlrev_b32", v(220), 4, v(0))
        RP = [f for q in range(self.nl, self.nc) for f in self.ring_parts(q, 220)]
        def rp(k=1):
            for _ in range(k):
                if RP: RP.pop(0)()
        rp(self.rp0)
        T, Z_, E_, V_ = 92, 100, 2, 10
        for ft in range(3):
            if ft: I("s_add_u32", s(sT2), s(sT2), 16384)
            for tt in range(2):
                g = ACC + 32 * ft + 16 * tt; u = g + 8; k = KC + 6 * tt; H = 72 + 4 * (n & 1); n += 1
                if 'noepi' in self.exp:
                    I("buffer_store_dwordx4", v(H, 4), v(HA + tt), srd(WS), s(sT2), mods="offen sc1", tag=f"h{ft}"); continue
                for p in range(4): I("v_pk_mul_f32", v(T + 2 * p, 2), v(g + 2 * p, 2), v(g + 2 * p, 2))
                for p in range(4): I("v_pk_fma_f32", v(T + 2 * p, 2), v(T + 2 * p, 2), v(k + 2, 2), v(k, 2), mods="op_sel_hi:[1,0,0]")
                for p in range(4): I("v_pk_mul_f32", v(Z_ + 2 * p, 2), v(g + 2 * p, 2), v(T + 2 * p, 2))
                rp()
                for p in range(8): I("v_exp_f32", v(E_ + p), v(Z_ + p))
                rp()
                for p in range(4): I("v_pk_mul_f32", v(V_ + 2 * p, 2), v(g + 2 * p, 2), v(u + 2 * p, 2))
                for p in range(4): I("v_pk_fma_f32", v(T + 2 * p, 2), v(E_ + 2 * p, 2), v(k + 4, 2), v(k + 4, 2), mods="op_sel_hi:[1,0,0]")
                rp()
                for p in range(8): I("v_rcp_f32", v(Z_ + p), v(T + p))
                rp()
                for p in range(4): I("v_pk_mul_f32", v(V_ + 2 * p, 2), v(V_ + 2 * p, 2), v(Z_ + 2 * p, 2))
                self.pack_bf(H, V_, 8)
                I("buffer_store_dwordx4", v(H, 4), v(HA + tt), srd(WS), s(sT2), mods="offen" if 'hplain' in self.exp else "offen sc1", tag=f"h{ft}")
            if ft and 'stage' in self.exp:
                a.wait_vm(f"h{ft-1}"); self.flag_store(s(sT7), 18, level=ft - 1)
        self.RP = RP
        self.stamp(5)

    XD, WDM, RD = 8, 12, 18
    def chunk_a(self, j):
        a = self.a; I = a.I; slot = (j % 3) * SLOT1
        I("s_lshl_b32", s(sT0), s(sCH), 7); I("s_add_u32", s(sT0), s(sT0), s(sT4))
        I("s_add_u32", "m0", s(sT6), slot)
        I("s_mul_i32", s(sWB), s(sCH), 64 * 3072); I("s_add_u32", s(sWB), s(sWB), s(sT5))
        for r in range(4): I("buffer_load_dwordx4", v(self.XD + r), srd(X), s(sT0), mods=f"offen offset:{1024*r} lds", tag=f"c{j}")
        I("s_add_u32", "m0", s(sT6), slot + 4096); I("s_add_u32", s(sT0), s(sT0), 32 * 1280)
        for r in range(4): I("buffer_load_dwordx4", v(self.XD + r), srd(X), s(sT0), mods=f"offen offset:{1024*r} lds", tag=f"c{j}")
        I("s_add_u32", "m0", s(sT7), slot)
        self.inc_mod(sCH, 10)
        for r in range(4): I("buffer_load_dwordx4", v(self.WDM + r), srd(W1), s(sWB), mods=f"offen offset:{1024*r} lds", tag=f"c{j}")
    def chunk_b(self, j):
        a = self.a; I = a.I; slot = (j % 3) * SLOT1
        I("s_add_u32", "m0", s(sT7), slot + 4096)
        for r in range(2): I("buffer_load_dwordx4", v(self.WDM + 4 + r), srd(W1), s(sWB), mods=f"offen offset:{1024*r} lds", tag=f"c{j}")
        I("s_add_u32", "m0", s(sT7), slot + 6144); I("s_add_u32", s(sWB), s(sWB), 32 * 3072)
        for r in range(4): I("buffer_load_dwordx4", v(self.WDM + r), srd(W1), s(sWB), mods=f"offen offset:{1024*r} lds", tag=f"c{j}")
        I("s_add_u32", "m0", s(sT7), slot + 10240)
        for r in range(2): I("buffer_load_dwordx4", v(self.WDM + 4 + r), srd(W1), s(sWB), mods=f"offen offset:{1024*r} lds", tag=f"c{j}")
    def common_l(self):
        a = self.a; I = a.I
        I("s_setprio", 0)
        self.consts()
        I("v_lshlrev_b32", v(self.RD), 4, v(0))
        I("v_lshlrev_b32", v(2), 2, v(0)); I("v_add_u32", v(2), L_CNT, v(2)); I("v_mov_b32", v(3), 0)
        I("s_mov_b64", "exec", "0xff0ff"); I("ds_write_b32", v(2), v(3)); I("s_mov_b64", "exec", -1)
    def stream(self):
        a = self.a; I = a.I
        I("v_lshrrev_b32", v(2), 3, v(0)); I("v_mul_u32_u24", v(2), 1280, v(2)); I("v_lshrrev_b32", v(3), 4, v(0)); I("v_and_b32", v(4), 7, v(0))
        for r in range(4):
            I("v_add_u32", v(5), 4 * (r & 1), v(3)); I("v_xor_b32", v(5), v(5), v(4)); I("v_lshl_add_u32", v(5), v(5), 4, v(2))
            I("v_add_u32", v(self.XD + r), 9216 * r, v(5))
        I("s_mov_b32", s(sT2), 21846)
        for jj in range(6):
            I("v_add_u32", v(2), 64 * jj, v(0))
            I("v_mul_u32_u24", v(3), s(sT2), v(2)); I("v_lshrrev_b32", v(3), 18, v(3))
            I("v_mul_u32_u24", v(3), 3072 - 192, v(3)); I("v_lshl_add_u32", v(3), v(2), 4, v(3))
            I("v_subrev_u32", v(self.WDM + jj), 1024 * (jj & 3), v(3))
        I("s_lshl1_add_u32", s(sT4), s(sMT), s(sWL)); I("s_mul_i32", s(sT4), s(sT4), 64 * 1280)
        I("s_mul_i32", s(sT5), s(sFS), 192)
        I("s_lshl_b32", s(sT6), s(sWL), 13)
        I("s_mul_i32", s(sT7), s(sWL), UPOFF); I("s_add_u32", s(sT7), s(sT7), W1OFF)
        self.chunk_a(0); self.chunk_b(0)
        I("s_branch", "L_cl"); self.svm = a.vm
    def stream2(self):
        a = self.a; I = a.I; a.vm = self.svm; a.lg = ["x"]
        early = False
        self.chunk_a(1)
        if early: self.chunk_b(1); self.chunk_a(2)
        self.nonce()
        a.wait_lg0()
        for j in range(10):
            a.wait_vm(f"c{j}")
            if j in (0, 3, 6, 9): self.stamp(2 + j // 3)
            self.stamp(j + 1, 'pg1')
            I("s_barrier")
            if j == 0 and early: self.chunk_b(2); continue
            if j == 0: self.chunk_b(1)
            if j + 2 <= 9: self.chunk_a(j + 2); self.chunk_b(j + 2)
        I("s_branch", "L_lj")
    def w_dma(self):
        if 'noW' in self.exp: return
        a = self.a; I = a.I
        I("s_mov_b32", s(sT2), 2731); I("s_mov_b32", s(sT3), 64 * 642 - 384)
        for i in range(3):
            I("v_add_u32", v(2), 64 * i, v(0)); I("v_mul_u32_u24", v(3), s(sT2), v(2)); I("v_lshrrev_b32", v(3), 16, v(3))
            I("v_mad_u32_u24", v(8 + i), v(3), s(sT3), v(self.RD))
        I("s_and_b32", s(sT0), s(sWG), 63); I("s_lshr_b32", s(sT1), s(sWG), 6); I("s_lshl_b32", s(sT1), s(sT1), 9); I("s_add_u32", s(sT0), s(sT0), s(sT1)); I("s_mul_i32", s(sT0), s(sT0), 642)
        I("s_and_b32", s(sT0), s(sT0), -4); I("s_and_b32", s(sT1), s(sWL), 1); I("s_mul_i32", s(sT2), s(sT1), 384); I("s_add_u32", s(sT0), s(sT0), s(sT2))
        I("s_mul_i32", s(sT1), s(sT1), 6144)
        for ar in range(2):
            I("s_add_u32", "m0", s(sT1), L_WRW + 3072 * ar)
            for i in range(3): I("buffer_load_dwordx4", v(8 + i), srd((WR, WI)[ar]), s(sT0), mods=f"offen offset:{1024*i} lds", tag="w")
    def w_pack(self):
        if 'noW' in self.exp: return
        a = self.a; I = a.I; DT = 100
        I("v_bfe_u32", v(2), v(0), 4, 1); I("v_bfe_u32", v(3), v(0), 2, 2); I("v_lshl_add_u32", v(3), v(2), 2, v(3)); I("v_mul_u32_u24", v(3), 384, v(3))
        I("v_and_b32", v(4), 3, v(0)); I("v_lshl_add_u32", v(3), v(4), 3, v(3)); I("v_lshrrev_b32", v(4), 5, v(0)); I("v_lshl_add_u32", v(3), v(4), 5, v(3))
        I("s_and_b32", s(sT0), s(sWL), 1); I("s_mul_i32", s(sT1), s(sT0), 6144); I("s_add_u32", s(sT1), s(sT1), L_WRW); I("v_add_u32", v(3), s(sT1), v(3))
        a.wait_vm("w")
        for t in range(6):
            for ar in range(2): I("ds_read_b64_tr_b16", v(DT + 4 * t + 2 * ar, 2), v(3), mods=f"offset:{ar*3072+64*t}", tag=f"t{t}")
        I("v_and_b32", v(5), 15, v(0)); I("v_lshl_add_u32", v(5), v(4), 4, v(5)); I("v_lshlrev_b32", v(5), 5, v(5)); I("v_lshl_add_u32", v(5), v(2), 4, v(5))
        I("s_mul_i32", s(sT0), s(sT0), 6144); I("s_add_u32", s(sT1), s(sT0), L_WRL); I("v_add_u32", v(5), s(sT1), v(5)); I("v_add_u32", v(6), s(sT1), v(self.RD))
        a.wait_lg("t5")
        for t in range(6): I("ds_write_b128", v(5), v(DT + 4 * t, 4), mods=f"offset:{1024*t}")
        for t in range(6): I("ds_read_b128", v(DT + 24 + 4 * t, 4), v(6), mods=f"offset:{1024*t}", tag=f"u{t}")
        I("s_mul_i32", s(sT1), s(sWG), YP); I("s_add_u32", s(sT0), s(sT0), s(sT1)); I("s_and_b32", s(sT1), s(sWG), 1); I("s_lshl_b32", s(sT1), s(sT1), 5)
        I("s_sub_u32", s(sT0), s(sT0), s(sT1)); I("s_add_u32", s(sT0), s(sT0), WS_WP)
        I("s_cmp_eq_u32", s(sWL), 3); I("s_cselect_b32", s(sT2), 8, 64); I("s_cselect_b32", s(sT3), 0, 64)
        I("v_mov_b32", v(4), BIG); I("v_cmp_gt_u32", "vcc", s(sT2), v(0)); I("v_cndmask_b32", v(2), v(4), v(self.RD), "vcc")
        I("v_cmp_gt_u32", "vcc", s(sT3), v(0)); I("v_cndmask_b32", v(3), v(4), v(self.RD), "vcc")
        for t in range(6):
            if t == 4: I("s_add_u32", s(sT0), s(sT0), 4096)
            a.wait_lg(f"u{t}")
            I("buffer_store_dwordx4", v(DT + 24 + 4 * t, 4), v({4: 2, 5: 3}.get(t, self.RD)), srd(WS), s(sT0), mods=f"offen offset:{1024*(t&3)} sc1", tag="st")
    def wd_dma(self):
        if 'nowd' in self.exp: return
        a = self.a; I = a.I
        for i in range(5):
            I("v_add_u32", v(3), 64 * i, v(0)); I("v_mul_u32_u24", v(3), 3277, v(3)); I("v_lshrrev_b32", v(3), 16, v(3))
            I("v_mul_u32_u24", v(3), 960, v(3)); I("v_add_u32", v(8 + i), v(3), v(self.RD))
        I("v_add_u32", v(12), 4096, v(12))
        I("s_and_b32", s(sT2), s(sWL), 1); I("s_lshr_b32", s(sT0), s(sWG), 1); I("s_mul_i32", s(sT0), s(sT0), 16 * 1280)
        I("s_and_b32", s(sT1), s(sWG), 1); I("s_lshl1_add_u32", s(sT1), s(sT1), s(sT2)); I("s_mul_i32", s(sT1), s(sT1), 320); I("s_add_u32", s(sT0), s(sT0), s(sT1))
        I("s_mul_i32", s(sT1), s(sT2), 5120); I("s_add_u32", "m0", s(sT1), L_WDR)
        for i in range(5):
            if i == 4: I("s_add_u32", "m0", s(sT1), L_WDR + 4096)
            I("buffer_load_dwordx4", v(8 + i), srd(WD), s(sT0), mods=f"offen offset:{1024*(i&3)} lds", tag="wd")
    def wd_pack(self):
        if 'nowd' in self.exp: return
        a = self.a; I = a.I; DT = 148
        I("v_bfe_u32", v(2), v(0), 4, 1); I("v_bfe_u32", v(3), v(0), 2, 2); I("v_lshl_add_u32", v(3), v(2), 2, v(3)); I("v_mul_u32_u24", v(3), 320, v(3))
        I("v_and_b32", v(4), 3, v(0)); I("v_mad_u32_u24", v(3), v(4), 40, v(3)); I("v_lshrrev_b32", v(4), 5, v(0)); I("v_lshl_add_u32", v(3), v(4), 3, v(3))
        I("s_and_b32", s(sA0), s(sWL), 1); I("s_mul_i32", s(sT0), s(sA0), 5120); I("s_add_u32", s(sT0), s(sT0), L_WDR); I("v_add_u32", v(3), s(sT0), v(3))
        a.wait_vm("wd")
        for n in range(2):
            for jj in range(3):
                for rd in range(2): I("ds_read_b64_tr_b16", v(DT + 12 * n + 4 * jj + 2 * rd, 2), v(3), mods=f"offset:{rd*2560+16*jj+160*n}", tag=f"d{n}{jj}")
        I("v_and_b32", v(5), 31, v(0)); I("v_lshlrev_b32", v(5), 4, v(5)); I("v_lshl_add_u32", v(5), v(4), 10, v(5))
        I("v_mov_b32", v(6), BIG); I("v_cmp_gt_u32", "vcc", 32, v(0)); I("v_cndmask_b32", v(6), v(6), v(5), "vcc")
        I("s_lshr_b32", s(sT0), s(sWG), 1); self.mod(sT1, sT0, 6, sT2); I("s_lshr_b32", s(sT2), s(sWG), 1)
        I("s_mul_i32", s(sT2), s(sT2), 10923); I("s_lshr_b32", s(sT2), s(sT2), 16)
        I("s_cmp_ge_u32", s(sT1), 3); I("s_cselect_b32", s(sT3), 1, 0)
        I("s_mul_i32", s(sT0), s(sT3), 3); I("s_sub_u32", s(sT1), s(sT1), s(sT0))
        I("s_lshl4_add_u32", s(sT1), s(sT1), s(sT2))
        I("s_and_b32", s(sT0), s(sWG), 1); I("s_lshl1_add_u32", s(sT0), s(sT0), s(sA0)); I("s_mul_i32", s(sT0), s(sT0), 96); I("s_add_u32", s(sT0), s(sT0), s(sT1))
        I("s_mul_i32", s(sT0), s(sT0), 5120); I("s_lshl_b32", s(sT3), s(sT3), 9); I("s_add_u32", s(sT0), s(sT0), s(sT3)); I("s_add_u32", s(sT0), s(sT0), WS_WD)
        I("s_cmp_lt_u32", s(sWG), 192); I("s_cselect_b32", s(sT0), s(sT0), BIG)
        for n in range(2):
            for jj in range(3):
                a.wait_lg(f"d{n}{jj}")
                if jj == 2: I("s_add_u32", s(sT0), s(sT0), 4096)
                I("buffer_store_dwordx4", v(DT + 12 * n + 4 * jj, 4), v(6 if jj == 2 else 5), srd(WS), s(sT0), mods=f"offen offset:{2048*(jj&1)} sc1", tag="st")
            if n == 0: I("s_add_u32", s(sT0), s(sT0), 48 * 5120 - 4096)
    def y_store(self, part):
        if 'noY' in self.exp: return
        a = self.a; I = a.I; DT = 60
        I("s_and_b32", s(sT0), s(sWL), 1); I("s_mul_i32", s(sT0), s(sT0), 6144)
        if part == 0:
            I("s_add_u32", s(sT1), s(sT0), L_YS); I("v_add_u32", v(3), s(sT1), v(self.RD))
            for u in range(6): I("ds_read_b128", v(DT + 4 * u, 4), v(3), mods=f"offset:{1024*u}", tag=f"y{u}")
            return
        I("s_mul_i32", s(sT1), s(sWG), YP); I("s_add_u32", s(sT0), s(sT0), s(sT1)); I("s_add_u32", s(sT0), s(sT0), WS_Y)
        for u in range(6):
            if u == 4: I("s_add_u32", s(sT0), s(sT0), 4096)
            if u == 5: I("s_cmp_eq_u32", s(sWL), 3); I("s_cselect_b32", s(sT0), BIG, s(sT0))
            a.wait_lg(f"y{u}")
            I("buffer_store_dwordx4", v(DT + 4 * u, 4), v(self.RD), srd(WS), s(sT0), mods=f"offen offset:{1024*(u&3)} sc1", tag="st")
    def yi_dma(self):
        a = self.a; I = a.I
        I("v_lshrrev_b32", v(2), 2, v(0)); I("v_mul_u32_u24", v(2), YP, v(2)); I("v_lshrrev_b32", v(3), 4, v(0)); I("v_xor_b32", v(3), v(3), v(0)); I("v_and_b32", v(3), 3, v(3))
        I("v_lshl_add_u32", v(14), v(3), 4, v(2))
        I("s_and_b32", s(sT3), s(sWL), 1); I("s_lshl_b32", s(sT1), s(sP), 6)
        I("s_mul_i32", s(sT0), s(sT3), 128 * YP); I("s_add_u32", s(sT0), s(sT0), s(sT1)); I("s_add_u32", s(sT0), s(sT0), WS_Y)
        I("s_lshl_b32", s(sT2), s(sT3), 13)
        for u in range(8):
            if u & 3 == 0: I("s_add_u32", "m0", s(sT2), L_YI + 1024 * u)
            if u: I("s_add_u32", s(sT0), s(sT0), 16 * YP - 1024 + (4096 if u == 4 else 0))
            I("buffer_load_dwordx4", v(14), srd(WS), s(sT0), mods=f"offen offset:{1024*(u&3)} sc1 lds", tag="yi")
    def wp_dma(self):
        a = self.a; I = a.I
        for h in range(2):
            I("s_lshl1_add_u32", s(sT0), s(sT3), h); I("s_mul_i32", s(sT0), s(sT0), 16 * YP); I("s_add_u32", s(sT0), s(sT0), s(sT1)); I("s_add_u32", s(sT0), s(sT0), WS_WP)
            I("s_add_u32", "m0", s(sT2), R2 + 3 * SLOT2 + 4096 * h)
            for u in range(4):
                if u: I("s_add_u32", s(sT0), s(sT0), 64 * YP - 1024)
                I("buffer_load_dwordx4", v(14), srd(WS), s(sT0), mods=f"offen offset:{1024*u} sc1 lds", tag="yi")
    def w_touch(self, lv, four=False):
        a = self.a; I = a.I
        I("s_sub_u32", s(sT0), s(sI), 21); I("s_cmp_lt_u32", s(sT0), 10); I("s_cselect_b32", s(sT1), 0, BIG); I("s_add_u32", s(sT1), s(sT1), WS_WD + lv * 81920)
        if four: I("s_lshl2_add_u32", s(sT0), s(sT0), s(sWL)); I("s_lshl_b32", s(sT0), s(sT0), 7)
        else: I("s_and_b32", s(sT2), s(sWL), 1); I("s_lshl1_add_u32", s(sT0), s(sT0), s(sT2)); I("s_lshl_b32", s(sT0), s(sT0), 8)
        I("s_and_b32", s(sT0), s(sT0), "0x1fff"); I("s_mov_b32", s(sT2), 6554); I("s_mov_b32", s(sT3), 48 * 5120 - 640 * 128)
        for k in range(2 if four else 4):
            I("v_add_u32", v(2), s(sT0), v(0))
            if k < 3: I("s_add_u32", s(sT0), s(sT0), 64)
            I("v_lshrrev_b32", v(3), 6, v(2)); I("v_mul_u32_u24", v(3), s(sT2), v(3)); I("v_lshrrev_b32", v(3), 16, v(3))
            I("v_lshlrev_b32", v(2), 7, v(2)); I("v_mad_u32_u24", v(2), v(3), s(sT3), v(2))
            I("buffer_load_dword", v(7), v(2), srd(WS), s(sT1), mods="offen sc1", tag="t")
    def cs_publish(self):
        a = self.a; I = a.I
        I("s_and_b32", s(sT0), s(sWL), 1); I("s_mul_i32", s(sT1), s(sT0), 1536); I("s_add_u32", s(sT1), s(sT1), L_CS); I("v_lshl_add_u32", v(2), v(0), 2, s(sT1))
        for wt in range(2):
            for ft in range(3): I("ds_read_b32", v(32 + 4 * wt + ft), v(2), mods=f"offset:{768*wt+256*ft}")
        I("s_lshl1_add_u32", s(sT0), s(sFS), s(sT0)); I("s_mul_i32", s(sT0), s(sT0), 10); I("s_add_u32", s(sT0), s(sT0), s(sCH)); I("s_lshl_b32", s(sT0), s(sT0), 9); I("s_add_u32", s(sT0), s(sT0), WS_CG)
        I("s_cmp_lt_u32", s(sMT), 10); I("s_cselect_b32", s(sT0), s(sT0), BIG)
        a.wait_lg0()
        for ft in range(3): I("v_add_f32", v(32 + ft), v(32 + ft), v(36 + ft))
        I("v_xor_b32", v(35), s(sNONCE), v(32)); I("v_xor_b32", v(35), v(35), v(33)); I("v_xor_b32", v(35), v(35), v(34))
        I("s_mov_b32", "exec_hi", 0)
        I("buffer_store_dwordx4", v(32, 4), v(self.RD), srd(WS), s(sT0), mods="offen sc1", tag="cg")
        I("s_mov_b32", "exec_hi", -1)
    def aux_write(self):
        a = self.a; I = a.I
        I("s_and_b32", s(sT0), s(sWL), 1); I("s_lshl_b32", s(sT1), s(sT0), 8); I("s_add_u32", s(sT1), s(sT1), L_CS + 1536); I("v_lshl_add_u32", v(2), v(0), 2, s(sT1))
        I("ds_write_b32", v(2), v(32))
        I("s_mul_i32", s(sT1), s(sT0), 768); I("s_add_u32", s(sT1), s(sT1), L_CS); I("v_lshl_add_u32", v(3), v(0), 3, s(sT1))
        for ft in range(3):
            c = 36 + ft
            I("v_add_f32", v(c), v(c), v(c + 4)); I("v_add_f32", v(c + 8), v(c + 8), v(c + 12)); I("v_add_f32", v(c), v(c), v(c + 16)); I("v_add_f32", v(c), v(c), v(c + 8))
            I("v_mov_b32", v(c + 4), v(c))
        for ft in range(3): I("v_permlane32_swap_b32", v(36 + ft), v(40 + ft))
        for ft in range(3):
            c = 36 + ft; d = 44 + 2 * ft
            I("v_add_f32", v(c), v(c), v(c + 4))
            I("v_cvt_pk_bf16_f32", v(4), v(c), v(c)); I("v_and_b32", v(5), "0xffff0000", v(4)); I("v_sub_f32", v(c), v(c), v(5))
            I("v_cvt_pk_bf16_f32", v(d), v(5), v(c)); I("v_and_b32", v(5), "0xffff0000", v(d)); I("v_sub_f32", v(c), v(c), v(5))
            I("v_cvt_pk_bf16_f32", v(d + 1), v(c), 0)
        I("s_mov_b32", "exec_hi", 0)
        for ft in range(3): I("ds_write_b64", v(3), v(44 + 2 * ft, 2), mods=f"offset:{256*ft}")
        I("s_mov_b32", "exec_hi", -1)
        a.wait_lg0()
    def side2(self):
        a = self.a; I = a.I; a.vm = self.dvm; a.lg = ["x"]
        if self.sprio: I("s_setprio", self.sprio)
        self.nonce()
        if self.wj < 0: self.w_pack()
        a.wait_lg0()
        jF = self.jf; jP = self.jp
        lda = [lambda k=k: I("buffer_load_dword", v(30 + k), v(24), srd(WS), s(sA2), mods=f"offen offset:{2048*k} sc1", tag="fa") for k in range(2)]
        ldx = [lambda: I("buffer_load_dwordx2", v(32, 2), v(25), srd(WS), s(sA3), mods="offen sc1", tag="ax")]
        for k in range(5): ldx.append(lambda k=k: I("buffer_load_dwordx4", v(36 + 4 * k, 4), v(self.RD), srd(WS), s(sT7 if k == 4 else sT6), mods=f"offen offset:{1024*(k&3)} sc1", tag="ax"))
        def chk():
            for k in range(5):
                r = 36 + 4 * k
                I("v_xor_b32", v(r + 3), v(r + 3), v(r)); I("v_xor_b32", v(r + 3), v(r + 3), v(r + 1)); I("v_xor_b32", v(r + 3), v(r + 3), v(r + 2))
        for j in range(10):
            if j == jF: a.wait_vm("st")
            if j == self.jac: self.spin(ldx, [33, 39, 43, 47, 51, 55], first="ax", pre=chk); self.aux_write()
            if j == 8: self.spin(lda, [30, 31], first="fa")
            if j in (0, 3, 6, 9): self.stamp(2 + j // 3)
            self.stamp(j + 1, 'pg1')
            I("s_barrier")
            if j == self.wdmj: self.w_dma()
            if j == self.wddj: self.wd_dma()
            if j == 0: self.y_store(0)
            if j == self.ysj: self.y_store(1)
            if j == 1: self.cs_publish()
            if j == self.wj: self.w_pack()
            if j == self.wdj: self.wd_pack()
            if j == jF:
                I("s_lshl_b32", s(sT0), s(sWG), 5); I("s_add_u32", s(sT0), s(sT0), WS_FA); I("s_cmp_eq_u32", s(sWL), 2); I("s_cselect_b32", s(sT0), s(sT0), BIG)
                self.flag_store(s(sT0), 2)
            if j == jP:
                I("v_lshlrev_b32", v(24), 5, v(0)); I("s_and_b32", s(sA2), s(sWL), 1); I("s_lshl_b32", s(sA2), s(sA2), 12); I("s_add_u32", s(sA2), s(sA2), WS_FA)
                for f in lda: f()
            if j == self.jai:
                I("v_lshlrev_b32", v(25), 3, v(0)); I("s_and_b32", s(sT0), s(sWL), 1); I("s_lshl1_add_u32", s(sA3), s(sMT), s(sT0)); I("s_lshl_b32", s(sA3), s(sA3), 9); I("s_add_u32", s(sA3), s(sA3), WS_ST)
                I("s_lshl1_add_u32", s(sT6), s(sFS), s(sT0)); I("s_mul_i32", s(sT6), s(sT6), 5120); I("s_add_u32", s(sT6), s(sT6), WS_CG); I("s_add_u32", s(sT7), s(sT6), 4096)
                for f in ldx: f()
            if j >= 8:
                L = self.lab("noyi")
                I("s_cmp_eq_u32", s(sFFT), 0); I("s_cbranch_scc1", L)
                if j == 8:
                    self.yi_dma()
                    I("s_cmp_eq_u32", s(sWG), 0); I("s_cselect_b32", s(sT0), WS_E, BIG); I("s_cmp_eq_u32", s(sWL), 2); I("s_cselect_b32", s(sT0), s(sT0), BIG)
                    self.flag_store(s(sT0), 2)
                else:
                    self.wp_dma()
                if self.ntouch > j - 8:
                    L2 = self.lab("wt"); I("s_branch", L2); a.label(L); sv = list(a.vm); self.w_touch(j - 8); a.vm = sv; L = L2
                a.label(L)
    def loader1(self):
        a = self.a; I = a.I
        a.label("L_ld0"); a.vm = ["E"]; a.lg = []
        I("s_setprio", 2)
        I("s_cmp_ge_u32", s(sWL), 2); I("s_cselect_b32", s(sROLE), 2, 1)
        I("s_cmp_eq_u32", s(sROLE), 2); I("s_cbranch_scc1", "L_sd0")
        self.stream()
        a.label("L_sd0"); a.vm = ["E"]
        if 'notlb' not in self.exp:
            I("v_lshlrev_b32", v(2), self.tlbsh, v(0))
            I("buffer_load_dword", v(7), v(2), srd(WS), 0, mods="offen sc1", tag="tlb")
            I("buffer_load_dword", v(7), v(2), srd(OUT), 0, mods="offen sc1", tag="tlb")
            I("buffer_load_dword", v(7), v(2), srd(WD), 0, mods="offen sc1", tag="tlb")
        I("v_lshlrev_b32", v(self.RD), 4, v(0))
        if self.wdmj < 0: self.w_dma()
        self.dvm = a.vm
        a.label("L_cl")
        self.common_l()
        I("s_cmp_eq_u32", s(sROLE), 2); I("s_cbranch_scc1", "L_sd1")
        self.stream2()
        a.label("L_sd1")
        self.side2()
        a.label("L_lj"); a.vm = []
        I("s_setprio", 0)
        self.ring_setup(sWL)
        self.t_setup()
        a.vm = ["yi"]
        I("s_cmp_eq_u32", s(sFFT), 0)
        if 'nofft' in self.exp: I("s_branch", "L_nofft")
        I("s_cbranch_scc1", "L_nofft")
        self.col_setup()
        I("s_barrier")
        self.stamp(6)
        for q in range(self.nl): self.ring_dma(q)
        self.col_fft()
        if self.zfirst: a.wait_vm("z"); self.z_arrive()
        self.lds_wait(6, 2)
        self.ring_dma(5); self.ring_dma(6)
        if not self.zfirst: a.wait_vm("z"); self.z_arrive()
        I("s_branch", "L_g2l")
        a.label("L_nofft"); a.vm = []; a.lg = []
        I("s_barrier")
        for q in range(self.nl): self.ring_dma(q)
        if self.ntouch >= 3: self.w_touch(2, True)
        a.wait_vm([f"r{q}" for q in range(5)]); self.lds_arrive(5, 2)
        self.ring_dma(5); self.ring_dma(6)
        a.label("L_g2l")

    def ring_parts(self, q, vA=18):
        a = self.a; I = a.I; slot = R2 + slot2(q) * SLOT2
        if 'noring' in self.exp: return []
        def part(r):
            if r == 0: self.stage_off(q, 5120); I("s_add_u32", s(sT0), s(sT0), s(sT4)); I("s_add_u32", "m0", s(sT5), slot)
            if r == 4: I("s_add_u32", "m0", s(sT5), slot + 4096); I("s_add_u32", s(sT0), s(sT0), 4096)
            I("buffer_load_dwordx4", v(vA), srd(WS), s(sT0), mods=f"offen offset:{1024*(r&3)} {'' if 'ringplain' in self.exp else 'sc1 '}lds", tag=f"r{q}")
        return [lambda r=r: part(r) for r in range(5)]
    def ring_dma(self, q, vA=18):
        for f in self.ring_parts(q, vA): f()
    def ring_setup(self, sw):
        I = self.a.I
        I("s_lshr_b32", s(sT0), s(sw), 1); I("s_lshl_b32", s(sT0), s(sT0), 3); I("s_and_b32", s(sT1), s(sw), 1); I("s_add_u32", s(sT0), s(sT0), s(sT1))
        I("s_mul_i32", s(sT1), s(sNG), 48); I("s_add_u32", s(sT0), s(sT0), s(sT1)); I("s_mul_i32", s(sT4), s(sT0), 5120); I("s_add_u32", s(sT4), s(sT4), WS_WD)
        I("s_mul_i32", s(sT5), s(sw), 5120)

    aY, aER, aEW, aZS, aWP = 6, 10, 11, 12, 15
    def col_setup(self):
        a = self.a; I = a.I; aY, aER, aEW, aZS = self.aY, self.aER, self.aEW, self.aZS
        I("v_and_b32", v(2), 15, v(0)); I("v_lshrrev_b32", v(3), 4, v(0)); I("v_lshrrev_b32", v(4), 2, v(2))
        I("v_lshlrev_b32", v(5), 4, v(4)); I("v_lshl_add_u32", v(5), v(2), 6, v(5))
        I("v_lshl_add_u32", v(5), v(3), 11, v(5)); I("v_add_u32", v(aY), L_YI, v(5))
        for k in range(1, 4): I("v_xor_b32", v(aY + k), 16 * k, v(aY))
        I("v_and_b32", v(5), 1, v(3)); I("v_xor_b32", v(5), v(5), v(4)); I("v_lshlrev_b32", v(5), 4, v(5)); I("v_lshl_add_u32", v(5), v(2), 6, v(5))
        I("v_lshrrev_b32", v(13), 1, v(3)); I("v_lshl_add_u32", v(5), v(13), 10, v(5)); I("s_lshl_b32", s(sA1), s(sWL), 12); I("s_add_u32", s(sA1), s(sA1), R2 + 3 * SLOT2)
        I("v_add_u32", v(self.aWP), s(sA1), v(5)); I("v_xor_b32", v(self.aWP + 1), 32, v(self.aWP))
        I("v_xor_b32", v(5), v(3), v(4)); I("v_lshlrev_b32", v(5), 4, v(5)); I("v_lshl_add_u32", v(5), v(2), 6, v(5)); I("v_add_u32", v(aER), L_EX, v(5))
        I("v_bfe_u32", v(4), v(2), 1, 2); I("v_lshrrev_b32", v(5), 3, v(2)); I("v_lshlrev_b32", v(5), 1, v(5)); I("v_and_b32", v(13), 1, v(2)); I("v_add_u32", v(5), v(5), v(13))
        I("v_lshl_add_u32", v(5), v(4), 2, v(5)); I("v_xor_b32", v(4), v(4), v(3)); I("v_lshlrev_b32", v(4), 4, v(4)); I("v_lshl_add_u32", v(5), v(5), 6, v(4))
        I("s_lshr_b32", s(sA2), s(sWL), 1); I("s_lshl_b32", s(sA1), s(sA2), 11)
        I("s_and_b32", s(sA2), s(sWL), 1); I("s_lshl3_add_u32", s(sA1), s(sA2), s(sA1)); I("s_add_u32", s(sA1), s(sA1), L_EX); I("v_add_u32", v(aEW), s(sA1), v(5))
        I("s_lshl_b32", s(sA1), s(sWL), 12); I("v_lshlrev_b32", v(5), 4, v(3)); I("v_lshl_add_u32", v(5), v(2), 8, v(5)); I("v_add_u32", v(aZS), s(sA1), v(5))

    def col_fft(self):
        a = self.a; I = a.I; aY, aER, aEW, aZS = self.aY, self.aER, self.aEW, self.aZS
        YF, O1, TT, BR, O2 = (52, 84), (116, 132), 148, (164, 172), (52, 84)
        M = "v_mfma_f32_16x16x32_bf16"
        a.wait_vm("yi")
        self.lds_sync(0, 2)
        self.stamp(7)
        yf = lambda c, mt, j, ri: YF[c] + 4 * ((mt * 2 + j) * 2 + ri)
        for c in range(2):
            for mt in range(2):
                for j in range(2):
                    for ri in range(2): I("ds_read_b128", v(yf(c, mt, j, ri), 4), v(aY + 2 * c + ri), mods=f"offset:{j*8192+mt*1024}", tag=f"y{c}{mt}")
        def cplx(dre, dim, Ar, Ai, C, Sp, Sm, n, data_is_A):
            for j in range(n):
                for k, (d, x1, c1) in enumerate(((dre, Ar(j), C(j)), (dim, Ai(j), C(j)), (dre, Ai(j), Sp(j)), (dim, Ar(j), Sm(j)))):
                    p, q = (x1, c1) if data_is_A else (c1, x1)
                    I(M, v(d, 4), v(p, 4), v(q, 4), 0 if (j == 0 and k < 2) else v(d, 4))
        def s1(c):
            for mt in range(2):
                a.wait_lg(f"y{c}{mt}")
                cplx(O1[c] + 8 * mt, O1[c] + 8 * mt + 4, lambda j: yf(c, mt, j, 0), lambda j: yf(c, mt, j, 1), lambda j: F64C + 4 * j, lambda j: F64S + 4 * j, lambda j: NS64 + 4 * j, 2, True)
        def s2(c):
            for mt in range(2):
                for i in range(4): self.cmul_tw(TT + 4 * mt + i, TT + 8 + 4 * mt + i, O1[c] + 8 * mt + i, O1[c] + 8 * mt + 4 + i, TW1 + 4 * mt + i, False)
            self.pack_bf(BR[c], TT, 16)
            for md in range(2):
                cplx(O2[c] + 8 * md, O2[c] + 8 * md + 4, lambda j: BR[c], lambda j: BR[c] + 4, lambda j: F32C + 4 * md, lambda j: F32S + 4 * md, lambda j: NS32 + 4 * md, 1, False)
        def wread():
            for c in range(2):
                for md in range(2): I("ds_read_b128", v(vWP + 8 * c + 4 * md, 4), v(self.aWP + c), mods=f"offset:{2048*md}", tag="wp")
        def s3(c):
            a.wait_lg("wp")
            for k in range(8):
                md, i = k >> 2, k & 3; re, im = O2[c] + 8 * md + i, O2[c] + 8 * md + 4 + i; w = vWP + 8 * c + 4 * md + (i >> 1)
                if i & 1: I("v_and_b32", v(2), "0xffff0000", v(w)); I("v_and_b32", v(3), "0xffff0000", v(w + 2))
                else: I("v_lshlrev_b32", v(2), 16, v(w)); I("v_lshlrev_b32", v(3), 16, v(w + 2))
                I("v_mul_f32", v(TT + k), v(re), v(2)); I("v_mul_f32", v(TT + 8 + k), v(im), v(2))
                I("v_fma_f32", v(TT + k), "-" + v(im), v(3), v(TT + k)); I("v_fmac_f32", v(TT + 8 + k), v(re), v(3))
            self.pack_bf(BR[c], TT, 16)
            for nb in range(2):
                cplx(O1[c] + 8 * nb, O1[c] + 8 * nb + 4, lambda j: BR[c], lambda j: BR[c] + 4, lambda j: F32C + 4 * nb, lambda j: NS32 + 4 * nb, lambda j: F32S + 4 * nb, 1, True)
        def s3b(c):
            for nb in range(2):
                for i in range(4): self.cmul_tw(TT + 8 * nb + i, TT + 8 * nb + 4 + i, O1[c] + 8 * nb + i, O1[c] + 8 * nb + 4 + i, TW2 + 4 * nb + i, True)
            self.pack_bf(BR[c], TT, 16)
            for nb in range(2):
                for ri in range(2): I("ds_write_b64", v(aEW), v(BR[c] + 4 * nb + 2 * ri, 2), mods=f"offset:{c*8192+ri*4096+nb*1024}")
        s1(0); wread(); s1(1); self.stamp(1); s2(0); s2(1); s3(0); s3(1); s3b(0); s3b(1)
        a.wait_vm([f"r{q}" for q in range(5)]); self.lds_arrive(5, 2)
        self.lds_sync(1, 2)
        ef = lambda mt, col, ri, j: YF[mt] + 4 * ((col * 2 + ri) * 2 + j)
        for mt in range(2):
            for col in range(2):
                for ri in range(2):
                    for j in range(2): I("ds_read_b128", v(ef(mt, col, ri, j), 4), v(aER), mods=f"offset:{col*8192+ri*4096+j*2048+mt*1024}", tag=f"e{mt}{col}")
        I("s_mul_i32", s(sA1), s(sP), ZP); I("s_add_u32", s(sA1), s(sA1), WS_Z); I("s_or_b32", s(sA1), s(sA1), s(sPOK))
        for mt in range(2):
            for col in range(2):
                a.wait_lg(f"e{mt}{col}")
                cplx(O1[mt] + 8 * col, O1[mt] + 8 * col + 4, lambda j: ef(mt, col, 0, j), lambda j: ef(mt, col, 1, j), lambda j: F64C + 4 * j, lambda j: NS64 + 4 * j, lambda j: F64S + 4 * j, 2, True)
        self.lds_arrive(6, 2)
        for mt in range(2):
            for u in range(2):
                pk = TT + 8 * mt + 4 * u
                for ii in range(2):
                    for col in range(2):
                        i = 2 * u + ii
                        I("v_cvt_pk_bf16_f32", v(pk + 2 * ii + col), v(O1[mt] + 8 * col + i), v(O1[mt] + 8 * col + 4 + i))
                I("buffer_store_dwordx4", v(pk, 4), v(aZS), srd(WS), s(sA1), mods=f"offen offset:{128*mt+64*u} sc1", tag="z")
        self.stamp(8)

    def z_arrive(self):
        a = self.a; I = a.I
        I("v_mov_b32", v(2), L_CNT + 8); I("v_mov_b32", v(3), 1)
        I("s_mov_b64", "exec", 1); I("ds_add_rtn_u32", v(4), v(2), v(3)); I("s_mov_b64", "exec", -1)
        a.wait_lg0()
        I("v_readfirstlane_b32", s(sA0), v(4))
        I("s_lshl_b32", s(sA1), s(sP), 5); I("s_add_u32", s(sA1), s(sA1), WS_FZ); I("s_or_b32", s(sA1), s(sA1), s(sPOK))
        I("s_cmp_eq_u32", s(sA0), 3); I("s_cselect_b32", s(sA1), s(sA1), BIG)
        self.flag_store(s(sA1), 2)

    def gemm2_c(self):
        a = self.a; I = a.I; M = "v_mfma_f32_16x16x32_bf16"
        GA_, SA_, AF, BQ, XF = 8, 48, (88, 108), 128, 192
        aH, aT, aX, aRW, aRR, aZ3, aF, aS, aL = 208, 210, 213, 214, 215, 216, 217, 218, 220
        I("s_and_b32", s(sT4), s(sWV), 1); I("s_lshr_b32", s(sT5), s(sWV), 1)
        I("v_lshlrev_b32", v(aL), 4, v(0)); I("v_and_b32", v(3), 15, v(0)); I("v_lshrrev_b32", v(4), 4, v(0))
        I("s_mul_i32", s(sT0), s(sT5), HP); I("v_add_u32", v(aH), s(sT0), v(aL)); I("s_sub_u32", s(sT0), HP, s(sT0)); I("v_add_u32", v(aH + 1), s(sT0), v(aL))
        I("s_mul_i32", s(sT0), s(sT5), 10240); I("v_add_u32", v(aT), s(sT0), v(aL)); I("v_add_u32", v(aT + 1), 3 * SLOT2, v(aT)); I("v_add_u32", v(aT + 2), 6 * SLOT2, v(aT))
        I("v_add_u32", v(5), L_GX, v(aL)); I("s_mul_i32", s(sT0), s(sWV), 5120); I("v_add_u32", v(aRW), s(sT0), v(5)); I("s_xor_b32", s(sT0), s(sWV), 2); I("s_mul_i32", s(sT0), s(sT0), 5120); I("v_add_u32", v(aRR), s(sT0), v(5))
        I("s_mul_i32", s(sT0), s(sT4), 10240); I("s_lshl_b32", s(sT1), s(sT5), 7); I("s_add_u32", s(sT0), s(sT0), s(sT1)); I("s_add_u32", s(sT0), s(sT0), 3 * SLOT2)
        I("v_and_b32", v(5), 1, v(3)); I("v_mul_u32_u24", v(5), 5120, v(5)); I("v_lshl_add_u32", v(5), v(4), 8, v(5)); I("v_lshrrev_b32", v(6), 1, v(3)); I("v_lshl_add_u32", v(5), v(6), 4, v(5))
        I("v_add_u32", v(aS), s(sT0), v(5)); I("v_add_u32", v(aS + 1), 2 * SLOT2, v(aS))
        I("s_lshl1_add_u32", s(sT0), s(sTQ), s(sT4))
        I("s_mul_i32", s(sT6), s(sT0), 2 * HP); I("s_lshl_b32", s(sT1), s(sT5), 13); I("s_add_u32", s(sT6), s(sT6), s(sT1)); I("s_add_u32", s(sT6), s(sT6), WS_H)
        I("s_lshl1_add_u32", s(sT0), s(sT0), s(sT5)); I("s_lshl_b32", s(sT3), s(sT0), 7); I("s_add_u32", s(sT3), s(sT3), WS_Z + 160 * ZP)
        I("s_mul_i32", s(sT0), s(sT0), 16 * 1280); I("s_mul_i32", s(sT1), s(sNG), 160); I("s_add_u32", s(sA3), s(sT0), s(sT1))
        I("v_mul_u32_u24", v(5), 1280, v(3)); I("v_mad_u32_u24", v(aX), v(4), 40, v(5))
        I("v_lshlrev_b32", v(aZ3), 3, v(3))
        I("v_and_b32", v(5), 31, v(0)); I("v_lshlrev_b32", v(aF), self.fsh, v(5)); I("s_lshl_b32", s(sA2), s(sTQ), 5 + self.fsh); I("s_add_u32", s(sA2), s(sA2), WS_FH)
        a.wait_vm("h2"); self.flag_store(s(sT7), 2, level=2)
        self.stamp(7); self.stamp(1, 'pg3')
        self.ring_setup(sWV)
        assert len(self.RP) % 5 == 0
        for f in self.RP: f()
        for q in range(max(self.nc, self.nl), 5):
            self.ring_dma(q, vA=aL)
            if 'pg3' in self.exp: self.stamp(2 * q - 2, 'pg3'); a.wait_vm0(); self.stamp(2 * q - 1, 'pg3')
        if 'wt' in self.exp:
            I("s_and_b32", s(sT0), s(sTQ), 3); I("s_lshl2_add_u32", s(sT0), s(sT0), s(sWV)); I("s_mul_i32", s(sT0), s(sT0), 80 * 128)
            I("s_mul_i32", s(sT1), s(sNG), 48 * 5120); I("s_add_u32", s(sT0), s(sT0), s(sT1)); I("s_add_u32", s(sT0), s(sT0), WS_WD + 16 * 5120)
            I("v_lshlrev_b32", v(5), 7, v(0))
            I("buffer_load_dword", v(6), v(5), srd(WS), s(sT0), mods="offen sc1", tag="t")
            I("s_add_u32", s(sT0), s(sT0), 64 * 128); I("s_mov_b64", "exec", "0xffff")
            I("buffer_load_dword", v(6), v(5), srd(WS), s(sT0), mods="offen sc1", tag="t")
            I("s_mov_b64", "exec", -1)
        I("buffer_load_dwordx4", v(XF, 4), v(aX), srd(X), s(sA3), mods="offen", tag="x")
        I("buffer_load_dwordx4", v(XF + 4, 4), v(aX), srd(X), s(sA3), mods="offen offset:16", tag="x")
        I("buffer_load_dwordx2", v(XF + 8, 2), v(aX), srd(X), s(sA3), mods="offen offset:32", tag="x")
        I("s_lshr_b32", s(sT0), s(sNG), 1); I("s_lshl2_add_u32", s(sT0), s(sTQ), s(sT0)); I("s_mul_i32", s(sT5), s(sT0), HP)
        I("s_and_b32", s(sT0), s(sNG), 1); I("s_lshl2_add_u32", s(sT0), s(sT0), s(sWV)); I("s_mul_i32", s(sT0), s(sT0), 48 * 128); I("s_add_u32", s(sT5), s(sT5), s(sT0)); I("s_add_u32", s(sT5), s(sT5), WS_H)
        I("v_lshlrev_b32", v(7), 7, v(0)); I("v_mov_b32", v(221), L_PL); I("s_lshl2_add_u32", s(sT0), s(sWV), L_PC); I("v_mov_b32", v(222), s(sT0)); I("v_mov_b32", v(223), 1); I("v_mov_b32", v(228), L_PC)
        a.wait_vm("r4"); self.lds_arrive(5, 2)
        self.stamp(8)
        self.spin([lambda: I("buffer_load_dword", v(5), v(aF), srd(WS), s(sA2), mods="offen sc1")], [5], level=2)
        self.stamp(9)
        def bfrag(q, u, tt): return BQ + 16 * (q % 4) + 4 * (2 * u + tt)
        def bload(q):
            out = []
            if 'nob' in self.exp or q >= 12: return out
            def pre():
                self.stage_off(q, 1024); I("s_add_u32", s(sT0), s(sT0), s(sT6))
            for u in range(2):
                for tt in range(2):
                    def f(u=u, tt=tt):
                        if u == 0 and tt == 0: pre()
                        I("buffer_load_dwordx4", v(bfrag(q, u, tt), 4), v(aH + tt), srd(WS), s(sT0), mods=f"offen offset:{1024*u} sc1", tag=f"b{q}_{u}")
                    out.append(f)
            return out
        def areads(q, u):
            slot = slot2(q); hi = slot // 3; off = (slot % 3) * SLOT2 + u * 5120; b = AF[u]
            return [("ds_read_b128", v(b + 4 * j, 4), v(aT + hi), f"offset:{off + 1024*j}", f"a{q}_{u}_{j}") for j in range(5)]
        def group(q, u, R, B=(), pre=None, post=None):
            B = list(B); pos = (5, 8) if B else ()
            a.wait_vm(f"b{q}_{u}")
            k = 0
            for j in range(5):
                if j in self.lgat: a.wait_lg([f"a{q}_{u}_{jj}" for jj in range(j, min([x for x in self.lgat if x > j] + [5]))])
                for tt in range(2):
                    d = v(GA_ + 20 * tt + 4 * j, 4)
                    I(M, d, v(AF[u] + 4 * j, 4), v(bfrag(q, u, tt), 4), 0 if (q, u) == (0, 0) else d)
                    if k == 0 and pre: pre()
                    if R: o = R.pop(0); I(o[0], o[1], o[2], mods=o[3], tag=o[4])
                    if k in pos: B.pop(0)()
                    if k == 6 and post: post()
                    if k == 9 and u == 1 and q <= 9:
                        self.prog_add(222, 223)
                    k += 1
        for f in bload(0): f()
        if 'ht' in self.exp:
            I("s_mov_b32", "exec_hi", "0xffff")
            I("buffer_load_dword", v(6), v(7), srd(WS), s(sT5), mods="offen sc1", tag="t")
            I("s_mov_b32", "exec_hi", -1)
        for q in (1, 2):
            for f in bload(q): f()
        self.lds_wait(5, 2, 8)
        self.stamp(10); self.stamp(1, 'pg2')
        pend = []
        def peek(): I("ds_read_b128", v(224, 4), v(221), tag="cl")
        def check(q):
            def f():
                L = self.lab("ck"); Dn = self.lab("ckd"); sv = None
                a.wait_lg("cl")
                self.prog_min(224); I("s_cmp_ge_u32", s(sA0), q - 4); I("s_cbranch_scc1", Dn)
                sv = list(a.lg); self.prog_wait(221, 224, q - 4); a.lg = sv
                a.label(Dn)
            return f
        for q in range(12):
            R = areads(q, 0)
            if q == 0:
                for o in R: I(o[0], o[1], o[2], mods=o[3], tag=o[4])
            else:
                group(q - 1, 1, R, pend, pre=check(q) if q >= 5 else None)
            B = bload(q + 3); pend = B[2:]
            group(q, 0, areads(q, 1), B[:2], post=peek if 4 <= q <= 10 else None)
            self.stamp(q + 2, 'pg2')
        group(11, 1, [])
        self.stamp(11)
        self.prog_wait(228, 224, 10)
        for j in range(5): I("ds_write_b128", v(aRW), v(GA_ + 20 + 4 * j, 4), mods=f"offset:{1024*j}")
        XU, PG, T = 48, 88, 108
        for k in range(10): I("v_lshlrev_b32", v(XU + 2 * k), 16, v(XF + k)); I("v_and_b32", v(XU + 2 * k + 1), "0xffff0000", v(XF + k))
        a.wait_lg0()
        self.lds_sync(3, 2)
        for j in range(5): I("ds_read_b128", v(PG + 4 * j, 4), v(aRR), mods=f"offset:{1024*j}", tag=f"g{j}")
        for j in range(5):
            a.wait_lg(f"g{j}"); g = GA_ + 4 * j
            for p in range(2): I("v_pk_add_f32", v(g + 2 * p, 2), v(g + 2 * p, 2), v(PG + 4 * j + 2 * p, 2))
            for i in range(4): I("v_mul_f32", v(T + i), fl(-1.4426950408889634), v(g + i))
            for i in range(4): I("v_exp_f32", v(T + i), v(T + i))
            for i in range(4): I("v_add_f32", v(T + i), 1.0, v(T + i))
            for i in range(4): I("v_rcp_f32", v(T + i), v(T + i))
            for p in range(2): I("v_pk_mul_f32", v(g + 2 * p, 2), v(g + 2 * p, 2), v(T + 2 * p, 2))
        self.stamp(12)
        I("s_barrier")
        PS = 128
        for j in range(5):
            for w in range(4): I("ds_read_b128", v(PS + 16 * j + 4 * w, 4), v(aS + (w >> 1)), mods=f"offset:{(w&1)*SLOT2+1024*j}", tag=f"p{j}")
        OP = 72
        for j in range(5):
            a.wait_lg(f"p{j}")
            g, b = GA_ + 4 * j, PS + 16 * j
            for p in range(2): I("v_pk_add_f32", v(b + 2 * p, 2), v(b + 2 * p, 2), v(b + 4 + 2 * p, 2))
            for p in range(2): I("v_pk_add_f32", v(b + 8 + 2 * p, 2), v(b + 8 + 2 * p, 2), v(b + 12 + 2 * p, 2))
            for p in range(2): I("v_pk_add_f32", v(b + 2 * p, 2), v(b + 2 * p, 2), v(b + 8 + 2 * p, 2))
            for p in range(2): I("v_pk_fma_f32", v(g + 2 * p, 2), v(g + 2 * p, 2), v(b + 2 * p, 2), v(XU + 4 * j + 2 * p, 2))
            self.pack_bf(OP + 2 * j, g, 4)
            if j == 1: I("buffer_store_dwordx4", v(OP, 4), v(aX), srd(OUT), s(sA3), mods="offen")
            if j == 3: I("buffer_store_dwordx4", v(OP + 4, 4), v(aX), srd(OUT), s(sA3), mods="offen offset:16")
        I("buffer_store_dwordx2", v(OP + 8, 2), v(aX), srd(OUT), s(sA3), mods="offen offset:32")
        self.stamp(13)

    DL, G4, RSH, RMK, aFH, aFZ, aZL, aSW = 20, 25, 26, 27, 28, 29, 30, 31
    TB, SA, ZB = 156, 76, 32
    def ldh(self): self.a.I("buffer_load_dword", v(16), v(self.aFH), srd(WS), s(sT6), mods="offen sc1", tag="fh")
    def t_setup(self):
        a = self.a; I = a.I
        I("v_and_b32", v(4), 15, v(0)); I("v_lshrrev_b32", v(3), 2, v(4)); I("v_mul_u32_u24", v(3), 20, v(3)); I("v_and_b32", v(2), 3, v(4)); I("v_add_u32", v(3), v(2), v(3))
        I("s_mul_i32", s(sT0), s(sNG), 80); I("v_add_u32", v(3), s(sT0), v(3)); I("v_cvt_f32_u32", v(3), v(3))
        for j in range(5):
            I("v_add_f32", v(5), fl(4.0 * j), v(3)); I("v_mul_f32", v(self.DL + j), fl(1 / 640), v(5))
        I("v_and_b32", v(5), 1, v(2)); I("v_lshlrev_b32", v(self.RSH), 4, v(5))
        I("v_mov_b32", v(self.RMK), 0)
        for k, mk in ((1, "0x80000000"), (2, "0x80008000"), (3, "0x8000")):
            I("v_mov_b32", v(5), mk); I("v_cmp_eq_u32", "vcc", k, v(2)); I("v_cndmask_b32", v(self.RMK), v(self.RMK), v(5), "vcc")
        I("v_lshrrev_b32", v(3), 4, v(0)); I("v_lshlrev_b32", v(5), 2, v(3)); I("v_cvt_f32_u32", v(self.G4), v(5))
        I("v_mul_u32_u24", v(3), 2 * ZP, v(3)); I("v_lshl_add_u32", v(self.aZL), v(4), 4, v(3))
        I("s_mul_i32", s(sT0), s(sWL), SLOT2); I("s_add_u32", s(sT0), s(sT0), 3 * SLOT2); I("v_lshl_add_u32", v(self.aSW), v(0), 4, s(sT0))
        I("v_and_b32", v(2), 31, v(0)); I("v_lshlrev_b32", v(self.aFH), self.fsh, v(2)); I("s_lshl_b32", s(sT6), s(sTQ), 5 + self.fsh); I("s_add_u32", s(sT6), s(sT6), WS_FH)
        I("s_and_b32", s(sT0), s(sNG), 1); I("s_lshl2_add_u32", s(sCH), s(sT0), s(sWL)); I("s_xor_b32", s(sTAU), s(sCH), 4)
        I("s_and_b32", s(sT0), s(sWL), 1); I("s_lshr_b32", s(sT7), s(sWL), 1); I("s_mul_i32", s(sT7), s(sT7), 10); I("s_add_u32", s(sT7), s(sT7), s(sT0)); I("s_add_u32", s(sT7), s(sT7), 8)
        I("v_lshrrev_b32", v(2), 3, v(0)); I("v_mov_b32", v(3), 20)
        for n, (r, off) in enumerate(((sCH, 0), (sCH, 10), (sTAU, 0), (sTAU, 10), (sT7, 0))):
            I("s_add_u32", s(sT0), s(r), off); I("v_mov_b32", v(5), s(sT0)); I("v_cmp_eq_u32", "vcc", n, v(2)); I("v_cndmask_b32", v(3), v(3), v(5), "vcc")
        I("v_and_b32", v(2), 7, v(0)); I("v_lshl_add_u32", v(2), v(3), 3, v(2)); I("v_min_u32", v(2), 160, v(2)); I("v_lshlrev_b32", v(self.aFZ), 5, v(2))
    def t_unit(self, n, j):
        if 'not' in self.exp: return
        a = self.a; I = a.I; TT = 76; d = self.TB + 40 * n + 4 * j
        if j == 0:
            I("s_lshl_b32", s(sA0), s((sCH, sTAU, sT7)[n]), 4); I("v_cvt_f32_u32", v(17), s(sA0)); I("v_add_f32", v(17), v(17), v(self.G4))
        I("v_mul_f32", v(19), v(17), v(self.DL + j)); I("v_fract_f32", v(19), v(19))
        c, sn = self.trig(self.DL + j, 19, [0, 1, 2, 3], TT)
        for p in range(4): I("v_cvt_pk_bf16_f32", v(d + p), v(c + p), "-" + v(sn + p))
        if n < 2:
            for p in range(4): I("v_alignbit_b32", v(d + 20 + p), v(d + p), v(d + p), v(self.RSH))
            for p in range(4): I("v_xor_b32", v(d + 20 + p), v(self.RMK), v(d + 20 + p))
    def gemm2_l(self):
        a = self.a; I = a.I; M = "v_mfma_f32_16x16x32_bf16"
        units = [(n, j) for n in range(3) for j in range(5)]
        ldz = lambda: I("buffer_load_dword", v(15), v(self.aFZ), srd(WS), s(sA2), mods="offen sc1", tag="fz")
        I("s_mov_b32", s(sA2), WS_FZ)
        I("s_lshl_b32", s(sWB), s(sTQ), 9); I("s_add_u32", s(sWB), s(sWB), WS_Z)
        zb = lambda n, tt: (32, 48)[n % 3] + 4 * tt if (n % 3) < 2 else (64, 68, 4, 8)[tt]
        def zload(n):
            src = (sCH, sCH, sTAU, sTAU, sT7)[n]
            I("s_mul_i32", s(sT0), s(src), 8 * ZP); I("s_add_u32", s(sT0), s(sT0), s(sWB))
            if n in (1, 3): I("s_add_u32", s(sT0), s(sT0), 80 * ZP)
            I("s_add_u32", s(sT1), s(sT0), ZP)
            for T in range(2):
                for hp in range(2): I("buffer_load_dwordx4", v(zb(n, 2 * T + hp), 4), v(self.aZL), srd(WS), s(sT0 + hp), mods=f"offen offset:{256*T} sc1", tag=f"z{n}_{T}")
        I("s_lshl2_add_u32", s(sT0), s(sWL), L_PL); I("v_mov_b32", v(12), s(sT0)); I("v_mov_b32", v(13), 1); I("v_mov_b32", v(28), L_PC)
        def cert(i): a.wait_vm(f"r{i}"); self.prog_add(12, 13); self.stamp(i - 3, 'pg2')
        def tu(n):
            for _ in range(n):
                if units: self.t_unit(*units.pop(0))
        if self.early56:
            tu(self.t0); cert(5); tu(self.t0); cert(6)
            for i in range(7, 12):
                self.prog_wait(28, 4, i - 6); self.ring_dma(i)
                if i == 11: ldz()
                tu(self.tper)
                if i > 7: cert(i - 1)
            tu(self.t1); cert(11)
        else:
            for i in range(7, 12):
                self.prog_wait(28, 4, i - 6); self.ring_dma(i)
                tu(self.tper); cert(i - 2)
            ldz()
            for i in (10, 11): tu(self.t1 // 2); cert(i)
        self.stamp(11)
        if 'nofft' not in self.exp: self.spin([ldz], [15], first="fz")
        self.stamp(9)
        I("s_lshl_b32", s(sT0), s(sTQ), 9); I("s_add_u32", s(sT0), s(sT0), WS_Z + 160 * ZP); I("s_cmp_eq_u32", s(sWL), 0); I("s_cselect_b32", s(sT0), s(sT0), BIG)
        I("v_and_b32", v(2), 15, v(0)); I("v_lshlrev_b32", v(2), 4, v(2))
        ZN = 136
        for T in range(2): I("buffer_load_dwordx4", v(ZN + 4 * T, 4), v(2), srd(WS), s(sT0), mods=f"offen offset:{256*T} sc1", tag="zn")
        zload(0); zload(1); zload(2)
        while units: self.t_unit(*units.pop(0))
        self.stamp(2)
        def mm(n, tt):
            if tt & 1 == 0:
                a.wait_vm(f"z{n}_{tt >> 1}")
                for k in range(2): I("v_swap_b32", v(zb(n, tt) + 2 + k), v(zb(n, tt + 1) + k))
            for j in range(5):
                d = v(self.SA + 20 * tt + 4 * j, 4)
                if n == 0 and j == 0:
                    zi = 12 + 4 * (tt & 1)
                    I("v_lshlrev_b32", v(zi), 16, v(ZN + 2 * tt)); I("v_xor_b32", v(zi + 1), "0x80000000", v(zi)); I("v_mov_b32", v(zi + 2), v(zi)); I("v_mov_b32", v(zi + 3), v(zi + 1))
                I(M, d, v(self.TB + 20 * n + 4 * j, 4), v(zb(n, tt), 4), v(12 + 4 * (tt & 1), 4) if n == 0 else d)
        for n in range(3):
            for tt in range(4): mm(n, tt)
            if n < 2: zload(n + 3)
        self.prog_wait(28, 12, 9)
        def wr(tt):
            for j in range(5): I("ds_write_b128", v(self.aSW), v(self.SA + 20 * tt + 4 * j, 4), mods=f"offset:{5120*tt+1024*j}")
        for tt in range(4):
            mm(3, tt); mm(4, tt)
            if tt: wr(tt - 1)
        self.stamp(12)
        wr(3)
        a.wait_lg0()
        self.stamp(13)
        I("s_barrier")

    def finish(self):
        a = self.a; I = a.I
        if self.prof:
            a.label("L_prof")
            I("s_memtime", s(98, 2)); a.wait_lg0(); I("s_sub_u32", s(sPROF + 14), s(98), s(sPROF + 14)); self.stamp(15)
            I("s_lshl3_add_u32", s(sT0), s(sWG), s(sWV)); I("s_lshl_b32", s(sT0), s(sT0), 7); I("s_add_u32", s(sT0), s(sT0), WS_PROF)
            I("v_mov_b32", v(2), 0); I("s_mov_b64", "exec", 1)
            if 'dbg' in self.exp:
                I("s_cmp_lg_u32", s(sWV), 4 if 'dbgl' in self.exp else 0); I("s_cbranch_scc1", "L_end")
                I("s_not_b32", s(sPROF), s(sPROF))
                for k in range(16):
                    I("v_mov_b32", v(3), s(sPROF + k)); I("global_atomic_umax", v(2), v(3), s(20, 2), mods=f"offset:{4*k} sc1")
            else:
              for k in range(16):
                I("v_mov_b32", v(3), s(sPROF + k)); I("buffer_store_dword", v(3), v(2), srd(WS), s(sT0), mods=f"offen offset:{4*k}")
        a.label("L_end"); I("s_endpgm")

    def build(self):
        a = self.a; I = a.I
        endl = "L_prof" if self.prof else "L_end"
        if self.prof:
            for k in range(1, 16): I("s_mov_b32", s(sPROF + k), 0)
        self.prologue()
        I("s_mov_b32", s(sA3), WS_ST)
        self.row_fft(); self.gemm1(); self.gemm2_c()
        I("s_branch", endl)
        self.loader1(); self.gemm2_l()
        self.finish()
        n = a.pad_hazards()
        hdr = open("recurrent_scan__spectral_gfnet__glu_gated_geglu__prompt.s.ref").read().split("; Override launch")[0]
        txt = hdr + f"; @launch grid=(256,1,1) block=(512,1,1) lds={LDS_BYTES}\n"
        txt += f'.amdgcn_target "amdgcn-amd-amdhsa--gfx950"\n.text\n.globl {NAME}\n.p2align 8\n.type {NAME},@function\n{NAME}:\n'
        txt += a.text()
        txt += f"L_codeend:\n.set PFMAX, ((L_codeend - {NAME}) & ~127) - 128\n"
        nl = (len(a.ins) * 7 // 128 + 31) // 32 + 1
        txt = txt.replace("PFL*128", str(nl * 128)).replace("(1<<PFL)-1", str((1 << nl) - 1))
        txt += f""".section .rodata,"a"
.p2align 6
.amdhsa_kernel {NAME}
  .amdhsa_next_free_vgpr 256
  .amdhsa_next_free_sgpr 102
  .amdhsa_accum_offset 256
  .amdhsa_group_segment_fixed_size 0
  .amdhsa_kernarg_size 80
  .amdhsa_user_sgpr_count 2
  .amdhsa_user_sgpr_kernarg_segment_ptr 1
  .amdhsa_system_sgpr_workgroup_id_x 1
.end_amdhsa_kernel
"""
        return txt, n

if __name__ == "__main__":
    import argparse
    ap = argparse.ArgumentParser(); ap.add_argument("-o", default="k.s"); ap.add_argument("--prof", action="store_true"); ap.add_argument("--wpos", type=int, default=-1); ap.add_argument("--exp", default=""); ap.add_argument("--set", default=""); ap.add_argument("--npre", type=int, default=2)
    args = ap.parse_args()
    g = G(prof=args.prof, wpos=args.wpos, exp=args.exp.split(','), npre=args.npre)
    for kv in filter(None, args.set.split(',')): setattr(g, kv.split('=')[0], int(kv.split('=')[1]))
    txt, n = g.build()
    open(args.o, "w").write(txt)
    print("nops", n, "lines", txt.count("\n"))
```
